```python
import torch

def _softmax(x, axis=-1):
    return torch.softmax(x, dim=axis)
def _gelu(x):
    return torch.nn.functional.gelu(x, approximate="tanh")
def _silu(x):
    return torch.nn.functional.silu(x)
def _sigmoid(x):
    return torch.sigmoid(x)
def _layernorm(x, axis=-1, eps=1e-5):
    m = x.mean(dim=axis, keepdim=True)
    v = x.var(dim=axis, keepdim=True, unbiased=False)
    return (x - m) / torch.sqrt(v + eps)
def _scatter_add(tgt, idx, src, axis=0):
    return tgt.clone().index_add_(axis, idx, src)
def _segment_sum(src, seg, n):
    out = torch.zeros((n,) + src.shape[1:], dtype=src.dtype)
    return out.index_add_(0, seg, src)
def _pad(x, pw):
    flat = tuple(v for pair in reversed(pw) for v in pair)
    return torch.nn.functional.pad(x, flat)

kernel_name = 'standalone__sliding_block_cached__sampling'

def setup_inputs():

    _w = (lambda a: (lambda t: t.to(torch.bfloat16) if t.is_floating_point() else t)(torch.as_tensor(a)))
    B, Sq, D = 8, 32, 576
    Hq, Hkv, Sk, Dh = 32, 16, 8192, 128
    assert Hq % Hkv == 0, (Hq, Hkv)
    return {
        "x": _w((lambda *s: torch.randn(*s, dtype=torch.bfloat16) * 0.8)(B, Sq, D)),
        "k_cache": _w((lambda *s: torch.randn(*s, dtype=torch.bfloat16) * 0.8)(B, Hkv, Sk, Dh)),
        "v_cache": _w((lambda *s: torch.randn(*s, dtype=torch.bfloat16) * 0.05)(B, Hkv, Sk, Dh)),
        "wq": _w((lambda *s: torch.randn(*s, dtype=torch.bfloat16) * 0.8)(D, Hq * Dh) * (D ** -0.5)),
        "wo": _w((lambda *s: torch.randn(*s, dtype=torch.bfloat16) * 0.05)(Hq * Dh, D) * ((Hq * Dh) ** -0.5)),
    }

def reference(x, k_cache, v_cache, wq, wo):
    B, Sq, D = x.shape
    Hq, Dh = 32, 128
    Hkv, Sk = k_cache.shape[1], k_cache.shape[2]
    W = min(4096, max(256, Sk // 4))
    rep = Hq // Hkv
    q = (lambda x, *d: x.permute(*d))((x @ wq).reshape(B, Sq, Hq, Dh), 0, 2, 1, 3)
    k = (lambda x, n, axis: torch.repeat_interleave(x, n, dim=axis))(k_cache[:, :, Sk - W:, :], rep, axis=1)
    v = (lambda x, n, axis: torch.repeat_interleave(x, n, dim=axis))(v_cache[:, :, Sk - W:, :], rep, axis=1)
    scores = torch.einsum("bhqd,bhkd->bhqk", q, k) * (Dh ** -0.5)
    p = _softmax(scores, axis=-1)
    o = torch.einsum("bhqk,bhkd->bhqd", p, v)
    return (lambda x, *d: x.permute(*d))(o, 0, 2, 1, 3).reshape(B, Sq, Hq * Dh) @ wo
```

```python
import re

REG_RE = re.compile(r'\b([vas])(?:\[(\d+):(\d+)\]|(\d+))(?![\w])')

def regs_of(tok):
    out = []
    tok = tok.strip()
    if tok in ('vcc',):
        return [('s', 106), ('s', 107)]
    if tok == 'm0':
        return [('s', 124)]
    if tok == 'exec':
        return [('s', 126), ('s', 127)]
    for m in REG_RE.finditer(tok):
        k = m.group(1)
        if m.group(2) is not None:
            out += [(k, i) for i in range(int(m.group(2)), int(m.group(3)) + 1)]
        else:
            out.append((k, int(m.group(4))))
    return out

TRANS = ('v_exp_f32', 'v_log_f32', 'v_rcp_f32', 'v_rsq_f32', 'v_sqrt_f32', 'v_sin_f32', 'v_cos_f32')

class Ins:
    __slots__ = ('text', 'op', 'cls', 'reads', 'writes', 'pos', 'srcc', 'ab', 'wide_data', 'passes')

def split_ops(s):
    return [t.strip() for t in s.split(',')]

def classify(text):
    t = text.split(';')[0].strip()
    parts = t.split(None, 1)
    op = parts[0]
    rest = parts[1] if len(parts) > 1 else ''
    ops = split_ops(rest) if rest else []
    I = Ins()
    I.text = text; I.op = op; I.reads = set(); I.writes = set(); I.srcc = set(); I.ab = set(); I.wide_data = set(); I.passes = 0
    R = lambda i: regs_of(ops[i]) if i < len(ops) else []
    if op.startswith('v_mfma'):
        I.cls = 'mfma'
        I.passes = 8 if '32x32' in op else 4
        I.writes |= set(R(0)); I.ab |= set(R(1)) | set(R(2)); I.srcc |= set(R(3))
        I.reads |= I.ab | I.srcc
    elif op.startswith('v_'):
        I.cls = 'trans' if op.split('_e')[0] in TRANS or op in TRANS else 'valu'
        if op.startswith('v_permlane'):
            I.cls = 'permlane'
            I.writes |= set(R(0)) | set(R(1)); I.reads |= set(R(0)) | set(R(1))
        elif op.startswith('v_cmp'):
            I.writes |= set(R(0))
            for i in range(1, len(ops)): I.reads |= set(R(i))
        elif op.startswith('v_readfirstlane') or op.startswith('v_readlane'):
            I.cls = 'readlane'
            I.writes |= set(R(0))
            for i in range(1, len(ops)): I.reads |= set(R(i))
        elif op.startswith(('v_add_co', 'v_addc_co', 'v_sub_co')):
            I.writes |= set(R(0)) | set(R(1))
            for i in range(2, len(ops)): I.reads |= set(R(i))
        else:
            I.writes |= set(R(0))
            for i in range(1, len(ops)): I.reads |= set(R(i))
            if op.startswith(('v_fmac', 'v_pk_fmac')): I.reads |= set(R(0))
            if 'dpp' in op or 'row_' in rest or 'quad_perm' in rest: I.cls = 'dpp'
    elif op.startswith('ds_'):
        I.cls = 'ds'
        if op.startswith(('ds_read', 'ds_bpermute', 'ds_permute', 'ds_swizzle')):
            I.writes |= set(R(0))
            for i in range(1, len(ops)): I.reads |= set(R(i))
        else:
            for i in range(len(ops)): I.reads |= set(R(i))
    elif op.startswith(('buffer_', 'global_')):
        I.cls = 'vmem'
        islds = re.search(r'\blds\b', rest) is not None or 'load_lds' in op
        if op in ('buffer_wbl2', 'buffer_inv'):
            pass
        elif islds:
            for i in range(len(ops)): I.reads |= set(R(i))
            I.reads.add(('s', 124))
            I.cls = 'vmem_lds'
        elif 'load' in op:
            I.writes |= set(R(0))
            for i in range(1, len(ops)): I.reads |= set(R(i))
            if 'd16' in op: I.reads |= set(R(0))
        elif 'atomic' in op:
            ret = re.search(r'\bsc0\b', rest) is not None
            if op.startswith('global_') and ret:
                I.writes |= set(R(0))
                for i in range(1, len(ops)): I.reads |= set(R(i))
            else:
                for i in range(len(ops)): I.reads |= set(R(i))
                if ret: I.writes |= set(R(0))
        else:
            for i in range(len(ops)): I.reads |= set(R(i))
            if 'x4' in op or 'x3' in op:
                d = R(0) if op.startswith('buffer_') else R(1)
                I.wide_data |= set(d)
    elif op.startswith('s_'):
        I.cls = 'salu'
        if op.startswith(('s_load', 's_memtime', 's_memrealtime', 's_buffer_load')):
            I.cls = 'smem'
            I.writes |= set(R(0))
            for i in range(1, len(ops)): I.reads |= set(R(i))
        elif op.startswith(('s_cmp', 's_cbranch', 's_branch', 's_waitcnt', 's_barrier', 's_nop', 's_endpgm', 's_sleep', 's_setprio', 's_bitcmp')):
            for i in range(len(ops)): I.reads |= set(R(i))
        else:
            I.writes |= set(R(0))
            for i in range(1, len(ops)): I.reads |= set(R(i))
            if 'saveexec' in op:
                I.writes |= {('s', 126), ('s', 127)}
    else:
        raise ValueError('unknown instr ' + text)
    return I

VALUISH = ('valu', 'trans', 'permlane', 'readlane', 'dpp')

def need_states(P, C):
    n = 0
    pw = P.writes
    vw = {r for r in pw if r[0] in 'va'}
    sw = {r for r in pw if r[0] == 's'}
    if P.cls in VALUISH:
        if C.cls == 'mfma' and vw & C.reads: n = max(n, 2)
        if C.cls in ('permlane', 'dpp') and vw & C.reads: n = max(n, 2)
        if C.cls == 'readlane' and vw & C.reads: n = max(n, 1)
        if P.cls == 'trans' and C.cls in VALUISH + ('mfma',) and vw & C.reads: n = max(n, 1)
        if sw:
            if C.cls in VALUISH and sw & C.reads: n = max(n, 4 if C.cls == 'readlane' else 2)
            if C.cls in ('vmem', 'vmem_lds') and sw & C.reads: n = max(n, 5)
            if C.cls in ('salu', 'smem') and sw & C.reads: n = max(n, 2)
    if P.cls == 'mfma':
        big = {4: 8, 8: 12}[P.passes]
        if C.cls == 'mfma':
            if pw & C.ab: n = max(n, big)
            if pw & C.srcc:
                if not (C.srcc == pw and C.passes == P.passes): n = max(n, big - 2)
            elif pw & C.writes: n = max(n, big)
        else:
            if pw & (C.reads | C.writes): n = max(n, big)
            if C.cls in VALUISH and P.srcc & C.writes: n = max(n, {4: 3, 8: 7}[P.passes])
    if P.cls == 'salu' and ('s', 124) in pw and C.cls == 'vmem_lds': n = max(n, 1)
    if P.wide_data and P.wide_data & C.writes: n = max(n, 2)
    return n

class Emitter:
    def __init__(self, roles=('A',)):
        self.lines = []
        self.hist = []
        self.pos = 0
        self.roles = tuple(roles)
        self.active = set(roles)
        self.vm = {r: [] for r in roles}
        self.lg = []
        self.smem_pending = False
        self.nlabel = 0
        self.ninst = 0
        self.role_cond = {}

    def raw(self, s):
        self.lines.append(s)

    def comment(self, s):
        self.lines.append('  ; ' + s)

    def label(self, name):
        self.lines.append(name + ':')

    def newlabel(self, p='L'):
        self.nlabel += 1
        return f'{p}_{self.nlabel}'

    def _push(self, I, states=1):
        I.pos = self.pos
        self.pos += states
        self.hist.append(I)
        if len(self.hist) > 40: self.hist.pop(0)
        self.lines.append('  ' + I.text)
        self.ninst += 1

    def nop(self, n):
        while n > 0:
            k = min(n, 16)
            I = classify(f's_nop {k-1}')
            self._push(I, k)
            n -= k

    def __call__(self, text, tag=None):
        I = classify(text)
        touched = I.reads | I.writes
        idx = -1
        for i, (_, d) in enumerate(self.lg):
            if d & touched: idx = i
        if idx >= 0:
            self.wait_lg(len(self.lg) - 1 - idx)
        for r in self.active:
            for (tg, d) in self.vm[r]:
                if d & touched:
                    raise RuntimeError(f'pending vmem load {tg} touched by: {text} (role {r})')
        need = 0
        for P in self.hist:
            ns = need_states(P, I)
            if ns:
                dist = self.pos - P.pos - 1
                if P.op == 's_nop': pass
                need = max(need, ns - dist)
        if need > 0: self.nop(need)
        self._push(I)
        if I.cls in ('vmem', 'vmem_lds') and I.op not in ('buffer_inv',):
            for r in self.active:
                self.vm[r].append((tag, set(I.writes)))
                if len(self.vm[r]) > 63:
                    raise RuntimeError(f'more than 63 vmem ops outstanding (role {r}) at {text}')
        elif I.cls == 'ds':
            self.lg.append((self.ninst, set(I.writes)))
        elif I.cls == 'smem':
            self.smem_pending = True
        return I

    def wait_lg(self, n=0):
        if self.smem_pending: n = 0
        n = min(n, 15)
        if n >= len(self.lg) and not self.smem_pending: return
        I = classify(f's_waitcnt lgkmcnt({n})')
        self._push(I)
        self.lg = self.lg[len(self.lg) - n:] if n else []
        self.smem_pending = False

    def _vm_need(self, role, tags):
        q = self.vm[role]
        idx = -1
        for i, (tg, d) in enumerate(q):
            if tg in tags: idx = i
        if idx < 0: return None
        return len(q) - 1 - idx

    def _vm_apply(self, role, n):
        q = self.vm[role]
        if n < len(q): self.vm[role] = q[len(q) - n:] if n else []

    def wait_vm(self, *tags):
        needs = {r: self._vm_need(r, tags) for r in self.active}
        vals = sorted({n for n in needs.values() if n is not None}, reverse=True)
        if not vals: return
        top = vals[0]
        self._push(classify(f's_waitcnt vmcnt({top})'))
        for r in self.active: self._vm_apply(r, top)
        rest = {r: n for r, n in needs.items() if n is not None and n < top}
        if rest:
            rs = frozenset(rest)
            cover = None
            for k in self.role_cond:
                if rs <= k and all(needs.get(r) is None or needs[r] < top or r not in self.active for r in k):
                    if cover is None or len(k) < len(cover): cover = k
            if cover is None:
                raise RuntimeError(f'no role condition covers {rs} for tags {tags}')
            n = min(rest.values())
            with self.only(cover):
                self._push(classify(f's_waitcnt vmcnt({n})'))
                for r in self.active: self._vm_apply(r, n)

    def wait_vm_all(self):
        self._push(classify('s_waitcnt vmcnt(0)'))
        for r in self.active: self.vm[r] = []

    def only(self, roles):
        return _Only(self, frozenset(roles))

class _Only:
    def __init__(self, e, roles):
        self.e = e; self.roles = roles
    def __enter__(self):
        e = self.e
        cmp_, br = e.role_cond[self.roles]
        self.lbl = e.newlabel('Lr')
        e(cmp_)
        e(f'{br} {self.lbl}')
        self.saved_active = e.active
        e.active = set(self.roles) & e.active
        self.start_pos = e.pos
        self.start_inst = e.ninst
        self.lg_before = list(e.lg)
        self.n_hist = list(e.hist)
    def __exit__(self, *a):
        e = self.e
        if a[0] is not None: return False
        if any(i > self.start_inst for (i, _) in e.lg) or e.smem_pending:
            e.wait_lg(0)
        e.lg = self.lg_before
        e.label(self.lbl)
        e.active = self.saved_active
        d = e.pos - self.start_pos
        for P in e.hist:
            if P.pos < self.start_pos: P.pos += d
        return False
```

```python
import sys, math, struct
from emit import Emitter

K1 = "attn_kernel"
K2 = "reduce_kernel"

SLOT = 16384
NSLOT = 7
SCR = NSLOT * SLOT
MX = SCR + 36864
LS = MX + 1024
ST = LS + 1024
PST = ST + 512
OS = PST + 512
LDS_BYTES = OS + 8192
PB = [5 * SLOT, 6 * SLOT]
WS_STATS = 0x1000000
WS_OX = 0x1100000
WS_STAMP = 0x20000000
PART_BYTES = 36864

def f32bits(x):
    return struct.unpack('<I', struct.pack('<f', x))[0]

def gen(opts):
    stamps = opts.get('stamps', False)
    st_pol = opts.get('st_pol', '')
    k2_pol = opts.get('k2_pol', '')
    wq_pol = opts.get('wq_pol', '')
    wo_pol = opts.get('wo_pol', '')
    x_pol = opts.get('x_pol', '')
    e = Emitter(roles=('A', 'B', 'C'))
    sK, sV, sWQ, sX, sWO, sWS, sDBG = 20, 24, 28, 32, 36, 40, 44
    sWave, sHkv, sB, sSp = 48, 49, 50, 51
    sW4k, sT0, sT1, sT2, sT3 = 52, 53, 54, 55, 56
    sWQb, sWOb, sSelLo, sSelHi, sC = 57, 58, 59, 60, 61
    sKs, sG0, sVb, sW9k = 62, 63, 64, 65
    sStamp = 66
    sI4, sHH = 98, 99
    nstamp = [0]
    srd = lambda n: f's[{n}:{n+3}]'
    e.role_cond[frozenset('A')] = (f's_cmp_lt_u32 s{sWave}, 4', 's_cbranch_scc0')
    e.role_cond[frozenset('BC')] = (f's_cmp_lt_u32 s{sWave}, 4', 's_cbranch_scc1')
    e.role_cond[frozenset('C')] = (f's_cmp_eq_u32 s{sWave}, 7', 's_cbranch_scc0')
    e.role_cond[frozenset('AB')] = (f's_cmp_eq_u32 s{sWave}, 7', 's_cbranch_scc1')
    def stamp():
        if stamps:
            i = nstamp[0]; nstamp[0] += 1
            assert i < 16
            e.wait_lg(0)
            e(f's_memrealtime s[{sStamp+2*i}:{sStamp+2*i+1}]')
            e.wait_lg(0)
    v = lambda n, c=1: f'v{n}' if c == 1 else f'v[{n}:{n+c-1}]'
    vLin, vLc, vLr = 1, 2, 3
    vKd = [4, 5, 6, 7]; vVd = 8; vKr = list(range(9, 17))
    vVr = 17; vPr = 18; vPw = 19; vWr = 20; vWx = 21
    vM = 22; vL = 23; vNm = 24; vMxA = 25
    vWQo = 26; vXr = 27
    vT = [28, 29, 30, 31]
    S0 = 128; QF = 96; KF = 64; W0R = 44
    XF = 128
    ACC = 96
    LANDS = [32, 48, 64, 80, 200, 216, 232]
    PFR = 248
    NL = len(LANDS)

    e.raw(f'.globl {K1}'); e.raw('.p2align 8'); e.raw(f'.type {K1},@function'); e.label(K1)
    e('s_cmp_ge_u32 s2, 256')
    e('s_cbranch_scc1 L_end1')
    e('s_load_dwordx16 s[4:19], s[0:1], 0')
    if stamps:
        e(f's_memrealtime s[{sStamp}:{sStamp+1}]'); nstamp[0] = 1
    e(f'v_lshrrev_b32 {v(vT[0])}, 6, v0')
    e(f'v_and_b32 v0, 63, v0')
    e(f'v_readfirstlane_b32 s{sWave}, {v(vT[0])}')
    e(f'v_and_b32 {v(vLc)}, 15, v0')
    e(f'v_lshrrev_b32 {v(vLr)}, 4, v0')
    e(f'v_lshlrev_b32 {v(vLin)}, 4, v0')
    e(f's_and_b32 s{sHkv}, s2, 7'); e(f's_lshl_b32 s{sHkv}, s{sHkv}, 1')
    e(f's_bfe_u32 s{sT0}, s2, 0x10003'); e(f's_or_b32 s{sHkv}, s{sHkv}, s{sT0}')
    e(f's_bfe_u32 s{sSp}, s2, 0x10004')
    e(f's_lshr_b32 s{sB}, s2, 5')
    e(f's_and_b32 s{sI4}, s{sWave}, 3'); e(f's_lshr_b32 s{sHH}, s{sWave}, 2')
    e(f's_and_b32 s{sT2}, s{sWave}, 1')
    e(f's_mul_i32 s{sWQb}, s{sT2}, {288*8192}')
    e(f's_lshl_b32 s{sT1}, s{sHkv}, 9'); e(f's_add_u32 s{sWQb}, s{sWQb}, s{sT1}')
    e(f's_lshr_b32 s{sT1}, s{sWave}, 1'); e(f's_lshl_b32 s{sT1}, s{sT1}, 7'); e(f's_add_u32 s{sWQb}, s{sWQb}, s{sT1}')
    e(f'v_lshlrev_b32 {v(vWQo)}, 16, {v(vLr)}')
    e(f'v_lshl_add_u32 {v(vWQo)}, {v(vLc)}, 3, {v(vWQo)}')
    e(f's_lshr_b32 s{sKs}, s2, 4')
    e(f's_cmp_ge_u32 s{sKs}, 9'); e(f's_cselect_b32 s{sT1}, 9, 0'); e(f's_sub_u32 s{sKs}, s{sKs}, s{sT1}')
    if not opts.get('rot', True): e(f's_mov_b32 s{sKs}, 0')
    e(f's_mov_b32 s{sT3}, s{sKs}')
    e(f's_mul_i32 s{sW9k}, s{sI4}, 9216')
    e(f's_lshl_b32 s{sW4k}, s{sI4}, 12')
    e.wait_lg(0)
    e(f's_mov_b32 s{sWQ}, s10'); e(f's_mov_b32 s{sWQ+1}, s11'); e(f's_mov_b32 s{sWQ+2}, {576*8192}'); e(f's_mov_b32 s{sWQ+3}, 0x20000')

    def q_group(n):
        L = LANDS[n % NL]
        e(f's_lshl_b32 s{sG0}, s{sKs}, 18'); e(f's_add_u32 s{sG0}, s{sG0}, s{sWQb}')
        for i in range(8):
            if i: e(f's_add_u32 s{sG0}, s{sG0}, 8192')
            e(f'buffer_load_dwordx2 {v(L+2*i,2)}, {v(vWQo)}, {srd(sWQ)}, s{sG0} offen{wq_pol}', tag=f'G{n}')
        if n < 8:
            e(f's_add_u32 s{sKs}, s{sKs}, 1'); e(f's_cmp_eq_u32 s{sKs}, 9'); e(f's_cselect_b32 s{sKs}, 0, s{sKs}')
    q_group(0)
    e(f's_mov_b32 s{sX}, s4'); e(f's_mov_b32 s{sX+1}, s5'); e(f's_mov_b32 s{sX+2}, {256*1152}'); e(f's_mov_b32 s{sX+3}, 0x20000')
    e(f's_lshl_b32 s{sT0}, s{sB}, 4'); e(f's_add_u32 s{sT0}, s{sT0}, s{sHkv}'); e(f's_lshl_b32 s{sT0}, s{sT0}, 21')
    e(f's_lshl_b32 s{sT1}, s{sSp}, 18'); e(f's_add_u32 s{sT0}, s{sT0}, s{sT1}'); e(f's_add_u32 s{sT0}, s{sT0}, {6144*256}')
    e(f's_add_u32 s{sK}, s6, s{sT0}'); e(f's_addc_u32 s{sK+1}, s7, 0'); e(f's_mov_b32 s{sK+2}, 0x40000'); e(f's_mov_b32 s{sK+3}, 0x20000')
    e(f's_add_u32 s{sV}, s8, s{sT0}'); e(f's_addc_u32 s{sV+1}, s9, 0'); e(f's_mov_b32 s{sV+2}, 0x40000'); e(f's_mov_b32 s{sV+3}, 0x20000')
    with e.only('BC'):
        e(f's_mul_i32 s{sT1}, s{sB}, 36864'); e(f's_add_u32 s{sT1}, s{sT1}, s{sW9k}')
        for i in range(9):
            if i % 4 == 0:
                e(f's_add_u32 m0, s{sW9k}, {SCR + (i//4)*4096}')
                if i: e(f's_add_u32 s{sT1}, s{sT1}, 4096')
                else: e.nop(1)
            e(f'buffer_load_dwordx4 {v(vLin)}, {srd(sX)}, s{sT1} offen offset:{(i%4)*1024}{x_pol} lds', tag='X')
    e(f'v_xor_b32 {v(vT[0])}, {v(vLr)}, {v(vLc)}')
    e(f'v_lshlrev_b32 {v(vT[0])}, 4, {v(vT[0])}')
    e(f'v_lshl_add_u32 {v(vKd[0])}, {v(vLr)}, 8, {v(vT[0])}')
    for i in range(1, 4): e(f'v_xor_b32 {v(vKd[i])}, {64*i}, {v(vKd[0])}')

    slot_of = {}
    free = list(range(NSLOT))
    nxt = [0]
    def dma_tile_body(n):
        slot = slot_of[n]
        if n < 16:
            e(f's_add_u32 m0, s{sW4k}, {slot*SLOT}')
            e(f's_add_u32 s{sT1}, s{sW4k}, {n*SLOT}')
            for i in range(4):
                e(f'buffer_load_dwordx4 {v(vKd[i])}, {srd(sK)}, s{sT1} offen offset:{i*1024} nt lds', tag=f'T{n}')
        else:
            p, u = (n - 16) // 8, (n - 16) % 8
            e(f's_add_u32 m0, s{sW4k}, {slot*SLOT}')
            if p == 0: e(f's_add_u32 s{sT1}, s{sVb}, {u*32768}')
            else:
                e(f's_xor_b32 s{sT1}, s{sVb}, 0x80'); e(f's_add_u32 s{sT1}, s{sT1}, {u*32768}')
            for i in range(4):
                if i: e(f's_add_u32 s{sT1}, s{sT1}, 1024')
                e(f'buffer_load_dwordx4 {v(vVd)}, {srd(sV)}, s{sT1} offen offset:{i*1024} nt lds', tag=f'T{n}')
    def issue(maxn):
        todo = []
        while nxt[0] < 32 and len(todo) < maxn:
            n = nxt[0]
            cand = [s for s in free if n < 16 or s < 5]
            if not cand: break
            s = cand[0] if n >= 16 else (max(cand) if any(c >= 5 for c in cand) and n >= 7 else cand[0])
            free.remove(s); slot_of[n] = s; todo.append(n); nxt[0] += 1
        if todo and not opts.get('nokv'):
            with e.only('A'):
                for n in todo: dma_tile_body(n)
    def release(ns):
        for n in ns: free.append(slot_of[n])
        free.sort()

    issue(opts.get('kpre', 2))
    for n in range(1, 4): q_group(n)

    e(f's_mov_b32 s{sWO}, s12'); e(f's_mov_b32 s{sWO+1}, s13'); e(f's_mov_b32 s{sWO+2}, {4096*1152}'); e(f's_mov_b32 s{sWO+3}, 0x20000')
    e(f's_mov_b32 s{sWS}, s18'); e(f's_mov_b32 s{sWS+1}, s19'); e(f's_mov_b32 s{sWS+2}, 0x30000000'); e(f's_mov_b32 s{sWS+3}, 0x20000')
    e(f's_mov_b32 s{sDBG}, s16'); e(f's_mov_b32 s{sDBG+1}, s17'); e(f's_mov_b32 s{sDBG+2}, 256'); e(f's_mov_b32 s{sDBG+3}, 0x20000')
    e(f's_mov_b32 s{sSelLo}, 0x05040100'); e(f's_mov_b32 s{sSelHi}, 0x07060302')
    e(f's_mov_b32 s{sC}, {hex(f32bits(math.log2(math.e) / math.sqrt(128.0)))}')
    e(f's_lshl_b32 s{sT1}, s{sHkv}, 2'); e(f's_add_u32 s{sT1}, s{sT1}, s{sSp}')
    e(f's_mul_i32 s{sWOb}, s{sT1}, {64*1152}'); e(f's_add_u32 s{sWOb}, s{sWOb}, s{sW9k}')
    e(f's_xor_b32 s{sT1}, s{sSp}, 1'); e(f's_lshl_b32 s{sT1}, s{sT1}, 7')
    e(f's_lshl_b32 s{sVb}, s{sI4}, 13'); e(f's_add_u32 s{sVb}, s{sVb}, s{sT1}')
    e(f'v_lshrrev_b32 {v(vT[0])}, 3, v0')
    e(f'v_and_b32 {v(vT[1])}, 6, {v(vT[0])}')
    e(f'v_and_b32 {v(vT[2])}, 7, v0')
    e(f'v_xor_b32 {v(vT[1])}, {v(vT[1])}, {v(vT[2])}')
    e(f'v_lshlrev_b32 {v(vT[1])}, 4, {v(vT[1])}')
    e(f'v_lshl_add_u32 {v(vVd)}, {v(vT[0])}, 8, {v(vT[1])}')
    e(f'v_lshrrev_b32 {v(vT[0])}, 5, v0')
    e(f'v_xor_b32 {v(vT[0])}, {v(vT[0])}, {v(vLc)}')
    e(f'v_lshlrev_b32 {v(vT[0])}, 4, {v(vT[0])}')
    e(f'v_and_b32 {v(vT[1])}, 31, v0')
    e(f'v_lshl_add_u32 {v(vT[0])}, {v(vT[1])}, 8, {v(vT[0])}')
    e(f's_and_b32 s{sT1}, s{sWave}, 1'); e(f's_lshl_b32 s{sT1}, s{sT1}, 13')
    e(f'v_add_u32 {v(vKr[0])}, s{sT1}, {v(vT[0])}')
    for j in range(1, 8): e(f'v_xor_b32 {v(vKr[j])}, {32*j}, {v(vKr[0])}')
    e(f'v_lshrrev_b32 {v(vT[0])}, 1, {v(vLr)}')
    e(f'v_lshlrev_b32 {v(vT[0])}, 4, {v(vT[0])}')
    e(f'v_and_b32 {v(vT[1])}, 1, {v(vLr)}')
    e(f'v_lshl_add_u32 {v(vT[0])}, {v(vT[1])}, 2, {v(vT[0])}')
    e(f'v_lshrrev_b32 {v(vT[1])}, 2, {v(vLc)}')
    e(f'v_add_u32 {v(vT[0])}, {v(vT[0])}, {v(vT[1])}')
    e(f'v_bfe_u32 {v(vT[1])}, {v(vT[0])}, 1, 2')
    e(f'v_xor_b32 {v(vT[1])}, s{sI4}, {v(vT[1])}')
    e(f'v_lshlrev_b32 {v(vT[1])}, 5, {v(vT[1])}')
    e(f'v_lshl_add_u32 {v(vT[1])}, {v(vT[0])}, 7, {v(vT[1])}')
    e(f'v_and_b32 {v(vT[2])}, 3, {v(vLc)}')
    e(f'v_lshl_add_u32 {v(vVr)}, {v(vT[2])}, 3, {v(vT[1])}')
    e(f's_lshl_b32 s{sT1}, s{sWave}, 11'); e(f's_add_u32 s{sT1}, s{sT1}, {PB[0]}')
    e(f'v_add_u32 {v(vPw)}, s{sT1}, {v(vLin)}')
    e(f'v_lshlrev_b32 {v(vT[1])}, 9, {v(vLr)}')
    e(f'v_lshl_add_u32 {v(vT[1])}, {v(vLc)}, 4, {v(vT[1])}')
    e(f's_lshl_b32 s{sT1}, s{sHH}, 13'); e(f's_add_u32 s{sT1}, s{sT1}, {PB[0]}')
    e(f'v_add_u32 {v(vPr)}, s{sT1}, {v(vT[1])}')
    e(f'v_lshrrev_b32 {v(vT[0])}, 2, v0')
    e(f's_movk_i32 s{sT1}, 1152')
    e(f'v_mul_lo_u32 {v(vT[0])}, {v(vT[0])}, s{sT1}')
    e(f'v_lshl_add_u32 {v(vT[0])}, {v(vT[2])}, 3, {v(vT[0])}')
    e(f's_lshl_b32 s{sT1}, s{sWave}, 7'); e(f's_add_u32 s{sT1}, s{sT1}, {SCR}')
    e(f'v_add_u32 {v(vWr)}, s{sT1}, {v(vT[0])}')
    e(f's_lshr_b32 s{sT1}, s{sWave}, 1'); e(f's_lshl_b32 s{sT1}, s{sT1}, 5'); e(f's_add_u32 s{sT1}, s{sT1}, {SCR + 1024}')
    e(f'v_add_u32 {v(vWx)}, s{sT1}, {v(vT[0])}')
    e(f'v_and_b32 {v(vT[0])}, 31, v0')
    e(f's_lshl_b32 s{sT1}, s{sHH}, 9'); e(f's_add_u32 s{sT1}, s{sT1}, {MX}')
    e(f'v_lshlrev_b32 {v(vT[0])}, 4, {v(vT[0])}')
    e(f'v_add_u32 {v(vMxA)}, s{sT1}, {v(vT[0])}')
    e(f's_movk_i32 s{sT1}, 1152')
    e(f'v_mul_lo_u32 {v(vXr)}, {v(vLc)}, s{sT1}')
    e(f'v_lshl_add_u32 {v(vXr)}, {v(vLr)}, 4, {v(vXr)}')
    for n in range(4, 6): q_group(n)

    with e.only('BC'):
        e.wait_vm('X')
    e('s_barrier')
    stamp()
    e(f's_mul_i32 s{sT0}, s{sT2}, {576 + 16*1152}'); e(f's_add_u32 s{sT0}, s{sT0}, {SCR}')
    e(f's_mul_i32 s{sT2}, s{sT2}, {576 - 16*1152}'); e(f's_add_u32 s{sT2}, s{sT2}, {SCR + 16*1152}')
    for n in range(9):
        e(f's_lshl_b32 s{sT1}, s{sT3}, 6')
        e(f's_add_u32 s{sG0}, s{sT1}, s{sT0}')
        e(f'v_add_u32 {v(vT[n%2])}, s{sG0}, {v(vXr)}')
        e(f's_add_u32 s{sG0}, s{sT1}, s{sT2}')
        e(f'v_add_u32 {v(vT[2+n%2])}, s{sG0}, {v(vXr)}')
        e(f'ds_read_b128 {v(XF+8*n,4)}, {v(vT[n%2])}')
        e(f'ds_read_b128 {v(XF+8*n+4,4)}, {v(vT[2+n%2])}')
        if n < 8:
            e(f's_add_u32 s{sT3}, s{sT3}, 1'); e(f's_cmp_eq_u32 s{sT3}, 9'); e(f's_cselect_b32 s{sT3}, 0, s{sT3}')

    for n in range(9):
        L = LANDS[n % NL]
        e.wait_vm(f'G{n}')
        if n + 6 < 9: q_group(n + 6)
        if n >= 2: issue(2)
        def perms(c):
            F = PFR + 4 * (c % 2)
            sel = sSelHi if c & 1 else sSelLo
            for z in range(4):
                e(f'v_perm_b32 {v(F+z)}, {v(L+2*(2*z+1)+c//2)}, {v(L+2*(2*z)+c//2)}, s{sel}')
        def mf(c):
            F = PFR + 4 * (c % 2)
            for qt in range(2):
                A0 = ACC + 16 * qt + 4 * c
                c0 = '0' if n == 0 else v(A0, 4)
                e(f'v_mfma_f32_16x16x32_bf16 {v(A0,4)}, {v(F,4)}, {v(XF+8*n+4*qt,4)}, {c0}')
        perms(0)
        for c in range(4):
            if c + 1 < 4: perms(c + 1)
            mf(c)
        if n == 2:
            e.wait_lg(0); e('s_barrier')
    stamp()
    e(f's_lshl_b32 s{sT1}, s{sWave}, 12'); e(f's_add_u32 s{sT1}, s{sT1}, {SCR}')
    e(f'v_add_u32 {v(vT[0])}, s{sT1}, {v(vLin)}')
    e(f'v_xor_b32 {v(vT[1])}, 0x1000, {v(vT[0])}')
    assert SCR % 8192 == 0
    for c in range(4):
        e(f'ds_write_b128 {v(vT[0])}, {v(ACC+16+4*c,4)} offset:{c*1024}')
    e.wait_lg(0)
    e('s_barrier')
    RX = 32
    for c in range(4):
        e(f'ds_read_b128 {v(RX+4*c,4)}, {v(vT[1])} offset:{c*1024}')
    e(f'v_and_b32 {v(vT[2])}, 1, {v(vLr)}')
    e(f'v_xor_b32 {v(vT[2])}, 1, {v(vT[2])}')
    e(f'v_lshlrev_b32 {v(vT[2])}, 12, {v(vT[2])}')
    e(f'v_lshrrev_b32 {v(vT[3])}, 5, v0')
    e(f'v_lshl_add_u32 {v(vT[2])}, {v(vT[3])}, 10, {v(vT[2])}')
    e(f'v_lshl_add_u32 {v(vT[2])}, {v(vLc)}, 4, {v(vT[2])}')
    e(f's_lshl_b32 s{sT1}, s{sHH}, 14'); e(f's_add_u32 s{sT1}, s{sT1}, {SCR}')
    e(f'v_add_u32 {v(vT[2])}, s{sT1}, {v(vT[2])}')
    for i in range(16):
        e(f'v_add_f32 {v(ACC+i)}, {v(ACC+i)}, {v(RX+i)}')
    for z in range(8):
        r, c = z // 2, 2 * (z % 2)
        e(f'v_cvt_pk_bf16_f32 {v(RX+z)}, {v(ACC+4*c+r)}, {v(ACC+4*(c+1)+r)}')
    e(f'ds_write_b128 {v(vT[1])}, {v(RX,4)}')
    e(f'ds_write_b128 {v(vT[1])}, {v(RX+4,4)} offset:1024')

    def wo_dma(ck, part):
        if opts.get('nowo'): return
        hh, jb = ck // 2, ck % 2
        with e.only('BC'):
            e(f's_add_u32 m0, s{sW9k}, {SCR + part*3072}')
            e(f's_add_u32 s{sT1}, s{sWOb}, {(128*hh + 32*jb)*1152 + part*3072}')
            for i in range(3):
                e(f'buffer_load_dwordx4 {v(vLin)}, {srd(sWO)}, s{sT1} offen offset:{i*1024}{wo_pol} lds', tag=f'W{ck}')
    def up(u, k): return S0 + 16 * u + 8 + 4 * k
    WF = {0: [W0R + 4*j for j in range(5)],
          1: [64 + 4*j for j in range(5)],
          2: [up(0,0), up(0,1), up(1,0), up(1,1), up(2,0)],
          3: [up(3,0), up(3,1), up(4,0), up(4,1), up(5,0)]}
    def wo_read(ck):
        for j in range(4):
            for hf in range(2):
                e(f'ds_read_b64_tr_b16 {v(WF[ck][j]+2*hf,2)}, {v(vWr)} offset:{hf*18432 + 32*j}')
        for hf in range(2):
            e(f'ds_read_b64_tr_b16 {v(WF[ck][4]+2*hf,2)}, {v(vWx)} offset:{hf*18432}')
    wsched = opts.get('wsched', {0: (1, 2, 3, 4), 1: (5, 6, 7, 9), 2: (10, 11, 12, 14), 3: (15, 16, 17, 19)})
    wo_dma_at = {}; wo_read_at = {}
    for ck, (a0, a1, a2, rd) in wsched.items():
        for part, st in enumerate((a0, a1, a2)): wo_dma_at.setdefault(st, []).append((ck, part))
        wo_read_at[rd] = ck

    def head(step, tiles):
        if tiles:
            with e.only('A'):
                e.wait_vm(*[f'T{n}' for n in tiles])
        if step in wo_read_at:
            with e.only('BC'):
                e.wait_vm(f'W{wo_read_at[step]}')
        e.wait_lg(0)
        e('s_barrier')
    def tail(step):
        issue(opts.get('maxissue', 2))
        for (ck, part) in wo_dma_at.get(step, []): wo_dma(ck, part)

    def xswap(reg, tmp, op):
        e(f'v_mov_b32 {v(tmp)}, {v(reg)}')
        e(f'v_permlane32_swap_b32 {v(reg)}, {v(tmp)}')
        e(f'{op} {v(reg)}, {v(reg)}, {v(tmp)}')

    kcur = [0]
    for u in range(8):
        head(u, [2*u, 2*u+1])
        if u == 0:
            for j in range(8):
                e(f'ds_read_b128 {v(QF+4*j,4)}, {v(vT[2])} offset:{(j//4)*8192 + (j%4)*256}')
            stamp()
        if u >= 1: release([2*u-2, 2*u-1])
        sa, sb = slot_of[2*u] * SLOT, slot_of[2*u+1] * SLOT
        pa, pb = (kcur[0] if u else (0, 0))
        da, db_ = (sa - pa) & 0xffffffff, (sb - pb) & 0xffffffff
        e(f's_cmp_lt_u32 s{sI4}, 2')
        e(f's_mov_b32 s{sT0}, {hex(db_)}')
        e(f's_cmov_b32 s{sT0}, {hex(da)}')
        for j in range(8): e(f'v_add_u32 {v(vKr[j])}, s{sT0}, {v(vKr[j])}')
        kcur[0] = (sa, sb)
        for j in range(8):
            e(f'ds_read_b128 {v(KF+4*j,4)}, {v(vKr[j])}')
        if u in wo_read_at: wo_read(wo_read_at[u])
        if u >= 1:
            Sp = S0 + 16 * (u - 1)
            if u == 1: e(f'v_max3_f32 {v(vM)}, {v(Sp)}, {v(Sp+1)}, {v(Sp+2)}'); st = 3
            else: st = 0
            for i in range(st, 15, 2): e(f'v_max3_f32 {v(vM)}, {v(vM)}, {v(Sp+i)}, {v(Sp+i+1)}')
            if u == 1: e(f'v_max_f32 {v(vM)}, {v(vM)}, {v(Sp+15)}')
        Sb = S0 + 16 * u
        for j in range(8):
            c = '0' if j == 0 else v(Sb, 16)
            e(f'v_mfma_f32_32x32x16_bf16 {v(Sb,16)}, {v(KF+4*j,4)}, {v(QF+4*j,4)}, {c}')
        tail(u)
    Sp = S0 + 16 * 7
    for i in range(0, 16, 2): e(f'v_max3_f32 {v(vM)}, {v(vM)}, {v(Sp+i)}, {v(Sp+i+1)}')
    xswap(vM, vT[0], 'v_max_f32')
    e(f's_lshl_b32 s{sT1}, s{sI4}, 2')
    e(f'v_add_u32 {v(vT[3])}, s{sT1}, {v(vMxA)}')
    e(f'v_mov_b32 {v(vXr)}, {v(vT[3])}')
    e(f'ds_write_b32 {v(vXr)}, {v(vM)}')
    stamp()

    def softmax_parts(u):
        Sb = S0 + 16 * u
        g1 = [f'v_fma_f32 {v(Sb+i)}, {v(Sb+i)}, s{sC}, {v(vNm)}' for i in range(16)] + [f'v_exp_f32 {v(Sb+i)}, {v(Sb+i)}' for i in range(8)]
        g2 = [f'v_exp_f32 {v(Sb+i)}, {v(Sb+i)}' for i in range(8, 16)]
        if u == 0:
            g2 += [f'v_add_f32 {v(vL)}, {v(Sb)}, {v(Sb+1)}'] + [f'v_add_f32 {v(vL)}, {v(vL)}, {v(Sb+i)}' for i in range(2, 8)]
        else:
            g2 += [f'v_add_f32 {v(vL)}, {v(vL)}, {v(Sb+i)}' for i in range(8)]
        g3 = [f'v_add_f32 {v(vL)}, {v(vL)}, {v(Sb+i)}' for i in range(8, 16)]
        g3 += [f'v_cvt_pk_bf16_f32 {v(Sb+i)}, {v(Sb+2*i)}, {v(Sb+2*i+1)}' for i in range(8)]
        return [g1, g2, g3]
    def publish(u, buf):
        Sb = S0 + 16 * u
        e(f'ds_write_b128 {v(vPw)}, {v(Sb,4)} offset:{buf*SLOT}')
        e(f'ds_write_b128 {v(vPw)}, {v(Sb+4,4)} offset:{buf*SLOT + 1024}')

    head(8, [])
    release([14, 15])
    issue(2)
    e(f'ds_read_b128 {v(vT[0],4)}, {v(vMxA)}')
    if 8 in wo_read_at: wo_read(wo_read_at[8])
    e(f'v_max3_f32 {v(vM)}, {v(vT[0])}, {v(vT[1])}, {v(vT[2])}')
    e(f'v_max_f32 {v(vM)}, {v(vM)}, {v(vT[3])}')
    e(f'v_mul_f32 {v(vNm)}, s{sC}, {v(vM)}')
    e(f'v_sub_f32 {v(vNm)}, 0, {v(vNm)}')
    for g in softmax_parts(0):
        for x in g: e(x)
    publish(0, 0)
    tail(8)

    O1, O2 = 84, 92
    FR = [100 + 4*k for k in range(7)]
    RXO = up(6, 0)
    CT = 32
    vcur = [0]
    for t in range(16):
        step = 9 + t; n = 16 + t; p, u = t // 8, t % 8
        if t == 10:
            with e.only('BC'):
                e.wait_vm('OX')
        head(step, [n])
        if t >= 1: release([n - 1])
        off = slot_of[n] * SLOT
        if off + SLOT > 65536 + vcur[0] or off < vcur[0]:
            nb = 0 if off + SLOT <= 65536 else 16384
            e(f'v_add_u32 {v(vVr)}, {hex((nb - vcur[0]) & 0xffffffff)}, {v(vVr)}'); vcur[0] = nb
        off -= vcur[0]
        O = O1 if p == 0 else O2
        buf = t % 2
        fi = [0]
        slots = {}
        def rd(kq):
            a_, b0, b1 = [FR[(fi[0] + k) % 7] for k in range(3)]; fi[0] += 3
            slots[kq] = (a_, b0, b1)
            e(f'ds_read_b64_tr_b16 {v(a_,2)}, {v(vVr)} offset:{off + kq*4096}')
            e(f'ds_read_b64_tr_b16 {v(a_+2,2)}, {v(vVr)} offset:{off + kq*4096 + 1024}')
            e(f'ds_read_b128 {v(b0,4)}, {v(vPr)} offset:{buf*SLOT + kq*2048}')
            e(f'ds_read_b128 {v(b1,4)}, {v(vPr)} offset:{buf*SLOT + kq*2048 + 256}')
        def mf(kq):
            a_, b0, b1 = slots[kq]
            for qt, b_ in enumerate((b0, b1)):
                c = '0' if (u == 0 and kq == 0) else v(O+4*qt, 4)
                e(f'v_mfma_f32_16x16x32_bf16 {v(O+4*qt,4)}, {v(a_,4)}, {v(b_,4)}, {c}')
        parts = softmax_parts(u + 1) if (p == 0 and u < 7) else [[], [], []]
        rd(0); rd(1)
        if t == 7:
            with e.only('C'):
                e(f'v_add_u32 {v(CT)}, {hex(MX)}, {v(vLin)}')
                e(f'ds_read_b128 {v(CT+4,4)}, {v(CT)}')
                e(f'ds_read_b128 {v(CT+8,4)}, {v(CT)} offset:1024')
                e(f'v_lshlrev_b32 {v(CT+1)}, 3, v0')
                e(f'v_max3_f32 {v(CT+2)}, {v(CT+4)}, {v(CT+5)}, {v(CT+6)}')
                e(f'v_max_f32 {v(CT+2)}, {v(CT+2)}, {v(CT+7)}')
                e(f'v_add_f32 {v(CT+3)}, {v(CT+8)}, {v(CT+9)}')
                e(f'v_add_f32 {v(CT+8)}, {v(CT+10)}, {v(CT+11)}')
                e(f'v_add_f32 {v(CT+3)}, {v(CT+3)}, {v(CT+8)}')
                e(f'v_add_u32 {v(CT)}, {hex(ST)}, {v(CT+1)}')
                e(f'ds_write_b64 {v(CT)}, {v(CT+2,2)}')
                e(f's_lshl_b32 s{sT1}, s2, 9'); e(f's_add_u32 s{sT1}, s{sT1}, {hex(WS_STATS)}')
                e(f'buffer_store_dwordx2 {v(CT+2,2)}, {v(CT+1)}, {srd(sWS)}, s{sT1} offen sc1', tag='OX')
        if t == 8:
            with e.only('BC'):
                e(f's_lshl_b32 s{sT1}, s{sI4}, 11'); e(f's_add_u32 s{sT1}, s{sT1}, {OS}')
                e(f'v_add_u32 {v(vT[0])}, s{sT1}, {v(vLin)}')
                e(f'ds_read_b128 {v(CT+4,4)}, {v(vT[0])}')
                e(f'ds_read_b128 {v(CT+8,4)}, {v(vT[0])} offset:1024')
                e(f's_lshl_b32 s{sT1}, s2, 14'); e(f's_add_u32 s{sT1}, s{sT1}, {hex(WS_OX)}')
                e(f's_lshl_b32 s{sT0}, s{sI4}, 11'); e(f's_add_u32 s{sT1}, s{sT1}, s{sT0}')
                e(f'buffer_store_dwordx4 {v(CT+4,4)}, {v(vLin)}, {srd(sWS)}, s{sT1} offen sc1', tag='OX')
                e(f'buffer_store_dwordx4 {v(CT+8,4)}, {v(vLin)}, {srd(sWS)}, s{sT1} offen offset:1024 sc1', tag='OX')
        if t == 10:
            with e.only('C'):
                e(f's_and_b32 s{sT1}, s2, 31'); e(f's_lshl_b32 s{sT1}, 1, s{sT1}')
                e(f'v_mov_b32 {v(CT+4)}, s{sT1}')
                e(f's_lshl_b32 s{sT1}, s{sB}, 2')
                e(f'v_mov_b32 {v(CT+5)}, s{sT1}')
                e(f's_mov_b64 exec, 1')
                e(f'buffer_atomic_add {v(CT+4)}, {v(CT+5)}, {srd(sDBG)}, 0 offen sc1', tag='FL')
                e(f's_mov_b64 exec, -1')
        if t == 13:
            e(f's_xor_b32 s{sT1}, s2, 16'); e(f's_lshl_b32 s{sT1}, s{sT1}, 14'); e(f's_add_u32 s{sT1}, s{sT1}, {hex(WS_OX)}')
            e(f's_lshl_b32 s{sT0}, s{sWave}, 11'); e(f's_add_u32 s{sT1}, s{sT1}, s{sT0}')
            e(f'buffer_load_dwordx4 {v(RXO,4)}, {v(vLin)}, {srd(sWS)}, s{sT1} offen sc1', tag='RX')
            e(f'buffer_load_dwordx4 {v(RXO+4,4)}, {v(vLin)}, {srd(sWS)}, s{sT1} offen offset:1024 sc1', tag='RX')
        if t == 14:
            with e.only('C'):
                e.wait_vm('PS')
                e(f'ds_write_b64 {v(CT)}, {v(CT+2,2)} offset:512')
        if step in wo_read_at: wo_read(wo_read_at[step])
        for x in parts[0]: e(x)
        mf(0); rd(2)
        for x in parts[1]: e(x)
        mf(1); rd(3)
        for x in parts[2]: e(x)
        if t < 15: publish((u + 1) % 8, 1 - buf)
        if t == 6:
            xswap(vL, vT[0], 'v_add_f32')
            e(f'ds_write_b32 {v(vXr)}, {v(vL)} offset:1024')
        if t == 15:
            e(f's_lshl_b32 s{sT1}, s{sHH}, 8'); e(f's_add_u32 s{sT1}, s{sT1}, {ST}')
            e(f'v_lshlrev_b32 {v(vT[0])}, 3, {v(vLc)}')
            e(f'v_add_u32 {v(vT[0])}, s{sT1}, {v(vT[0])}')
            SC = S0
            for qt in range(2):
                e(f'ds_read_b64 {v(SC+16*qt,2)}, {v(vT[0])} offset:{qt*128}')
                e(f'ds_read_b64 {v(SC+16*qt+2,2)}, {v(vT[0])} offset:{qt*128 + 512}')
            for qt in range(2):
                m, l, m2, l2, t0, t1 = [SC + 16*qt + k for k in range(6)]
                e(f'v_max_f32 {v(t0)}, {v(m)}, {v(m2)}')
                e(f'v_sub_f32 {v(m)}, {v(m)}, {v(t0)}'); e(f'v_sub_f32 {v(m2)}, {v(m2)}, {v(t0)}')
                e(f'v_mul_f32 {v(m)}, s{sC}, {v(m)}'); e(f'v_mul_f32 {v(m2)}, s{sC}, {v(m2)}')
                e(f'v_exp_f32 {v(m)}, {v(m)}'); e(f'v_exp_f32 {v(m2)}, {v(m2)}')
                e(f'v_mul_f32 {v(t0)}, {v(l)}, {v(m)}')
                e(f'v_fma_f32 {v(t0)}, {v(l2)}, {v(m2)}, {v(t0)}')
                e(f'v_rcp_f32 {v(t0)}, {v(t0)}')
                e(f'v_mul_f32 {v(m)}, {v(m)}, {v(t0)}'); e(f'v_mul_f32 {v(m2)}, {v(m2)}, {v(t0)}')
        mf(2); mf(3)
        if t == 7:
            with e.only('A'):
                e(f's_lshl_b32 s{sT1}, s{sI4}, 11'); e(f's_add_u32 s{sT1}, s{sT1}, {OS}')
                e(f'v_add_u32 {v(vT[0])}, s{sT1}, {v(vLin)}')
                e(f'ds_write_b128 {v(vT[0])}, {v(O1,4)}')
                e(f'ds_write_b128 {v(vT[0])}, {v(O1+4,4)} offset:1024')
            with e.only('BC'):
                e(f's_lshl_b32 s{sT1}, s2, 14'); e(f's_add_u32 s{sT1}, s{sT1}, {hex(WS_OX)}')
                e(f's_lshl_b32 s{sT0}, s{sWave}, 11'); e(f's_add_u32 s{sT1}, s{sT1}, s{sT0}')
                e(f'buffer_store_dwordx4 {v(O1,4)}, {v(vLin)}, {srd(sWS)}, s{sT1} offen sc1', tag='OX')
                e(f'buffer_store_dwordx4 {v(O1+4,4)}, {v(vLin)}, {srd(sWS)}, s{sT1} offen offset:1024 sc1', tag='OX')
            stamp()
        tail(step)
        if t == 12:
            with e.only('C'):
                lp = e.newlabel('Lpoll'); ld = e.newlabel('Lpolld')
                e(f's_xor_b32 s{sT2}, s2, 16'); e(f's_and_b32 s{sT2}, s{sT2}, 31')
                e(f's_mov_b32 s{sT3}, 0x40000')
                e.label(lp)
                e(f'buffer_load_dword {v(CT+6)}, {v(CT+5)}, {srd(sDBG)}, 0 offen sc1', tag='PL')
                e.wait_vm_all()
                e(f'v_readfirstlane_b32 s{sT1}, {v(CT+6)}')
                e(f's_bitcmp1_b32 s{sT1}, s{sT2}')
                e(f's_cbranch_scc1 {ld}')
                e(f's_sleep 1')
                e(f's_sub_u32 s{sT3}, s{sT3}, 1')
                e(f's_cmp_lg_u32 s{sT3}, 0')
                e(f's_cbranch_scc1 {lp}')
                e.label(ld)
                e(f's_xor_b32 s{sT1}, s2, 16'); e(f's_lshl_b32 s{sT1}, s{sT1}, 9'); e(f's_add_u32 s{sT1}, s{sT1}, {hex(WS_STATS)}')
                e(f'buffer_load_dwordx2 {v(CT+2,2)}, {v(CT+1)}, {srd(sWS)}, s{sT1} offen sc1', tag='PS')
    stamp()
    OI = PB[0]
    e.wait_vm('RX')
    SC = S0
    for qt in range(2):
        for r in range(4):
            e(f'v_mul_f32 {v(RXO+4*qt+r)}, {v(RXO+4*qt+r)}, {v(SC+16*qt+2)}')
    e(f's_lshr_b32 s{sT1}, s{sWave}, 1'); e(f's_lshl_b32 s{sT1}, s{sT1}, 11')
    e(f's_and_b32 s{sT2}, s{sWave}, 1'); e(f's_lshl_b32 s{sT0}, s{sT2}, 3'); e(f's_add_u32 s{sT1}, s{sT1}, s{sT0}'); e(f's_add_u32 s{sT1}, s{sT1}, {OI}')
    e(f'v_add_u32 {v(vT[0])}, s{sT1}, {v(vLin)}')
    e(f'v_add_u32 {v(vT[1])}, {hex(OI)}, {v(vLin)}')
    e(f's_lshl_b32 s{sT1}, s{sT2}, 10')
    e(f'v_add_u32 {v(vT[2])}, s{sT1}, {v(vT[1])}')
    for qt in range(2):
        for r in range(4):
            e(f'v_fma_f32 {v(RXO+4*qt+r)}, {v(O2+4*qt+r)}, {v(SC+16*qt)}, {v(RXO+4*qt+r)}')
        e(f'v_cvt_pk_bf16_f32 {v(CT+2*qt)}, {v(RXO+4*qt)}, {v(RXO+4*qt+1)}')
        e(f'v_cvt_pk_bf16_f32 {v(CT+2*qt+1)}, {v(RXO+4*qt+2)}, {v(RXO+4*qt+3)}')
        e(f'ds_write_b64 {v(vT[0])}, {v(CT+2*qt,2)} offset:{qt*1024}')
    e.wait_lg(0)
    e('s_barrier')
    lo = lambda k: S0 + 16 * (k // 2) + 4 * (k % 2)
    for ck in range(4):
        for qt in range(2):
            e(f'ds_read_b128 {v(lo(2*ck+qt),4)}, {v(vT[1])} offset:{ck*2048 + qt*1024}')
    for ck in range(4):
        e(f'ds_read_b128 {v(lo(8+ck),4)}, {v(vT[2])} offset:{ck*2048}')
    e(f's_mul_i32 s{sT1}, s2, {PART_BYTES}')
    e(f's_lshr_b32 s{sT3}, s{sWave}, 1'); e(f's_lshl_b32 s{sT3}, s{sT3}, 10'); e(f's_add_u32 s{sT3}, s{sT3}, s{sT0}')
    e(f's_add_u32 s{sT3}, s{sT3}, s{sT1}'); e(f's_add_u32 s{sT3}, s{sT3}, 32768')
    e(f's_lshl_b32 s{sT2}, s{sWave}, 12'); e(f's_add_u32 s{sT1}, s{sT1}, s{sT2}')
    AC = 84
    DD = [120, 124, 32, 36]
    for ck in range(4):
        for j in range(4):
            for qt in range(2):
                A0 = AC + 8*j + 4*qt
                c = '0' if ck == 0 else v(A0, 4)
                e(f'v_mfma_f32_16x16x32_bf16 {v(A0,4)}, {v(WF[ck][j],4)}, {v(lo(2*ck+qt),4)}, {c}')
        c = '0' if ck == 0 else v(AC+32, 4)
        e(f'v_mfma_f32_16x16x32_bf16 {v(AC+32,4)}, {v(WF[ck][4],4)}, {v(lo(8+ck),4)}, {c}')
    for j in range(4):
        D = DD[j]
        for qt in range(2):
            A0 = AC + 8*j + 4*qt
            e(f'v_cvt_pk_bf16_f32 {v(D+2*qt)}, {v(A0)}, {v(A0+1)}')
            e(f'v_cvt_pk_bf16_f32 {v(D+2*qt+1)}, {v(A0+2)}, {v(A0+3)}')
        e(f'buffer_store_dwordx4 {v(D,4)}, {v(vLin)}, {srd(sWS)}, s{sT1} offen offset:{j*1024}{st_pol}', tag='OUT')
    e(f'v_cvt_pk_bf16_f32 {v(40)}, {v(AC+32)}, {v(AC+33)}')
    e(f'v_cvt_pk_bf16_f32 {v(41)}, {v(AC+34)}, {v(AC+35)}')
    e(f'buffer_store_dwordx2 {v(40,2)}, {v(vLin)}, {srd(sWS)}, s{sT3} offen{st_pol}', tag='OUT')
    if stamps:
        stamp()
        e.wait_vm_all()
        stamp()
        e(f's_cmp_lg_u32 s{sWave}, 0'); e('s_cbranch_scc1 L_end1')
        e(f's_lshl_b32 s{sT1}, s2, 7'); e(f's_add_u32 s{sT1}, s{sT1}, {hex(WS_STAMP)}')
        e('s_mov_b64 exec, 1')
        e(f'v_mov_b32 {v(vT[2])}, 0')
        for i in range(16):
            if i < nstamp[0]:
                e(f'v_mov_b32 {v(vT[0])}, s{sStamp+2*i}'); e(f'v_mov_b32 {v(vT[1])}, s{sStamp+2*i+1}')
            else:
                e(f'v_mov_b32 {v(vT[0])}, 0'); e(f'v_mov_b32 {v(vT[1])}, 0')
            e(f'buffer_store_dwordx2 {v(vT[0],2)}, {v(vT[2])}, {srd(sWS)}, s{sT1} offen offset:{8*i}')
            e.nop(2)
    e.label('L_end1')
    e('s_endpgm')
    k1_lines = e.lines
    n1 = e.ninst

    e = Emitter(roles=('A',))
    e.raw(f'.globl {K2}'); e.raw('.p2align 8'); e.raw(f'.type {K2},@function'); e.label(K2)
    e('s_cmp_ge_u32 s2, 288')
    e('s_cbranch_scc1 L_end2')
    e('s_load_dwordx2 s[4:5], s[0:1], 40')
    e('s_load_dwordx2 s[6:7], s[0:1], 56')
    e('s_mul_i32 s16, s2, 1821'); e('s_lshr_b32 s16, s16, 16')
    e('s_mul_i32 s17, s16, 36'); e('s_sub_u32 s17, s2, s17')
    e('v_lshrrev_b32 v1, 6, v0')
    e('v_and_b32 v0, 63, v0')
    e('v_readfirstlane_b32 s18, v1')
    e('v_lshlrev_b32 v2, 4, v0')
    e(f's_mul_i32 s19, s16, {32*PART_BYTES}')
    e('s_lshl_b32 s20, s17, 10'); e('s_add_u32 s19, s19, s20')
    e(f's_mul_i32 s20, s18, {8*PART_BYTES}'); e('s_add_u32 s19, s19, s20')
    e.wait_lg(0)
    e('s_mov_b32 s8, s6'); e('s_mov_b32 s9, s7'); e(f's_mov_b32 s10, {256*PART_BYTES}'); e('s_mov_b32 s11, 0x20000')
    e('s_mov_b32 s12, s4'); e('s_mov_b32 s13, s5'); e(f's_mov_b32 s14, {256*1152}'); e('s_mov_b32 s15, 0x20000')
    for i in range(8):
        e(f'buffer_load_dwordx4 v[{8+4*i}:{11+4*i}], v2, s[8:11], s19 offen{k2_pol}', tag=f'L{i}')
        if i < 7: e(f's_add_u32 s19, s19, {PART_BYTES}')
    e('s_mov_b32 s21, 0xffff0000')
    for i in range(8):
        e.wait_vm(f'L{i}')
        for z in range(4):
            r = 8 + 4 * i + z
            if i == 0:
                e(f'v_lshlrev_b32 v{40+2*z}, 16, v{r}')
                e(f'v_and_b32 v{41+2*z}, s21, v{r}')
            else:
                e(f'v_lshlrev_b32 v48, 16, v{r}')
                e(f'v_and_b32 v49, s21, v{r}')
                e(f'v_add_f32 v{40+2*z}, v{40+2*z}, v48')
                e(f'v_add_f32 v{41+2*z}, v{41+2*z}, v49')
    e('s_lshl_b32 s20, s18, 11')
    e('v_add_u32 v3, s20, v2')
    e('ds_write_b128 v3, v[40:43]')
    e('ds_write_b128 v3, v[44:47] offset:1024')
    e.wait_lg(0)
    e('s_barrier')
    e('s_cmp_lg_u32 s18, 0'); e('s_cbranch_scc1 L_end2')
    for w in range(1, 4):
        e(f'ds_read_b128 v[{8*w}:{8*w+3}], v2 offset:{w*2048}')
        e(f'ds_read_b128 v[{8*w+4}:{8*w+7}], v2 offset:{w*2048+1024}')
    e('v_and_b32 v4, 15, v0'); e('v_lshrrev_b32 v5, 4, v0')
    e('s_movk_i32 s20, 1152')
    e('v_mul_lo_u32 v4, v4, s20')
    e('v_lshl_add_u32 v4, v5, 3, v4')
    e(f's_mul_i32 s19, s16, {32*1152}'); e('s_lshl_b32 s20, s17, 5'); e('s_add_u32 s19, s19, s20')
    e(f's_add_u32 s20, s19, {16*1152}')
    for w in range(1, 4):
        for z in range(8):
            e(f'v_add_f32 v{40+z}, v{40+z}, v{8*w+z}')
    for z in range(4):
        e(f'v_cvt_pk_bf16_f32 v{32+z}, v{40+2*z}, v{41+2*z}')
    e('buffer_store_dwordx2 v[32:33], v4, s[12:15], s19 offen')
    e('buffer_store_dwordx2 v[34:35], v4, s[12:15], s20 offen')
    e.label('L_end2')
    e('s_endpgm')
    k2_lines = e.lines

    hdr = open('standalone__sliding_block_cached__sampling.s.ref').read().split('\n')
    hdr = [l for l in hdr if l.startswith(';') and '@launch' not in l and 'Override' not in l and 'grid=ceil' not in l]
    out = hdr + [
        f'; @launch kernel={K1} grid=(256,1,1) block=(512,1,1) lds={LDS_BYTES}',
        f'; @launch kernel={K2} grid=(288,1,1) block=(256,1,1) lds=8192',
        '.amdgcn_target "amdgcn-amd-amdhsa--gfx950"', '.text'] + k1_lines + k2_lines
    def kd(name, nv, ns, acc):
        return ['.section .rodata,"a"', '.p2align 6', f'.amdhsa_kernel {name}',
                f'  .amdhsa_next_free_vgpr {nv}', f'  .amdhsa_next_free_sgpr {ns}', f'  .amdhsa_accum_offset {acc}',
                '  .amdhsa_group_segment_fixed_size 0', '  .amdhsa_kernarg_size 64', '  .amdhsa_user_sgpr_count 2',
                '  .amdhsa_user_sgpr_kernarg_segment_ptr 1', '  .amdhsa_system_sgpr_workgroup_id_x 1', '.end_amdhsa_kernel']
    out += kd(K1, 256, 102, 256) + kd(K2, 56, 32, 56)
    print('K1 instrs', n1, 'slots', slot_of, file=sys.stderr)
    return '\n'.join(out) + '\n'

if __name__ == '__main__':
    E = 'exp/'
    open(E + 'v4.s', 'w').write(gen({}))
    open(E + 'v4s.s', 'w').write(gen({'stamps': True}))
    open(E + 'v4a.s', 'w').write(gen({'wo_pol': ' nt'}))
    open(E + 'v4b.s', 'w').write(gen({'wo_pol': ' nt', 'x_pol': ' nt'}))
    open(E + 'v4c.s', 'w').write(gen({'wo_pol': ' nt', 'x_pol': ' nt', 'wq_pol': ' nt'}))
    open(E + 'v4cs.s', 'w').write(gen({'wo_pol': ' nt', 'x_pol': ' nt', 'wq_pol': ' nt', 'stamps': True}))
    open(E + 'v4bs.s', 'w').write(gen({'wo_pol': ' nt', 'x_pol': ' nt', 'stamps': True}))
```

```python
import sys, math, struct
from emit import Emitter

K1 = "attn_kernel"
K2 = "reduce_kernel"

SLOT = 16384
NSLOT = 7
SCR = NSLOT * SLOT
MX = SCR + 36864
LS = MX + 1024
TOK = LS + 1024
LDS_BYTES = TOK + 64
PB = [5 * SLOT, 6 * SLOT]
WS_EPOCH = 0x1000000
WS_OX = 0x1100000
WS_STAMP = 0x20000000
PART_BYTES = 36864
NW, NK, NV = 18, 16, 16
TK, TV, TEND = NW, NW + NK, NW + NK + NV

def f32bits(x):
    return struct.unpack('<I', struct.pack('<f', x))[0]

def gen_k2(k2_pol):
    e = Emitter(roles=('A',))
    e.raw(f'.globl {K2}'); e.raw('.p2align 8'); e.raw(f'.type {K2},@function'); e.label(K2)
    e('s_cmp_ge_u32 s2, 288')
    e('s_cbranch_scc1 L_end2')
    e('s_load_dwordx2 s[4:5], s[0:1], 40')
    e('s_load_dwordx2 s[6:7], s[0:1], 56')
    e('s_mul_i32 s16, s2, 1821'); e('s_lshr_b32 s16, s16, 16')
    e('s_mul_i32 s17, s16, 36'); e('s_sub_u32 s17, s2, s17')
    e('v_lshrrev_b32 v1, 6, v0')
    e('v_and_b32 v0, 63, v0')
    e('v_readfirstlane_b32 s18, v1')
    e('v_lshlrev_b32 v2, 4, v0')
    e(f's_mul_i32 s19, s16, {32*PART_BYTES}')
    e('s_lshl_b32 s20, s17, 10'); e('s_add_u32 s19, s19, s20')
    e(f's_mul_i32 s20, s18, {8*PART_BYTES}'); e('s_add_u32 s19, s19, s20')
    e.wait_lg(0)
    e('s_mov_b32 s8, s6'); e('s_mov_b32 s9, s7'); e(f's_mov_b32 s10, {256*PART_BYTES}'); e('s_mov_b32 s11, 0x20000')
    e('s_mov_b32 s12, s4'); e('s_mov_b32 s13, s5'); e(f's_mov_b32 s14, {256*1152}'); e('s_mov_b32 s15, 0x20000')
    for i in range(8):
        e(f'buffer_load_dwordx4 v[{8+4*i}:{11+4*i}], v2, s[8:11], s19 offen{k2_pol}', tag=f'L{i}')
        if i < 7: e(f's_add_u32 s19, s19, {PART_BYTES}')
    e('s_mov_b32 s21, 0xffff0000')
    for i in range(8):
        e.wait_vm(f'L{i}')
        for z in range(4):
            r = 8 + 4 * i + z
            if i == 0:
                e(f'v_lshlrev_b32 v{40+2*z}, 16, v{r}')
                e(f'v_and_b32 v{41+2*z}, s21, v{r}')
            else:
                e(f'v_lshlrev_b32 v48, 16, v{r}')
                e(f'v_and_b32 v49, s21, v{r}')
                e(f'v_add_f32 v{40+2*z}, v{40+2*z}, v48')
                e(f'v_add_f32 v{41+2*z}, v{41+2*z}, v49')
    e('s_lshl_b32 s20, s18, 11')
    e('v_add_u32 v3, s20, v2')
    e('ds_write_b128 v3, v[40:43]')
    e('ds_write_b128 v3, v[44:47] offset:1024')
    e.wait_lg(0)
    e('s_barrier')
    e('s_cmp_lg_u32 s18, 0'); e('s_cbranch_scc1 L_end2')
    for w in range(1, 4):
        e(f'ds_read_b128 v[{8*w}:{8*w+3}], v2 offset:{w*2048}')
        e(f'ds_read_b128 v[{8*w+4}:{8*w+7}], v2 offset:{w*2048+1024}')
    e('v_and_b32 v4, 15, v0'); e('v_lshrrev_b32 v5, 4, v0')
    e('s_movk_i32 s20, 1152')
    e('v_mul_lo_u32 v4, v4, s20')
    e('v_lshl_add_u32 v4, v5, 3, v4')
    e(f's_mul_i32 s19, s16, {32*1152}'); e('s_lshl_b32 s20, s17, 5'); e('s_add_u32 s19, s19, s20')
    e(f's_add_u32 s20, s19, {16*1152}')
    for w in range(1, 4):
        for z in range(8):
            e(f'v_add_f32 v{40+z}, v{40+z}, v{8*w+z}')
    for z in range(4):
        e(f'v_cvt_pk_bf16_f32 v{32+z}, v{40+2*z}, v{41+2*z}')
    e('buffer_store_dwordx2 v[32:33], v4, s[12:15], s19 offen')
    e('buffer_store_dwordx2 v[34:35], v4, s[12:15], s20 offen')
    e.label('L_end2')
    e('s_endpgm')
    return e.lines

def gen(opts):
    stamps = opts.get('stamps', False)
    st_pol = opts.get('st_pol', ''); k2_pol = opts.get('k2_pol', '')
    wq_pol = opts.get('wq_pol', ''); wo_pol = opts.get('wo_pol', ''); x_pol = opts.get('x_pol', '')
    e = Emitter(roles=('A', 'B', 'C'))
    sK, sV, sWQ, sX, sWO, sWS, sDBG = 20, 24, 28, 32, 36, 40, 44
    sWave, sHkv, sB, sSp = 48, 49, 50, 51
    sW4k, sT0, sT1, sT2, sT3 = 52, 53, 54, 55, 56
    sWQb, sWOb, sKc = 57, 58, 59
    sC = 60
    sKs, sG0, sVb, sW9k = 62, 63, 64, 65
    sStamp = 66
    sI4, sHH = 98, 99
    nstamp = [0]
    srd = lambda n: f's[{n}:{n+3}]'
    e.role_cond[frozenset('A')] = (f's_cmp_lt_u32 s{sWave}, 4', 's_cbranch_scc0')
    e.role_cond[frozenset('BC')] = (f's_cmp_lt_u32 s{sWave}, 4', 's_cbranch_scc1')
    e.role_cond[frozenset('C')] = (f's_cmp_eq_u32 s{sWave}, 7', 's_cbranch_scc0')
    e.role_cond[frozenset('AB')] = (f's_cmp_eq_u32 s{sWave}, 7', 's_cbranch_scc1')
    def stamp():
        if stamps:
            i = nstamp[0]; nstamp[0] += 1
            assert i < 16
            e.wait_lg(0)
            e(f's_memrealtime s[{sStamp+2*i}:{sStamp+2*i+1}]')
            e.wait_lg(0)
    v = lambda n, c=1: f'v{n}' if c == 1 else f'v[{n}:{n+c-1}]'
    vLin, vLc, vLr = 1, 2, 3
    vKd = [4, 5, 6, 7]; vVd = 8; vKr = list(range(9, 17))
    vVr = 17; vPr = 18; vPw = 19; vWr = 20; vWx = 21
    vL = 22
    vNm = 24; vM = 25; vMxA = 26; vMo = 27
    vT = [28, 29, 30, 31]
    S0 = 128; QF = 96; KF = 64; W0R = 44
    vWd = [128, 129]; vXd = [130, 131]; vQr = [132, 133]; vXb = [134, 135, 136, 137]; vXa = [138, 139, 140, 141]
    vCS = 142
    QA = 160; QB = 176; QACC = 192
    TK0 = 32

    e.raw(f'.globl {K1}'); e.raw('.p2align 8'); e.raw(f'.type {K1},@function'); e.label(K1)
    e('s_cmp_ge_u32 s2, 256')
    e('s_cbranch_scc1 L_end1')
    e('s_load_dwordx16 s[4:19], s[0:1], 0')
    if stamps:
        e(f's_memrealtime s[{sStamp}:{sStamp+1}]'); nstamp[0] = 1
    e(f'v_lshrrev_b32 {v(vT[0])}, 6, v0')
    e(f'v_and_b32 v0, 63, v0')
    e(f'v_readfirstlane_b32 s{sWave}, {v(vT[0])}')
    e(f'v_lshlrev_b32 {v(vLin)}, 4, v0')
    e(f's_and_b32 s{sHkv}, s2, 7'); e(f's_lshl_b32 s{sHkv}, s{sHkv}, 1')
    e(f's_bfe_u32 s{sT0}, s2, 0x10003'); e(f's_or_b32 s{sHkv}, s{sHkv}, s{sT0}')
    e(f's_lshr_b32 s{sB}, s2, 5')
    e(f'v_lshrrev_b32 {v(vT[0])}, 5, v0')
    e(f'v_and_b32 {v(vT[1])}, 31, v0')
    e(f'v_lshlrev_b32 {v(vT[2])}, 2, {v(vT[0])}')
    e(f'v_xor_b32 {v(vT[1])}, {v(vT[1])}, {v(vT[2])}')
    e(f'v_lshlrev_b32 {v(vT[1])}, 4, {v(vT[1])}')
    e(f'v_lshl_add_u32 {v(vWd[0])}, {v(vT[0])}, 13, {v(vT[1])}')
    e(f'v_xor_b32 {v(vWd[1])}, 0x80, {v(vWd[0])}')
    e(f's_and_b32 s{sI4}, s{sWave}, 3')
    e(f'v_lshrrev_b32 {v(vT[0])}, 3, v0')
    e(f'v_lshrrev_b32 {v(vT[1])}, 4, v0')
    e(f's_and_b32 s{sT1}, s{sWave}, 1'); e(f's_lshl_b32 s{sT1}, s{sT1}, 2')
    e(f'v_or_b32 {v(vT[1])}, s{sT1}, {v(vT[1])}')
    e(f'v_and_b32 {v(vT[2])}, 7, v0')
    e(f'v_xor_b32 {v(vT[1])}, {v(vT[1])}, {v(vT[2])}')
    e(f's_movk_i32 s{sT1}, 1152')
    e(f'v_mul_lo_u32 {v(vT[0])}, {v(vT[0])}, s{sT1}')
    e(f'v_lshl_add_u32 {v(vXd[0])}, {v(vT[1])}, 4, {v(vT[0])}')
    e(f's_lshl_b32 s{sW4k}, s{sI4}, 12')
    e(f's_lshl_b32 s{sWQb}, s{sI4}, 16'); e(f's_lshl_b32 s{sT1}, s{sHkv}, 9'); e(f's_add_u32 s{sWQb}, s{sWQb}, s{sT1}')
    e(f's_lshr_b32 s{sKs}, s2, 4')
    e(f's_cmp_ge_u32 s{sKs}, 9'); e(f's_cselect_b32 s{sT1}, 9, 0'); e(f's_sub_u32 s{sKs}, s{sKs}, s{sT1}')
    if not opts.get('rot', True): e(f's_mov_b32 s{sKs}, 0')
    e(f's_mov_b32 s{sKc}, s{sKs}')
    e(f's_mul_i32 s{sW9k}, s{sI4}, 9216')
    e.wait_lg(0)
    e(f's_mov_b32 s{sWQ}, s10'); e(f's_mov_b32 s{sWQ+1}, s11'); e(f's_mov_b32 s{sWQ+2}, {576*8192}'); e(f's_mov_b32 s{sWQ+3}, 0x20000')
    e(f's_mov_b32 s{sX}, s4'); e(f's_mov_b32 s{sX+1}, s5'); e(f's_mov_b32 s{sX+2}, {256*1152}'); e(f's_mov_b32 s{sX+3}, 0x20000')

    slot_of = {}
    free = list(range(NSLOT))
    nxt = [0]
    def dma_tile_body(n):
        slot = slot_of[n]
        e(f's_add_u32 m0, s{sW4k}, {slot*SLOT}')
        if n < TK:
            if n % 2 == 0:
                e(f's_lshl_b32 s{sG0}, s{sKs}, 19'); e(f's_add_u32 s{sG0}, s{sG0}, s{sWQb}')
            else:
                e(f's_add_u32 s{sG0}, s{sG0}, {32*8192 - 3*(16384-1024)}')
            for i in range(4):
                if i: e(f's_add_u32 s{sG0}, s{sG0}, {16384-1024}')
                e(f'buffer_load_dwordx4 {v(vWd[i&1])}, {srd(sWQ)}, s{sG0} offen offset:{i*1024}{wq_pol} lds', tag=f'T{n}')
            if n % 2 == 1 and n < TK - 1:
                e(f's_add_u32 s{sKs}, s{sKs}, 1'); e(f's_cmp_eq_u32 s{sKs}, 9'); e(f's_cselect_b32 s{sKs}, 0, s{sKs}')
        elif opts.get('nokv'):
            pass
        elif n < TV:
            e(f's_add_u32 s{sT1}, s{sW4k}, {(n-TK)*SLOT}')
            for i in range(4):
                e(f'buffer_load_dwordx4 {v(vKd[i])}, {srd(sK)}, s{sT1} offen offset:{i*1024} nt lds', tag=f'T{n}')
        else:
            p, u = (n - TV) // 8, (n - TV) % 8
            if p == 0: e(f's_add_u32 s{sT1}, s{sVb}, {u*32768}')
            else:
                e(f's_xor_b32 s{sT1}, s{sVb}, 0x80'); e(f's_add_u32 s{sT1}, s{sT1}, {u*32768}')
            for i in range(4):
                if i: e(f's_add_u32 s{sT1}, s{sT1}, 1024')
                e(f'buffer_load_dwordx4 {v(vVd)}, {srd(sV)}, s{sT1} offen offset:{i*1024} nt lds', tag=f'T{n}')
    def issue(maxn):
        todo = []
        while nxt[0] < TEND and len(todo) < maxn:
            n = nxt[0]
            cand = [s for s in free if n < TV or s < 5]
            if not cand: break
            s = cand[0] if n >= TV else max(cand)
            free.remove(s); slot_of[n] = s; todo.append(n); nxt[0] += 1
        if todo:
            with e.only('A'):
                for n in todo: dma_tile_body(n)
    def release(ns):
        for n in ns: free.append(slot_of[n])
        free.sort()

    issue(opts.get('w0', 2))
    with e.only('BC'):
        e(f's_mul_i32 s{sT1}, s{sB}, 36864'); e(f's_add_u32 s{sT1}, s{sT1}, s{sW9k}')
        e(f's_lshl_b32 s{sT0}, s{sI4}, 10')
        for cg in range(9):
            e(f's_add_u32 m0, s{sT0}, {SCR + cg*4096 - cg*128}')
            e(f'buffer_load_dwordx4 {v(vXd[0])}, {srd(sX)}, s{sT1} offen offset:{cg*128}{x_pol} lds', tag='X')
    issue(opts.get('w1', 5))

    e(f'v_and_b32 {v(vLc)}, 15, v0')
    e(f'v_lshrrev_b32 {v(vLr)}, 4, v0')
    e(f's_lshr_b32 s{sHH}, s{sWave}, 2')
    e(f's_bfe_u32 s{sSp}, s2, 0x10004')
    e(f's_mov_b32 s{sWS}, s18'); e(f's_mov_b32 s{sWS+1}, s19'); e(f's_mov_b32 s{sWS+2}, 0x30000000'); e(f's_mov_b32 s{sWS+3}, 0x20000')
    e(f's_mov_b32 s{sDBG}, s16'); e(f's_mov_b32 s{sDBG+1}, s17'); e(f's_mov_b32 s{sDBG+2}, 256'); e(f's_mov_b32 s{sDBG+3}, 0x20000')
    with e.only('C'):
        e(f'v_mov_b32 {v(TK0)}, {hex(WS_EPOCH)}')
        e(f'buffer_load_dword {v(TK0+1)}, {v(TK0)}, {srd(sWS)}, 0 offen sc1', tag='EP')
    e(f'v_lshrrev_b32 {v(vT[0])}, 2, {v(vLc)}')
    e(f'v_xor_b32 {v(vT[1])}, s{sWave}, {v(vT[0])}')
    e(f'v_lshlrev_b32 {v(vT[1])}, 6, {v(vT[1])}')
    e(f'v_lshl_add_u32 {v(vT[1])}, {v(vT[0])}, 9, {v(vT[1])}')
    e(f'v_lshrrev_b32 {v(vT[2])}, 5, v0')
    e(f'v_lshl_add_u32 {v(vT[1])}, {v(vT[2])}, 12, {v(vT[1])}')
    e(f'v_and_b32 {v(vT[3])}, 1, {v(vLr)}')
    e(f'v_lshl_add_u32 {v(vT[1])}, {v(vT[3])}, 5, {v(vT[1])}')
    e(f'v_and_b32 {v(vT[3])}, 3, {v(vLc)}')
    e(f'v_lshl_add_u32 {v(vQr[0])}, {v(vT[3])}, 3, {v(vT[1])}')
    e(f'v_add_u32 {v(vQr[1])}, 0x10000, {v(vQr[0])}')
    e(f'v_and_b32 {v(vT[0])}, 31, v0')
    e(f'v_bfe_u32 {v(vT[1])}, v0, 1, 3')
    e(f'v_xor_b32 {v(vT[1])}, {v(vT[1])}, {v(vT[2])}')
    e(f'v_lshlrev_b32 {v(vT[1])}, 4, {v(vT[1])}')
    e(f'v_lshl_add_u32 {v(vXb[0])}, {v(vT[0])}, 7, {v(vT[1])}')
    for k in range(1, 4): e(f'v_xor_b32 {v(vXb[k])}, {32*k}, {v(vXb[0])}')
    e(f's_lshl_b32 s{sT0}, s{sB}, 4'); e(f's_add_u32 s{sT0}, s{sT0}, s{sHkv}'); e(f's_lshl_b32 s{sT0}, s{sT0}, 21')
    e(f's_lshl_b32 s{sT1}, s{sSp}, 18'); e(f's_add_u32 s{sT0}, s{sT0}, s{sT1}'); e(f's_add_u32 s{sT0}, s{sT0}, {6144*256}')
    e(f's_add_u32 s{sK}, s6, s{sT0}'); e(f's_addc_u32 s{sK+1}, s7, 0'); e(f's_mov_b32 s{sK+2}, 0x40000'); e(f's_mov_b32 s{sK+3}, 0x20000')
    e(f's_add_u32 s{sV}, s8, s{sT0}'); e(f's_addc_u32 s{sV+1}, s9, 0'); e(f's_mov_b32 s{sV+2}, 0x40000'); e(f's_mov_b32 s{sV+3}, 0x20000')
    e(f's_mov_b32 s{sWO}, s12'); e(f's_mov_b32 s{sWO+1}, s13'); e(f's_mov_b32 s{sWO+2}, {4096*1152}'); e(f's_mov_b32 s{sWO+3}, 0x20000')
    e(f's_mov_b32 s{sC}, {hex(f32bits(math.log2(math.e) / math.sqrt(128.0)))}'); e(f's_mov_b32 s{sC+1}, s{sC}')
    e(f's_lshl_b32 s{sT1}, s{sHkv}, 2'); e(f's_add_u32 s{sT1}, s{sT1}, s{sSp}')
    e(f's_mul_i32 s{sWOb}, s{sT1}, {64*1152}'); e(f's_add_u32 s{sWOb}, s{sWOb}, s{sW9k}')
    e(f's_xor_b32 s{sT1}, s{sSp}, 1'); e(f's_lshl_b32 s{sT1}, s{sT1}, 7')
    e(f's_lshl_b32 s{sVb}, s{sI4}, 13'); e(f's_add_u32 s{sVb}, s{sVb}, s{sT1}')
    e(f'v_xor_b32 {v(vT[0])}, {v(vLr)}, {v(vLc)}')
    e(f'v_lshlrev_b32 {v(vT[0])}, 4, {v(vT[0])}')
    e(f'v_lshl_add_u32 {v(vKd[0])}, {v(vLr)}, 8, {v(vT[0])}')
    for i in range(1, 4): e(f'v_xor_b32 {v(vKd[i])}, {64*i}, {v(vKd[0])}')

    def late_setup():
        e(f'v_lshrrev_b32 {v(vT[0])}, 3, v0')
        e(f'v_and_b32 {v(vT[1])}, 6, {v(vT[0])}')
        e(f'v_and_b32 {v(vT[2])}, 7, v0')
        e(f'v_xor_b32 {v(vT[1])}, {v(vT[1])}, {v(vT[2])}')
        e(f'v_lshlrev_b32 {v(vT[1])}, 4, {v(vT[1])}')
        e(f'v_lshl_add_u32 {v(vVd)}, {v(vT[0])}, 8, {v(vT[1])}')
        e(f'v_lshrrev_b32 {v(vT[0])}, 5, v0')
        e(f'v_xor_b32 {v(vT[0])}, {v(vT[0])}, {v(vLc)}')
        e(f'v_lshlrev_b32 {v(vT[0])}, 4, {v(vT[0])}')
        e(f'v_and_b32 {v(vT[1])}, 31, v0')
        e(f'v_lshl_add_u32 {v(vT[0])}, {v(vT[1])}, 8, {v(vT[0])}')
        e(f's_and_b32 s{sT1}, s{sWave}, 1'); e(f's_lshl_b32 s{sT1}, s{sT1}, 13')
        e(f'v_add_u32 {v(vKr[0])}, s{sT1}, {v(vT[0])}')
        for j in range(1, 8): e(f'v_xor_b32 {v(vKr[j])}, {32*j}, {v(vKr[0])}')
        e(f'v_lshrrev_b32 {v(vT[0])}, 1, {v(vLr)}')
        e(f'v_lshlrev_b32 {v(vT[0])}, 4, {v(vT[0])}')
        e(f'v_and_b32 {v(vT[1])}, 1, {v(vLr)}')
        e(f'v_lshl_add_u32 {v(vT[0])}, {v(vT[1])}, 2, {v(vT[0])}')
        e(f'v_lshrrev_b32 {v(vT[1])}, 2, {v(vLc)}')
        e(f'v_add_u32 {v(vT[0])}, {v(vT[0])}, {v(vT[1])}')
        e(f'v_bfe_u32 {v(vT[1])}, {v(vT[0])}, 1, 2')
        e(f'v_xor_b32 {v(vT[1])}, s{sI4}, {v(vT[1])}')
        e(f'v_lshlrev_b32 {v(vT[1])}, 5, {v(vT[1])}')
        e(f'v_lshl_add_u32 {v(vT[1])}, {v(vT[0])}, 7, {v(vT[1])}')
        e(f'v_and_b32 {v(vT[2])}, 3, {v(vLc)}')
        e(f'v_lshl_add_u32 {v(vVr)}, {v(vT[2])}, 3, {v(vT[1])}')
        e(f's_lshl_b32 s{sT1}, s{sWave}, 11'); e(f's_add_u32 s{sT1}, s{sT1}, {PB[0]}')
        e(f'v_add_u32 {v(vPw)}, s{sT1}, {v(vLin)}')
        e(f'v_lshlrev_b32 {v(vT[1])}, 9, {v(vLr)}')
        e(f'v_lshl_add_u32 {v(vT[1])}, {v(vLc)}, 4, {v(vT[1])}')
        e(f's_lshl_b32 s{sT1}, s{sHH}, 13'); e(f's_add_u32 s{sT1}, s{sT1}, {PB[0]}')
        e(f'v_add_u32 {v(vPr)}, s{sT1}, {v(vT[1])}')
        e(f'v_lshrrev_b32 {v(vT[0])}, 2, v0')
        e(f's_movk_i32 s{sT1}, 1152')
        e(f'v_mul_lo_u32 {v(vT[0])}, {v(vT[0])}, s{sT1}')
        e(f'v_lshl_add_u32 {v(vT[0])}, {v(vT[2])}, 3, {v(vT[0])}')
        e(f's_lshl_b32 s{sT1}, s{sWave}, 7'); e(f's_add_u32 s{sT1}, s{sT1}, {SCR}')
        e(f'v_add_u32 {v(vWr)}, s{sT1}, {v(vT[0])}')
        e(f's_lshr_b32 s{sT1}, s{sWave}, 1'); e(f's_lshl_b32 s{sT1}, s{sT1}, 5'); e(f's_add_u32 s{sT1}, s{sT1}, {SCR + 1024}')
        e(f'v_add_u32 {v(vWx)}, s{sT1}, {v(vT[0])}')
        e(f'v_and_b32 {v(vT[0])}, 31, v0')
        e(f's_lshl_b32 s{sT1}, s{sHH}, 9'); e(f's_add_u32 s{sT1}, s{sT1}, {MX}')
        e(f'v_lshlrev_b32 {v(vT[0])}, 4, {v(vT[0])}')
        e(f'v_add_u32 {v(vMxA)}, s{sT1}, {v(vT[0])}')
        e(f's_lshl_b32 s{sT1}, s{sI4}, 2')
        e(f'v_add_u32 {v(vMo)}, s{sT1}, {v(vMxA)}')
    late_setup()

    QI = None
    for q in range(9):
        with e.only('A'):
            e.wait_vm(f'T{2*q}', f'T{2*q+1}')
        if q == 0:
            with e.only('BC'):
                e.wait_vm('X')
        e.wait_lg(0)
        e('s_barrier')
        if q in opts.get('qst', (0,)): stamp()
        if q >= 1:
            release([2*q-2, 2*q-1])
            if q == 8:
                QI = free.pop(0) * SLOT
            issue(2)
        e(f's_lshl_b32 s{sT1}, s{sKc}, 12'); e(f's_add_u32 s{sT1}, s{sT1}, {SCR}')
        for k in range(4): e(f'v_add_u32 {v(vXa[k])}, s{sT1}, {v(vXb[k])}')
        for k in range(4):
            par, s_ = k // 2, k % 2
            off = slot_of[2*q+par] * SLOT + s_ * 8192
            r = vQr[off // 65536]; off %= 65536
            e(f'ds_read_b64_tr_b16 {v(QA+4*k,2)}, {v(r)} offset:{off}')
            e(f'ds_read_b64_tr_b16 {v(QA+4*k+2,2)}, {v(r)} offset:{off + 2048}')
            e(f'ds_read_b128 {v(QB+4*k,4)}, {v(vXa[k])}')
        if q < 8:
            e(f's_add_u32 s{sKc}, s{sKc}, 1'); e(f's_cmp_eq_u32 s{sKc}, 9'); e(f's_cselect_b32 s{sKc}, 0, s{sKc}')
        if q == 2:
            with e.only('C'):
                e.wait_vm('EP')
                e(f'v_add_u32 {v(TK0+1)}, 1, {v(TK0+1)}')
                e(f'v_or_b32 {v(TK0+1)}, 0x80000000, {v(TK0+1)}')
                e(f'v_mov_b32 {v(TK0+2)}, {v(TK0+1)}')
                e(f'v_mov_b32 {v(TK0+3)}, 0')
                e(f's_mov_b64 exec, 1')
                e(f'buffer_atomic_cmpswap {v(TK0+2,2)}, {v(TK0+3)}, {srd(sDBG)}, 0 offen sc0 sc1', tag='CS')
                e(f's_mov_b64 exec, -1')
        for k in range(4):
            c = '0' if (q == 0 and k == 0) else v(QACC, 16)
            e(f'v_mfma_f32_32x32x16_bf16 {v(QACC,16)}, {v(QA+4*k,4)}, {v(QB+4*k,4)}, {c}')
    e(f'v_and_b32 {v(vT[0])}, 31, v0')
    e(f'v_lshrrev_b32 {v(vT[1])}, 5, v0')
    e(f'v_lshlrev_b32 {v(vT[0])}, 4, {v(vT[0])}')
    e(f'v_lshl_add_u32 {v(vT[0])}, {v(vT[1])}, 3, {v(vT[0])}')
    e(f's_lshl_b32 s{sT1}, s{sWave}, 11'); e(f's_add_u32 s{sT1}, s{sT1}, {QI}')
    e(f'v_add_u32 {v(vT[0])}, s{sT1}, {v(vT[0])}')
    e(f's_lshl_b32 s{sT1}, s{sHH}, 13'); e(f's_add_u32 s{sT1}, s{sT1}, {QI}')
    e(f'v_add_u32 {v(vT[2])}, s{sT1}, {v(vLin)}')
    for a_ in range(4):
        e(f'v_cvt_pk_bf16_f32 {v(QA+2*a_)}, {v(QACC+4*a_)}, {v(QACC+4*a_+1)}')
        e(f'v_cvt_pk_bf16_f32 {v(QA+2*a_+1)}, {v(QACC+4*a_+2)}, {v(QACC+4*a_+3)}')
        e(f'ds_write_b64 {v(vT[0])}, {v(QA+2*a_,2)} offset:{a_*512}')
    stamp()

    def wo_dma(ck, part):
        if opts.get('nowo'): return
        hh, jb = ck // 2, ck % 2
        with e.only('BC'):
            e(f's_add_u32 m0, s{sW9k}, {SCR + part*3072}')
            e(f's_add_u32 s{sT1}, s{sWOb}, {(128*hh + 32*jb)*1152 + part*3072}')
            for i in range(3):
                e(f'buffer_load_dwordx4 {v(vLin)}, {srd(sWO)}, s{sT1} offen offset:{i*1024}{wo_pol} lds', tag=f'W{ck}')
    def up(u, k): return S0 + 16 * u + 8 + 4 * k
    WF = {0: [W0R + 4*j for j in range(5)],
          1: [64 + 4*j for j in range(5)],
          2: [up(0,0), up(0,1), up(1,0), up(1,1), up(2,0)],
          3: [up(3,0), up(3,1), up(4,0), up(4,1), up(5,0)]}
    def wo_read(ck):
        for j in range(4):
            for hf in range(2):
                e(f'ds_read_b64_tr_b16 {v(WF[ck][j]+2*hf,2)}, {v(vWr)} offset:{hf*18432 + 32*j}')
        for hf in range(2):
            e(f'ds_read_b64_tr_b16 {v(WF[ck][4]+2*hf,2)}, {v(vWx)} offset:{hf*18432}')
    wsched = opts.get('wsched', {0: (0, 1, 2, 4), 1: (5, 6, 7, 9), 2: (10, 11, 12, 14), 3: (15, 16, 17, 19)})
    wo_dma_at = {}; wo_read_at = {}
    for ck, (a0, a1, a2, rd) in wsched.items():
        for part, st in enumerate((a0, a1, a2)): wo_dma_at.setdefault(st, []).append((ck, part))
        wo_read_at[rd] = ck

    def head(step, tiles):
        if tiles:
            with e.only('A'):
                e.wait_vm(*[f'T{n}' for n in tiles])
        if step in wo_read_at:
            with e.only('BC'):
                e.wait_vm(f'W{wo_read_at[step]}')
        e.wait_lg(0)
        e('s_barrier')
    def tail(step):
        need = TK + ((2*step + 4) if step < 8 else (16 + step - 8 + 1))
        la = opts.get('la', 3)
        issue(max(0, min(opts.get('maxissue', 3), need + la - nxt[0])))
        for (ck, part) in wo_dma_at.get(step, []): wo_dma(ck, part)
    def xswap(reg, tmp, op):
        e(f'v_mov_b32 {v(tmp)}, {v(reg)}')
        e(f'v_permlane32_swap_b32 {v(reg)}, {v(tmp)}')
        e(f'{op} {v(reg)}, {v(reg)}, {v(tmp)}')

    kcur = [(0, 0)]
    for u in range(8):
        ta, tb = TK + 2*u, TK + 2*u + 1
        head(u, [ta, tb])
        if u in opts.get('kst', ()): stamp()
        if u == 0:
            release([TK-2, TK-1])
            for j in range(8):
                e(f'ds_read_b128 {v(QF+4*j,4)}, {v(vT[2])} offset:{j*1024}')
        else:
            release([ta-2, tb-2])
            if u == 1: free.append(QI // SLOT); free.sort()
        sa, sb = slot_of[ta] * SLOT, slot_of[tb] * SLOT
        pa, pb = kcur[0]
        da, db_ = (sa - pa) & 0xffffffff, (sb - pb) & 0xffffffff
        e(f's_cmp_lt_u32 s{sI4}, 2')
        e(f's_mov_b32 s{sT0}, {hex(db_)}')
        e(f's_cmov_b32 s{sT0}, {hex(da)}')
        for j in range(8): e(f'v_add_u32 {v(vKr[j])}, s{sT0}, {v(vKr[j])}')
        kcur[0] = (sa, sb)
        for j in range(8):
            e(f'ds_read_b128 {v(KF+4*j,4)}, {v(vKr[j])}')
        if u in wo_read_at: wo_read(wo_read_at[u])
        if u >= 1:
            Sp = S0 + 16 * (u - 1)
            if u == 1: e(f'v_max3_f32 {v(vM)}, {v(Sp)}, {v(Sp+1)}, {v(Sp+2)}'); st = 3
            else: st = 0
            for i in range(st, 15, 2): e(f'v_max3_f32 {v(vM)}, {v(vM)}, {v(Sp+i)}, {v(Sp+i+1)}')
            if u == 1: e(f'v_max_f32 {v(vM)}, {v(vM)}, {v(Sp+15)}')
        Sb = S0 + 16 * u
        for j in range(8):
            c = '0' if j == 0 else v(Sb, 16)
            e(f'v_mfma_f32_32x32x16_bf16 {v(Sb,16)}, {v(KF+4*j,4)}, {v(QF+4*j,4)}, {c}')
        if u == 3:
            with e.only('C'):
                e.wait_vm('CS')
                e(f'v_readfirstlane_b32 s{sT1}, {v(TK0+2)}')
                e(f'v_readfirstlane_b32 s{sT0}, {v(TK0+1)}')
                lw = e.newlabel('Lwin')
                e(f's_cmp_lg_u32 s{sT1}, 0')
                e(f's_cselect_b32 s{sT0}, s{sT1}, s{sT0}')
                e(f'v_mov_b32 {v(TK0+1)}, s{sT0}')
                e(f's_cbranch_scc1 {lw}')
                e(f's_mov_b64 exec, 1')
                e(f'buffer_store_dword {v(TK0+1)}, {v(TK0)}, {srd(sWS)}, 0 offen sc1', tag='EPS')
                e(f's_mov_b64 exec, -1')
                e.label(lw)
                e.vm['C'] = [x for x in e.vm['C'] if x[0] != 'EPS']
                e(f'v_mov_b32 {v(TK0+2)}, {hex(TOK)}')
                e(f'ds_write_b32 {v(TK0+2)}, {v(TK0+1)}')
        tail(u)
    Sp = S0 + 16 * 7
    for i in range(0, 16, 2): e(f'v_max3_f32 {v(vM)}, {v(vM)}, {v(Sp+i)}, {v(Sp+i+1)}')
    xswap(vM, vT[0], 'v_max_f32')
    e(f'ds_write_b32 {v(vMo)}, {v(vM)}')
    stamp()

    def softmax_parts(u):
        Sb = S0 + 16 * u
        g1 = [f'v_pk_fma_f32 {v(Sb+i,2)}, {v(Sb+i,2)}, s[{sC}:{sC+1}], {v(vNm,2)} op_sel_hi:[1,0,0]' for i in range(0, 16, 2)]
        g1 += [f'v_exp_f32 {v(Sb+i)}, {v(Sb+i)}' for i in range(6)]
        g2 = [f'v_exp_f32 {v(Sb+i)}, {v(Sb+i)}' for i in range(6, 16)]
        if u == 0:
            g3 = [f'v_pk_add_f32 {v(vL,2)}, {v(Sb,2)}, {v(Sb+2,2)}'] + [f'v_pk_add_f32 {v(vL,2)}, {v(vL,2)}, {v(Sb+i,2)}' for i in range(4, 16, 2)]
        else:
            g3 = [f'v_pk_add_f32 {v(vL,2)}, {v(vL,2)}, {v(Sb+i,2)}' for i in range(0, 16, 2)]
        g3 += [f'v_cvt_pk_bf16_f32 {v(Sb+i)}, {v(Sb+2*i)}, {v(Sb+2*i+1)}' for i in range(8)]
        return [g1, g2, g3]
    def publish(u, buf):
        Sb = S0 + 16 * u
        e(f'ds_write_b128 {v(vPw)}, {v(Sb,4)} offset:{buf*SLOT}')
        e(f'ds_write_b128 {v(vPw)}, {v(Sb+4,4)} offset:{buf*SLOT + 1024}')

    head(8, [])
    release([TV-2, TV-1])
    e(f'ds_read_b128 {v(vT[0],4)}, {v(vMxA)}')
    tail(8)
    if 8 in wo_read_at: wo_read(wo_read_at[8])
    e(f'v_max3_f32 {v(vM)}, {v(vT[0])}, {v(vT[1])}, {v(vT[2])}')
    e(f'v_max_f32 {v(vM)}, {v(vM)}, {v(vT[3])}')
    e(f'v_mul_f32 {v(vNm)}, s{sC}, {v(vM)}')
    e(f'v_sub_f32 {v(vNm)}, 0, {v(vNm)}')
    for g in softmax_parts(0):
        for x in g: e(x)
    publish(0, 0)

    O1, O2 = 84, 92
    FR = [100 + 4*k for k in range(7)]
    CT = 32
    MS = 40
    vTok = vNm
    RG = [up(6,0), up(6,1)]
    TMP = up(7, 0)
    sRX = sKs
    def rx_addr():
        e(f's_xor_b32 s{sRX}, s2, 16'); e(f's_lshl_b32 s{sRX}, s{sRX}, 14'); e(f's_add_u32 s{sRX}, s{sRX}, {hex(WS_OX)}')
        e(f's_lshl_b32 s{sT0}, s{sWave}, 11'); e(f's_add_u32 s{sRX}, s{sRX}, s{sT0}')
    def rx_loads():
        for j in range(2):
            e(f'buffer_load_dwordx4 {v(RG[j],4)}, {v(vLin)}, {srd(sWS)}, s{sRX} offen offset:{j*1024} sc1', tag='RX')
    vcur = [0]
    for t in range(16):
        step = 9 + t; n = TV + t; p, u = t // 8, t % 8
        head(step, [n])
        if t in opts.get('vst', ()): stamp()
        if t >= 1: release([n - 1])
        off = slot_of[n] * SLOT
        if off + SLOT > 65536 + vcur[0] or off < vcur[0]:
            nb = 0 if off + SLOT <= 65536 else 16384
            e(f'v_add_u32 {v(vVr)}, {hex((nb - vcur[0]) & 0xffffffff)}, {v(vVr)}'); vcur[0] = nb
        off -= vcur[0]
        O = O1 if p == 0 else O2
        buf = t % 2
        fi = [0]; slots = {}
        def rd(kq):
            a_, b0, b1 = [FR[(fi[0] + k) % 7] for k in range(3)]; fi[0] += 3
            slots[kq] = (a_, b0, b1)
            e(f'ds_read_b64_tr_b16 {v(a_,2)}, {v(vVr)} offset:{off + kq*4096}')
            e(f'ds_read_b64_tr_b16 {v(a_+2,2)}, {v(vVr)} offset:{off + kq*4096 + 1024}')
            e(f'ds_read_b128 {v(b0,4)}, {v(vPr)} offset:{buf*SLOT + kq*2048}')
            e(f'ds_read_b128 {v(b1,4)}, {v(vPr)} offset:{buf*SLOT + kq*2048 + 256}')
        def mf(kq):
            a_, b0, b1 = slots[kq]
            for qt, b_ in enumerate((b0, b1)):
                c = '0' if (u == 0 and kq == 0) else v(O+4*qt, 4)
                e(f'v_mfma_f32_16x16x32_bf16 {v(O+4*qt,4)}, {v(a_,4)}, {v(b_,4)}, {c}')
        parts = softmax_parts(u + 1) if (p == 0 and u < 7) else [[], [], []]
        rd(0); rd(1)
        if opts.get('earlytail', True): tail(step)
        if t == 7:
            e(f's_lshl_b32 s{sT1}, s{sHH}, 9'); e(f's_add_u32 s{sT1}, s{sT1}, {MX}')
            e(f'v_lshlrev_b32 {v(vT[0])}, 4, {v(vLc)}')
            e(f'v_add_u32 {v(vT[0])}, s{sT1}, {v(vT[0])}')
            e(f'v_mov_b32 {v(vT[1])}, {hex(TOK)}')
            e(f'ds_read_b32 {v(vTok)}, {v(vT[1])}')
            for qt in range(2):
                e(f'ds_read_b128 {v(TMP,4)}, {v(vT[0])} offset:{qt*256}')
                e(f'ds_read_b128 {v(TMP+4,4)}, {v(vT[0])} offset:{qt*256 + 1024}')
                e(f'v_max3_f32 {v(TMP)}, {v(TMP)}, {v(TMP+1)}, {v(TMP+2)}')
                e(f'v_max_f32 {v(TMP)}, {v(TMP)}, {v(TMP+3)}')
                e(f'v_add_f32 {v(TMP+4)}, {v(TMP+4)}, {v(TMP+5)}')
                e(f'v_add_f32 {v(TMP+6)}, {v(TMP+6)}, {v(TMP+7)}')
                e(f'v_add_f32 {v(TMP+4)}, {v(TMP+4)}, {v(TMP+6)}')
                e(f'v_log_f32 {v(TMP+5)}, {v(TMP+4)}')
                e(f'v_rcp_f32 {v(MS+2+qt)}, {v(TMP+4)}')
                e(f'v_fma_f32 {v(MS+qt)}, {v(TMP)}, s{sC}, {v(TMP+5)}')
            rx_addr()
        if t == opts.get('rxat', 12): rx_loads()
        if step in wo_read_at: wo_read(wo_read_at[step])
        for x in parts[0]: e(x)
        mf(0); rd(2)
        for x in parts[1]: e(x)
        mf(1); rd(3)
        for x in parts[2]: e(x)
        if t < 15: publish((u + 1) % 8, 1 - buf)
        if t == 6:
            e(f'v_add_f32 {v(vL)}, {v(vL)}, {v(vL+1)}')
            xswap(vL, vT[0], 'v_add_f32')
            e(f'ds_write_b32 {v(vMo)}, {v(vL)} offset:1024')
        mf(2); mf(3)
        if t == 7:
            e(f's_xor_b32 s{sT1}, s{sRX}, {hex(16 << 14)}')
            for qt in range(2):
                G = RG[qt]
                e(f'v_mov_b32 {v(G+2)}, {v(MS+qt)}')
                e(f'v_mov_b32 {v(G+3)}, {v(vTok)}')
                for r in range(4): e(f'v_mul_f32 {v(O1+4*qt+r)}, {v(O1+4*qt+r)}, {v(MS+2+qt)}')
                e(f'v_cvt_pk_bf16_f32 {v(G)}, {v(O1+4*qt)}, {v(O1+4*qt+1)}')
                e(f'v_cvt_pk_bf16_f32 {v(G+1)}, {v(O1+4*qt+2)}, {v(O1+4*qt+3)}')
                e(f'buffer_store_dwordx4 {v(G,4)}, {v(vLin)}, {srd(sWS)}, s{sT1} offen offset:{qt*1024} sc1', tag='OX')
            stamp()
        if not opts.get('earlytail', True): tail(step)
    assert WS_OX % (32 << 14) == 0
    stamp()
    OI = PB[0]
    lp = e.newlabel('Lrx'); ld = e.newlabel('Lrxd')
    e(f's_mov_b32 s{sT3}, 0x20000')
    e.label(lp)
    e.wait_vm_all()
    e(f'v_xor_b32 {v(vT[0])}, {v(RG[0]+3)}, {v(vTok)}')
    e(f'v_xor_b32 {v(vT[1])}, {v(RG[1]+3)}, {v(vTok)}')
    e(f'v_or_b32 {v(vT[0])}, {v(vT[0])}, {v(vT[1])}')
    e(f'v_cmp_ne_u32 vcc, 0, {v(vT[0])}')
    e.nop(4)
    e(f's_cbranch_vccz {ld}')
    e(f's_sub_u32 s{sT3}, s{sT3}, 1')
    e(f's_cmp_eq_u32 s{sT3}, 0')
    e(f's_cbranch_scc1 {ld}')
    e(f's_sleep 8')
    rx_loads()
    e(f's_branch {lp}')
    for r in e.vm: e.vm[r] = []
    e.label(ld)
    e(f's_mov_b32 s{sT3}, 0xffff0000')
    for qt in range(2):
        G = RG[qt]; t0, t1 = TMP + 2*qt, TMP + 2*qt + 1
        e(f'v_sub_f32 {v(t0)}, {v(MS+qt)}, {v(G+2)}')
        e(f'v_sub_f32 {v(t1)}, {v(G+2)}, {v(MS+qt)}')
        e(f'v_exp_f32 {v(t0)}, {v(t0)}'); e(f'v_exp_f32 {v(t1)}, {v(t1)}')
        e(f'v_add_f32 {v(t0)}, 1.0, {v(t0)}'); e(f'v_add_f32 {v(t1)}, 1.0, {v(t1)}')
        e(f'v_rcp_f32 {v(t0)}, {v(t0)}'); e(f'v_rcp_f32 {v(t1)}, {v(t1)}')
        e(f'v_lshlrev_b32 {v(O1+4*qt)}, 16, {v(G)}'); e(f'v_and_b32 {v(O1+4*qt+1)}, s{sT3}, {v(G)}')
        e(f'v_lshlrev_b32 {v(O1+4*qt+2)}, 16, {v(G+1)}'); e(f'v_and_b32 {v(O1+4*qt+3)}, s{sT3}, {v(G+1)}')
        e(f'v_mul_f32 {v(t1)}, {v(t1)}, {v(MS+2+qt)}')
        for r in range(4): e(f'v_mul_f32 {v(O1+4*qt+r)}, {v(O1+4*qt+r)}, {v(t0)}')
    e(f's_lshr_b32 s{sT1}, s{sWave}, 1'); e(f's_lshl_b32 s{sT1}, s{sT1}, 11')
    e(f's_and_b32 s{sT2}, s{sWave}, 1'); e(f's_lshl_b32 s{sT0}, s{sT2}, 3'); e(f's_add_u32 s{sT1}, s{sT1}, s{sT0}'); e(f's_add_u32 s{sT1}, s{sT1}, {OI}')
    e(f'v_add_u32 {v(vT[0])}, s{sT1}, {v(vLin)}')
    e(f'v_add_u32 {v(vT[1])}, {hex(OI)}, {v(vLin)}')
    e(f's_lshl_b32 s{sT1}, s{sT2}, 10')
    e(f'v_add_u32 {v(vT[2])}, s{sT1}, {v(vT[1])}')
    for qt in range(2):
        for r in range(4):
            e(f'v_fma_f32 {v(O2+4*qt+r)}, {v(O2+4*qt+r)}, {v(TMP+2*qt+1)}, {v(O1+4*qt+r)}')
        e(f'v_cvt_pk_bf16_f32 {v(CT+2*qt)}, {v(O2+4*qt)}, {v(O2+4*qt+1)}')
        e(f'v_cvt_pk_bf16_f32 {v(CT+2*qt+1)}, {v(O2+4*qt+2)}, {v(O2+4*qt+3)}')
        e(f'ds_write_b64 {v(vT[0])}, {v(CT+2*qt,2)} offset:{qt*1024}')
    e.wait_lg(0)
    e('s_barrier')
    lo = lambda k: S0 + 16 * (k // 2) + 4 * (k % 2)
    for ck in range(4):
        for qt in range(2):
            e(f'ds_read_b128 {v(lo(2*ck+qt),4)}, {v(vT[1])} offset:{ck*2048 + qt*1024}')
        e(f'ds_read_b128 {v(lo(8+ck),4)}, {v(vT[2])} offset:{ck*2048}')
    e(f's_mul_i32 s{sT1}, s2, {PART_BYTES}')
    e(f's_lshr_b32 s{sT3}, s{sWave}, 1'); e(f's_lshl_b32 s{sT3}, s{sT3}, 10'); e(f's_add_u32 s{sT3}, s{sT3}, s{sT0}')
    e(f's_add_u32 s{sT3}, s{sT3}, s{sT1}'); e(f's_add_u32 s{sT3}, s{sT3}, 32768')
    e(f's_lshl_b32 s{sT2}, s{sWave}, 12'); e(f's_add_u32 s{sT1}, s{sT1}, s{sT2}')
    AC = 84
    DD = [120, 124, 32, 36]
    for ck in range(4):
        for j in range(4):
            for qt in range(2):
                A0 = AC + 8*j + 4*qt
                c = '0' if ck == 0 else v(A0, 4)
                e(f'v_mfma_f32_16x16x32_bf16 {v(A0,4)}, {v(WF[ck][j],4)}, {v(lo(2*ck+qt),4)}, {c}')
        c = '0' if ck == 0 else v(AC+32, 4)
        e(f'v_mfma_f32_16x16x32_bf16 {v(AC+32,4)}, {v(WF[ck][4],4)}, {v(lo(8+ck),4)}, {c}')
    for j in range(4):
        D = DD[j]
        for qt in range(2):
            A0 = AC + 8*j + 4*qt
            e(f'v_cvt_pk_bf16_f32 {v(D+2*qt)}, {v(A0)}, {v(A0+1)}')
            e(f'v_cvt_pk_bf16_f32 {v(D+2*qt+1)}, {v(A0+2)}, {v(A0+3)}')
        e(f'buffer_store_dwordx4 {v(D,4)}, {v(vLin)}, {srd(sWS)}, s{sT1} offen offset:{j*1024}{st_pol}', tag='OUT')
    e(f'v_cvt_pk_bf16_f32 {v(40)}, {v(AC+32)}, {v(AC+33)}')
    e(f'v_cvt_pk_bf16_f32 {v(41)}, {v(AC+34)}, {v(AC+35)}')
    e(f'buffer_store_dwordx2 {v(40,2)}, {v(vLin)}, {srd(sWS)}, s{sT3} offen{st_pol}', tag='OUT')
    if stamps:
        stamp()
        e.wait_vm_all()
        stamp()
        e(f's_cmp_lg_u32 s{sWave}, 0'); e('s_cbranch_scc1 L_end1')
        e(f's_lshl_b32 s{sT1}, s2, 7'); e(f's_add_u32 s{sT1}, s{sT1}, {hex(WS_STAMP)}')
        e('s_mov_b64 exec, 1')
        e(f'v_mov_b32 {v(vT[2])}, 0')
        for i in range(16):
            if i < nstamp[0]:
                e(f'v_mov_b32 {v(vT[0])}, s{sStamp+2*i}'); e(f'v_mov_b32 {v(vT[1])}, s{sStamp+2*i+1}')
            else:
                e(f'v_mov_b32 {v(vT[0])}, 0'); e(f'v_mov_b32 {v(vT[1])}, 0')
            e(f'buffer_store_dwordx2 {v(vT[0],2)}, {v(vT[2])}, {srd(sWS)}, s{sT1} offen offset:{8*i}')
            e.nop(2)
    e.label('L_end1')
    e('s_endpgm')
    k1_lines = e.lines
    n1 = e.ninst
    k2_lines = gen_k2(k2_pol)

    hdr = open('standalone__sliding_block_cached__sampling.s.ref').read().split('\n')
    hdr = [l for l in hdr if l.startswith(';') and '@launch' not in l and 'Override' not in l and 'grid=ceil' not in l]
    out = hdr + [
        f'; @launch kernel={K1} grid=(256,1,1) block=(512,1,1) lds={LDS_BYTES}',
        f'; @launch kernel={K2} grid=(288,1,1) block=(256,1,1) lds=8192',
        '.amdgcn_target "amdgcn-amd-amdhsa--gfx950"', '.text'] + k1_lines + k2_lines
    def kd(name, nv, ns, acc):
        return ['.section .rodata,"a"', '.p2align 6', f'.amdhsa_kernel {name}',
                f'  .amdhsa_next_free_vgpr {nv}', f'  .amdhsa_next_free_sgpr {ns}', f'  .amdhsa_accum_offset {acc}',
                '  .amdhsa_group_segment_fixed_size 0', '  .amdhsa_kernarg_size 64', '  .amdhsa_user_sgpr_count 2',
                '  .amdhsa_user_sgpr_kernarg_segment_ptr 1', '  .amdhsa_system_sgpr_workgroup_id_x 1', '.end_amdhsa_kernel']
    out += kd(K1, 256, 102, 256) + kd(K2, 56, 32, 56)
    print('K1 instrs', n1, 'QI', QI, 'slots', [slot_of[n] for n in range(TEND)], file=sys.stderr)
    return '\n'.join(out) + '\n'

if __name__ == '__main__':
    E = 'exp/'
    st = dict(stamps=True, vst=(0, 4, 12), kst=(0, 2, 4, 6), qst=(0, 4))
    open(E + 'v6.s', 'w').write(gen({}))
    open(E + 'v6s.s', 'w').write(gen(dict(st)))
    open(E + 'v6n1.s', 'w').write(gen(dict(st, nokv=True, nowo=True)))
    open(E + 'v6n2.s', 'w').write(gen(dict(st, nowo=True)))
```

```python
import sys, math, struct
from emit import Emitter
from gen6 import gen_k2, f32bits, K1, K2

SLOT = 16384
NSLOT = 7
SCR = NSLOT * SLOT
MX = SCR + 40960
LS = MX + 1024
TOK = LS + 1024
LDS_BYTES = TOK + 64
RS = 4 * SLOT
WS_EPOCH = 0x1000000
WS_OX = 0x1100000
WS_STAMP = 0x20000000
PART_BYTES = 36864
NW, NK, NV = 18, 16, 16
TK, TV, TEND = NW, NW + NK, NW + NK + NV

def gen(opts):
    stamps = opts.get('stamps', False)
    st_pol = opts.get('st_pol', ''); k2_pol = opts.get('k2_pol', '')
    wq_pol = opts.get('wq_pol', ''); wo_pol = opts.get('wo_pol', ''); x_pol = opts.get('x_pol', '')
    e = Emitter(roles=('A', 'C'))
    sK, sV, sWQ, sX, sWO, sWS, sDBG = 20, 24, 28, 32, 36, 40, 44
    sWave, sHkv, sB, sSp = 48, 49, 50, 51
    sW2k, sT0, sT1, sT2, sT3 = 52, 53, 54, 55, 56
    sWQb, sWOb, sKc = 57, 58, 59
    sC = 60
    sKs, sG0, sVb, sW1k = 62, 63, 64, 65
    sStamp = 66
    sI4, sHH = 98, 99
    nstamp = [0]
    srd = lambda n: f's[{n}:{n+3}]'
    e.role_cond[frozenset('C')] = (f's_cmp_eq_u32 s{sWave}, 7', 's_cbranch_scc0')
    e.role_cond[frozenset('A')] = (f's_cmp_eq_u32 s{sWave}, 7', 's_cbranch_scc1')
    def stamp():
        if stamps:
            i = nstamp[0]; nstamp[0] += 1
            assert i < 16
            e.wait_lg(0)
            e(f's_memrealtime s[{sStamp+2*i}:{sStamp+2*i+1}]')
            e.wait_lg(0)
    def forget(tag):
        e.vm['C'] = [x for x in e.vm['C'] if x[0] != tag]
    v = lambda n, c=1: f'v{n}' if c == 1 else f'v[{n}:{n+c-1}]'
    vLin, vLc, vLr = 1, 2, 3
    vKd = [4, 5]; vVd = 6; vVr = [7, 8]; vKr = list(range(9, 17))
    vWr = 17; vWx = 18; vMxA = 19; vMo = 20; vOr = 21
    vL = 22
    vNm = 24; vM = 25; vRw = 26; vRr = 27
    vT = [28, 29, 30, 31]
    S0 = 128; QF = 96; KF = 64; W0R = 44
    vWd = [128, 129]; vXd = 130; vQr = [132, 133]; vXb = [134, 135, 136, 137]; vXa = [138, 139, 140, 141]
    QA = 160; QB = 176; QACC = 224
    TK0 = 32

    e.raw(f'.globl {K1}'); e.raw('.p2align 8'); e.raw(f'.type {K1},@function'); e.label(K1)
    e('s_cmp_ge_u32 s2, 256')
    e('s_cbranch_scc1 L_end1')
    e('s_load_dwordx16 s[4:19], s[0:1], 0')
    if stamps:
        e(f's_memrealtime s[{sStamp}:{sStamp+1}]'); nstamp[0] = 1
    e(f'v_lshrrev_b32 {v(vT[0])}, 6, v0')
    e(f'v_and_b32 v0, 63, v0')
    e(f'v_readfirstlane_b32 s{sWave}, {v(vT[0])}')
    e(f's_and_b32 s{sHkv}, s2, 7'); e(f's_lshl_b32 s{sHkv}, s{sHkv}, 1')
    e(f's_bfe_u32 s{sT0}, s2, 0x10003'); e(f's_or_b32 s{sHkv}, s{sHkv}, s{sT0}')
    e(f's_lshr_b32 s{sB}, s2, 5')
    e(f'v_lshrrev_b32 {v(vT[0])}, 5, v0')
    e(f'v_and_b32 {v(vT[1])}, 31, v0')
    e(f'v_lshlrev_b32 {v(vT[2])}, 2, {v(vT[0])}')
    e(f'v_xor_b32 {v(vT[1])}, {v(vT[1])}, {v(vT[2])}')
    e(f'v_lshlrev_b32 {v(vT[1])}, 4, {v(vT[1])}')
    e(f'v_lshl_add_u32 {v(vWd[0])}, {v(vT[0])}, 13, {v(vT[1])}')
    e(f'v_xor_b32 {v(vWd[1])}, 0x80, {v(vWd[0])}')
    e(f'v_add_u32 {v(vWd[1])}, {16384-1024}, {v(vWd[1])}')
    e(f's_lshl_b32 s{sW2k}, s{sWave}, 11')
    e(f's_lshl_b32 s{sWQb}, s{sWave}, 15'); e(f's_lshl_b32 s{sT1}, s{sHkv}, 9'); e(f's_add_u32 s{sWQb}, s{sWQb}, s{sT1}')
    e(f's_lshr_b32 s{sKs}, s2, 4')
    e(f's_cmp_ge_u32 s{sKs}, 9'); e(f's_cselect_b32 s{sT1}, 9, 0'); e(f's_sub_u32 s{sKs}, s{sKs}, s{sT1}')
    if not opts.get('rot', True): e(f's_mov_b32 s{sKs}, 0')
    e(f's_mov_b32 s{sKc}, s{sKs}')
    e(f's_and_b32 s{sI4}, s{sWave}, 3'); e(f's_lshr_b32 s{sHH}, s{sWave}, 2')
    e(f'v_lshrrev_b32 {v(vT[0])}, 3, v0')
    e(f'v_lshrrev_b32 {v(vLr)}, 4, v0')
    e(f's_and_b32 s{sT1}, s{sWave}, 1'); e(f's_lshl_b32 s{sT1}, s{sT1}, 2')
    e(f'v_or_b32 {v(vT[1])}, s{sT1}, {v(vLr)}')
    e(f'v_and_b32 {v(vT[2])}, 7, v0')
    e(f'v_xor_b32 {v(vT[1])}, {v(vT[1])}, {v(vT[2])}')
    e(f's_movk_i32 s{sT1}, 1152')
    e(f'v_mul_lo_u32 {v(vT[0])}, {v(vT[0])}, s{sT1}')
    e(f'v_lshl_add_u32 {v(vXd)}, {v(vT[1])}, 4, {v(vT[0])}')
    e.wait_lg(0)
    e(f's_mov_b32 s{sWQ}, s10'); e(f's_mov_b32 s{sWQ+1}, s11'); e(f's_mov_b32 s{sWQ+2}, {576*8192}'); e(f's_mov_b32 s{sWQ+3}, 0x20000')

    slot_of = {}
    free = list(range(NSLOT))
    nxt = [0]
    def dma_tile(n):
        slot = slot_of[n]
        e(f's_add_u32 m0, s{sW2k}, {slot*SLOT}')
        if n < TK:
            if n % 2 == 0:
                e(f's_lshl_b32 s{sG0}, s{sKs}, 19'); e(f's_add_u32 s{sG0}, s{sG0}, s{sWQb}')
            else:
                e(f's_add_u32 s{sG0}, s{sG0}, {32*8192}')
            for i in range(2):
                e(f'buffer_load_dwordx4 {v(vWd[i])}, {srd(sWQ)}, s{sG0} offen offset:{i*1024}{wq_pol} lds', tag=f'T{n}')
            if n % 2 == 1 and n < TK - 1:
                e(f's_add_u32 s{sKs}, s{sKs}, 1'); e(f's_cmp_eq_u32 s{sKs}, 9'); e(f's_cselect_b32 s{sKs}, 0, s{sKs}')
        elif opts.get('nokv'):
            pass
        elif n < TV:
            e(f's_add_u32 s{sT1}, s{sW2k}, {(n-TK)*SLOT}')
            for i in range(2):
                e(f'buffer_load_dwordx4 {v(vKd[i])}, {srd(sK)}, s{sT1} offen offset:{i*1024} nt lds', tag=f'T{n}')
        else:
            p, u = (n - TV) // 8, (n - TV) % 8
            if n == TV + 8: e(f's_xor_b32 s{sVb}, s{sVb}, 0x80')
            e(f's_add_u32 s{sT1}, s{sVb}, {u*32768}')
            e(f'buffer_load_dwordx4 {v(vVd)}, {srd(sV)}, s{sT1} offen nt lds', tag=f'T{n}')
            e(f's_add_u32 s{sT1}, s{sT1}, 1024')
            e(f'buffer_load_dwordx4 {v(vVd)}, {srd(sV)}, s{sT1} offen offset:1024 nt lds', tag=f'T{n}')
    def issue(maxn):
        k = 0
        while nxt[0] < TEND and k < maxn:
            n = nxt[0]
            cand = [s for s in free if n < TV or s < 4]
            if not cand: break
            s = cand[0] if n >= TV else max(cand)
            free.remove(s); slot_of[n] = s; nxt[0] += 1; k += 1
            dma_tile(n)
    def release(ns):
        for n in ns: free.append(slot_of[n])
        free.sort()

    issue(2)
    e(f's_mov_b32 s{sX}, s4'); e(f's_mov_b32 s{sX+1}, s5'); e(f's_mov_b32 s{sX+2}, {256*1152}'); e(f's_mov_b32 s{sX+3}, 0x20000')
    e(f's_mul_i32 s{sT1}, s{sB}, 36864'); e(f's_mul_i32 s{sT0}, s{sI4}, 9216'); e(f's_add_u32 s{sT1}, s{sT1}, s{sT0}')
    e(f's_lshl_b32 s{sT0}, s{sHH}, 7'); e(f's_add_u32 s{sT1}, s{sT1}, s{sT0}')
    e(f's_lshl_b32 s{sW1k}, s{sWave}, 10')
    for k in range(5):
        e(f's_add_u32 m0, s{sW1k}, {SCR + k*8192 - k*256}')
        e(f'buffer_load_dwordx4 {v(vXd)}, {srd(sX)}, s{sT1} offen offset:{k*256}{x_pol} lds', tag='X')
    issue(opts.get('w1', 1))

    e(f'v_and_b32 {v(vLc)}, 15, v0')
    e(f'v_lshlrev_b32 {v(vLin)}, 4, v0')
    e(f'v_lshrrev_b32 {v(vT[0])}, 2, {v(vLc)}')
    e(f'v_xor_b32 {v(vT[1])}, s{sWave}, {v(vT[0])}')
    e(f'v_lshlrev_b32 {v(vT[1])}, 6, {v(vT[1])}')
    e(f'v_lshl_add_u32 {v(vT[1])}, {v(vT[0])}, 9, {v(vT[1])}')
    e(f'v_lshrrev_b32 {v(vT[2])}, 5, v0')
    e(f'v_lshl_add_u32 {v(vT[1])}, {v(vT[2])}, 12, {v(vT[1])}')
    e(f'v_and_b32 {v(vT[3])}, 1, {v(vLr)}')
    e(f'v_lshl_add_u32 {v(vT[1])}, {v(vT[3])}, 5, {v(vT[1])}')
    e(f'v_and_b32 {v(vT[3])}, 3, {v(vLc)}')
    e(f'v_lshl_add_u32 {v(vQr[0])}, {v(vT[3])}, 3, {v(vT[1])}')
    e(f'v_add_u32 {v(vQr[1])}, 0x10000, {v(vQr[0])}')
    e(f'v_and_b32 {v(vT[0])}, 31, v0')
    e(f'v_bfe_u32 {v(vT[1])}, v0, 1, 3')
    e(f'v_xor_b32 {v(vT[1])}, {v(vT[1])}, {v(vT[2])}')
    e(f'v_lshlrev_b32 {v(vT[1])}, 4, {v(vT[1])}')
    e(f'v_lshl_add_u32 {v(vXb[0])}, {v(vT[0])}, 7, {v(vT[1])}')
    for k in range(1, 4): e(f'v_xor_b32 {v(vXb[k])}, {32*k}, {v(vXb[0])}')

    def mid_setup():
        e(f's_bfe_u32 s{sSp}, s2, 0x10004')
        e(f's_lshl_b32 s{sT0}, s{sB}, 4'); e(f's_add_u32 s{sT0}, s{sT0}, s{sHkv}'); e(f's_lshl_b32 s{sT0}, s{sT0}, 21')
        e(f's_lshl_b32 s{sT1}, s{sSp}, 18'); e(f's_add_u32 s{sT0}, s{sT0}, s{sT1}'); e(f's_add_u32 s{sT0}, s{sT0}, {6144*256}')
        e(f's_add_u32 s{sK}, s6, s{sT0}'); e(f's_addc_u32 s{sK+1}, s7, 0'); e(f's_mov_b32 s{sK+2}, 0x40000'); e(f's_mov_b32 s{sK+3}, 0x20000')
        e(f's_add_u32 s{sV}, s8, s{sT0}'); e(f's_addc_u32 s{sV+1}, s9, 0'); e(f's_mov_b32 s{sV+2}, 0x40000'); e(f's_mov_b32 s{sV+3}, 0x20000')
        e(f's_and_b32 s{sT1}, s{sWave}, 1'); e(f's_lshl_b32 s{sT1}, s{sT1}, 3')
        e(f'v_xor_b32 {v(vT[0])}, {v(vLr)}, {v(vLc)}')
        e(f'v_xor_b32 {v(vT[0])}, s{sT1}, {v(vT[0])}')
        e(f'v_lshlrev_b32 {v(vT[0])}, 4, {v(vT[0])}')
        e(f'v_lshl_add_u32 {v(vKd[0])}, {v(vLr)}, 8, {v(vT[0])}')
        e(f'v_xor_b32 {v(vKd[1])}, 64, {v(vKd[0])}')
    def setup_k():
        e(f'v_lshrrev_b32 {v(vT[0])}, 5, v0')
        e(f'v_xor_b32 {v(vT[0])}, {v(vT[0])}, {v(vLc)}')
        e(f'v_lshlrev_b32 {v(vT[0])}, 4, {v(vT[0])}')
        e(f'v_and_b32 {v(vT[1])}, 31, v0')
        e(f'v_lshl_add_u32 {v(vT[0])}, {v(vT[1])}, 8, {v(vT[0])}')
        e(f's_and_b32 s{sT1}, s{sWave}, 1'); e(f's_lshl_b32 s{sT1}, s{sT1}, 13')
        e(f'v_add_u32 {v(vKr[0])}, s{sT1}, {v(vT[0])}')
        for j in range(1, 8): e(f'v_xor_b32 {v(vKr[j])}, {32*j}, {v(vKr[0])}')
    def setup_w():
        e(f's_mov_b32 s{sWO}, s12'); e(f's_mov_b32 s{sWO+1}, s13'); e(f's_mov_b32 s{sWO+2}, {4096*1152}'); e(f's_mov_b32 s{sWO+3}, 0x20000')
        e(f's_mov_b32 s{sWS}, s18'); e(f's_mov_b32 s{sWS+1}, s19'); e(f's_mov_b32 s{sWS+2}, 0x30000000'); e(f's_mov_b32 s{sWS+3}, 0x20000')
        e(f's_mov_b32 s{sDBG}, s16'); e(f's_mov_b32 s{sDBG+1}, s17'); e(f's_mov_b32 s{sDBG+2}, 256'); e(f's_mov_b32 s{sDBG+3}, 0x20000')
        e(f's_lshl_b32 s{sT1}, s{sHkv}, 2'); e(f's_add_u32 s{sT1}, s{sT1}, s{sSp}')
        e(f's_mul_i32 s{sWOb}, s{sT1}, {64*1152}'); e(f's_add_u32 s{sWOb}, s{sWOb}, s{sW1k}')
        e(f'v_mov_b32 {v(TK0)}, {hex(WS_EPOCH)}'); e(f'v_mov_b32 {v(TK0+2)}, 0')
    def setup_v():
        e(f's_mov_b32 s{sC}, {hex(f32bits(math.log2(math.e) / math.sqrt(128.0)))}'); e(f's_mov_b32 s{sC+1}, s{sC}')
        e(f's_xor_b32 s{sT1}, s{sSp}, 1'); e(f's_lshl_b32 s{sT1}, s{sT1}, 7')
        e(f's_lshl_b32 s{sVb}, s{sWave}, 12'); e(f's_add_u32 s{sVb}, s{sVb}, s{sT1}')
        e(f'v_lshrrev_b32 {v(vT[0])}, 3, v0')
        e(f'v_and_b32 {v(vT[1])}, 1, {v(vLr)}')
        e(f'v_lshlrev_b32 {v(vT[1])}, 2, {v(vT[1])}')
        e(f'v_and_b32 {v(vT[2])}, 7, v0')
        e(f'v_xor_b32 {v(vT[1])}, {v(vT[1])}, {v(vT[2])}')
        e(f'v_lshlrev_b32 {v(vT[1])}, 4, {v(vT[1])}')
        e(f'v_lshl_add_u32 {v(vVd)}, {v(vT[0])}, 8, {v(vT[1])}')
        e(f'v_lshrrev_b32 {v(vT[0])}, 5, v0')
        e(f'v_lshrrev_b32 {v(vT[1])}, 2, {v(vLc)}')
        e(f'v_lshl_add_u32 {v(vT[0])}, {v(vT[0])}, 2, {v(vT[1])}')
        e(f'v_and_b32 {v(vT[1])}, 2, {v(vT[1])}')
        e(f'v_and_b32 {v(vT[2])}, 1, {v(vLr)}')
        e(f'v_or_b32 {v(vT[1])}, {v(vT[1])}, {v(vT[2])}')
        e(f'v_xor_b32 {v(vT[1])}, s{sI4}, {v(vT[1])}')
        e(f'v_lshlrev_b32 {v(vT[1])}, 5, {v(vT[1])}')
        e(f'v_lshl_add_u32 {v(vT[1])}, {v(vT[0])}, 7, {v(vT[1])}')
        e(f'v_and_b32 {v(vT[2])}, 3, {v(vLc)}')
        e(f'v_lshl_add_u32 {v(vT[1])}, {v(vT[2])}, 3, {v(vT[1])}')
        e(f's_lshl_b32 s{sT1}, s{sI4}, 12')
        e(f'v_add_u32 {v(vVr[0])}, s{sT1}, {v(vT[1])}')
        e(f'v_xor_b32 {v(vVr[1])}, 64, {v(vVr[0])}')
        e(f'v_lshrrev_b32 {v(vT[0])}, 5, v0')
        e(f'v_lshlrev_b32 {v(vT[0])}, 3, {v(vT[0])}')
        e(f'v_lshrrev_b32 {v(vT[1])}, 2, v0')
        e(f'v_add_u32 {v(vT[0])}, {v(vT[0])}, {v(vT[1])}')
        e(f's_movk_i32 s{sT1}, 1152')
        e(f'v_mul_lo_u32 {v(vT[0])}, {v(vT[0])}, s{sT1}')
        e(f'v_lshl_add_u32 {v(vT[0])}, {v(vT[2])}, 3, {v(vT[0])}')
        e(f's_lshl_b32 s{sT1}, s{sWave}, 7'); e(f's_add_u32 s{sT1}, s{sT1}, {SCR}')
        e(f'v_add_u32 {v(vWr)}, s{sT1}, {v(vT[0])}')
        e(f's_lshr_b32 s{sT1}, s{sWave}, 1'); e(f's_lshl_b32 s{sT1}, s{sT1}, 5'); e(f's_add_u32 s{sT1}, s{sT1}, {SCR + 1024}')
        e(f'v_add_u32 {v(vWx)}, s{sT1}, {v(vT[0])}')
        e(f'v_and_b32 {v(vT[0])}, 31, v0')
        e(f's_lshl_b32 s{sT1}, s{sHH}, 9'); e(f's_add_u32 s{sT1}, s{sT1}, {MX}')
        e(f'v_lshlrev_b32 {v(vT[0])}, 4, {v(vT[0])}')
        e(f'v_add_u32 {v(vMxA)}, s{sT1}, {v(vT[0])}')
        e(f's_lshl_b32 s{sT1}, s{sI4}, 2')
        e(f'v_add_u32 {v(vMo)}, s{sT1}, {v(vMxA)}')
        e(f's_add_u32 s{sT1}, s{sW2k}, {RS}')
        e(f'v_add_u32 {v(vRr)}, s{sT1}, {v(vLin)}')
        e(f'v_lshlrev_b32 {v(vT[1])}, 9, {v(vLr)}')
        e(f'v_lshl_add_u32 {v(vOr)}, {v(vLc)}, 4, {v(vT[1])}')
    mid_setup()

    QI = None
    def q_mf(q):
        o = 32 * (q % 2)
        for k in range(4):
            c = '0' if (q == 0 and k == 0) else v(QACC, 16)
            e(f'v_mfma_f32_32x32x16_bf16 {v(QACC,16)}, {v(QA+o+4*k,4)}, {v(QB+o+4*k,4)}, {c}')
    for q in range(9):
        e(f's_lshl_b32 s{sT1}, s{sKc}, 12'); e(f's_add_u32 s{sT1}, s{sT1}, {SCR}')
        for k in range(4): e(f'v_add_u32 {v(vXa[k])}, s{sT1}, {v(vXb[k])}')
        if q < 8:
            e(f's_add_u32 s{sKc}, s{sKc}, 1'); e(f's_cmp_eq_u32 s{sKc}, 9'); e(f's_cselect_b32 s{sKc}, 0, s{sKc}')
        e.wait_vm(f'T{2*q}', f'T{2*q+1}', 'X')
        if q == 0: issue(opts.get('w2', 4))
        e.wait_lg(0)
        e('s_barrier')
        if q in opts.get('qst', (0,)): stamp()
        o = 32 * (q % 2)
        for k in range(4):
            par, s_ = k // 2, k % 2
            off = slot_of[2*q+par] * SLOT + s_ * 8192
            r = vQr[off // 65536]; off %= 65536
            e(f'ds_read_b64_tr_b16 {v(QA+o+4*k,2)}, {v(r)} offset:{off}')
            e(f'ds_read_b64_tr_b16 {v(QA+o+4*k+2,2)}, {v(r)} offset:{off + 2048}')
            e(f'ds_read_b128 {v(QB+o+4*k,4)}, {v(vXa[k])}')
        if q >= 1:
            release([2*q-2, 2*q-1])
            if q == 8: QI = free.pop(0) * SLOT
            if nxt[0] < TK: issue(min(2, TK - nxt[0]))
            q_mf(q - 1)
            if nxt[0] >= TK and q < 8: issue(opts.get('kq', 2))
        if q == 7: setup_k()
    q_mf(8)
    e(f'v_and_b32 {v(vT[0])}, 31, v0')
    e(f'v_lshrrev_b32 {v(vT[1])}, 5, v0')
    e(f'v_lshlrev_b32 {v(vT[0])}, 4, {v(vT[0])}')
    e(f'v_lshl_add_u32 {v(vT[0])}, {v(vT[1])}, 3, {v(vT[0])}')
    e(f's_add_u32 s{sT1}, s{sW2k}, {QI}')
    e(f'v_add_u32 {v(vT[0])}, s{sT1}, {v(vT[0])}')
    e(f's_lshl_b32 s{sT1}, s{sHH}, 13'); e(f's_add_u32 s{sT1}, s{sT1}, {QI}')
    e(f'v_add_u32 {v(vT[2])}, s{sT1}, {v(vLin)}')
    for a_ in range(4):
        e(f'v_cvt_pk_bf16_f32 {v(QA+2*a_)}, {v(QACC+4*a_)}, {v(QACC+4*a_+1)}')
        e(f'v_cvt_pk_bf16_f32 {v(QA+2*a_+1)}, {v(QACC+4*a_+2)}, {v(QACC+4*a_+3)}')
        e(f'ds_write_b64 {v(vT[0])}, {v(QA+2*a_,2)} offset:{a_*512}')
    issue(2)
    stamp()

    def wo_dma(ck, ks):
        if opts.get('nowo'): return
        hh, jb = ck // 2, ck % 2
        for k in ks:
            e(f's_add_u32 m0, s{sW1k}, {SCR + k*8192}')
            e(f's_add_u32 s{sT1}, s{sWOb}, {(128*hh + 32*jb)*1152 + k*8192}')
            e(f'buffer_load_dwordx4 {v(vLin)}, {srd(sWO)}, s{sT1} offen{wo_pol} lds', tag=f'W{ck}')
    def up(k): return S0 + 16 * (k // 2) + 8 + 4 * (k % 2)
    WF = {0: [W0R + 4*j for j in range(5)]}
    for ck in range(1, 4): WF[ck] = [up(5*(ck-1) + j) for j in range(5)]
    def wo_read(ck):
        for j in range(4):
            for hf in range(2):
                e(f'ds_read_b64_tr_b16 {v(WF[ck][j]+2*hf,2)}, {v(vWr)} offset:{hf*9216 + 32*j}')
        for hf in range(2):
            e(f'ds_read_b64_tr_b16 {v(WF[ck][4]+2*hf,2)}, {v(vWx)} offset:{hf*9216}')
    wsched = opts.get('wsched', {0: ({0: (0, 1), 1: (2, 3), 2: (4,)}, 4),
                                 1: ({5: (0, 1), 6: (2, 3), 7: (4,)}, 11),
                                 2: ({12: (0, 1), 13: (2, 3), 14: (4,)}, 17),
                                 3: ({18: (0, 1), 19: (2, 3), 20: (4,)}, 23)})
    wo_dma_at = {}; wo_read_at = {}
    for ck, (d, rd) in wsched.items():
        for st, ks in d.items(): wo_dma_at[st] = (ck, ks)
        wo_read_at[rd] = ck

    def head(step, tiles):
        tags = [f'T{n}' for n in tiles]
        if step in wo_read_at: tags.append(f'W{wo_read_at[step]}')
        if tags: e.wait_vm(*tags)
        e.wait_lg(0)
        e('s_barrier')
    def tail(step):
        if step in wo_dma_at: wo_dma(*wo_dma_at[step])
        need = TK + ((2*step + 4) if step < 8 else (16 + step - 8 + 1))
        la = opts.get('la', 2)
        issue(max(0, min(3, need + la - nxt[0])))
    def xswap(reg, tmp, op):
        e(f'v_mov_b32 {v(tmp)}, {v(reg)}')
        e(f'v_permlane32_swap_b32 {v(reg)}, {v(tmp)}')
        e(f'{op} {v(reg)}, {v(reg)}, {v(tmp)}')

    kcur = [(0, 0)]
    for u in range(8):
        ta, tb = TK + 2*u, TK + 2*u + 1
        sa, sb = slot_of[ta] * SLOT, slot_of[tb] * SLOT
        pa, pb = kcur[0]
        da, db_ = (sa - pa) & 0xffffffff, (sb - pb) & 0xffffffff
        e(f's_cmp_lt_u32 s{sI4}, 2')
        e(f's_mov_b32 s{sT0}, {hex(db_)}')
        e(f's_cmov_b32 s{sT0}, {hex(da)}')
        for j in range(8): e(f'v_add_u32 {v(vKr[j])}, s{sT0}, {v(vKr[j])}')
        kcur[0] = (sa, sb)
        head(u, [ta, tb])
        if u in opts.get('kst', ()): stamp()
        if u == 0:
            release([TK-2, TK-1])
            for j in range(8):
                e(f'ds_read_b128 {v(QF+4*j,4)}, {v(vT[2])} offset:{j*1024}')
        else:
            release([ta-2, tb-2])
            if u == 1: free.append(QI // SLOT); free.sort()
        for j in range(8):
            e(f'ds_read_b128 {v(KF+4*j,4)}, {v(vKr[j])}')
        if u == 0: setup_w()
        tail(u)
        if u in wo_read_at: wo_read(wo_read_at[u])
        if u >= 1:
            Sp = S0 + 16 * (u - 1)
            if u == 1: e(f'v_max3_f32 {v(vM)}, {v(Sp)}, {v(Sp+1)}, {v(Sp+2)}'); st = 3
            else: st = 0
            for i in range(st, 15, 2): e(f'v_max3_f32 {v(vM)}, {v(vM)}, {v(Sp+i)}, {v(Sp+i+1)}')
            if u == 1: e(f'v_max_f32 {v(vM)}, {v(vM)}, {v(Sp+15)}')
        Sb = S0 + 16 * u
        for j in range(8):
            c = '0' if j == 0 else v(Sb, 16)
            e(f'v_mfma_f32_32x32x16_bf16 {v(Sb,16)}, {v(KF+4*j,4)}, {v(QF+4*j,4)}, {c}')
        if u == 0:
            with e.only('C'):
                lw = e.newlabel('Llead')
                saved = list(e.vm['C'])
                e(f's_cmp_lg_u32 s2, 0')
                e(f's_cbranch_scc1 {lw}')
                e(f's_mov_b64 exec, 1')
                e(f'buffer_load_dword {v(TK0+1)}, {v(TK0)}, {srd(sWS)}, 0 offen sc1', tag='EP')
                e.wait_vm_all()
                e(f'v_add_u32 {v(TK0+1)}, 1, {v(TK0+1)}')
                e(f'v_or_b32 {v(TK0+1)}, 0x80000000, {v(TK0+1)}')
                e(f'buffer_store_dword {v(TK0+1)}, {v(TK0+2)}, {srd(sDBG)}, 0 offen sc1', tag='EPS')
                e(f'buffer_store_dword {v(TK0+1)}, {v(TK0)}, {srd(sWS)}, 0 offen sc1', tag='EPS')
                e(f's_mov_b64 exec, -1')
                e.label(lw)
                e.vm['C'] = saved
        if u == 1: setup_v()
        if u == 6:
            e(f'buffer_load_dword {v(TK0+1)}, {v(TK0+2)}, {srd(sDBG)}, 0 offen', tag='TKL')
    Sp = S0 + 16 * 7
    for i in range(0, 16, 2): e(f'v_max3_f32 {v(vM)}, {v(vM)}, {v(Sp+i)}, {v(Sp+i+1)}')
    xswap(vM, vT[0], 'v_max_f32')
    e(f'ds_write_b32 {v(vMo)}, {v(vM)}')
    stamp()

    def softmax(u):
        Sb = S0 + 16 * u
        g = [f'v_pk_fma_f32 {v(Sb+i,2)}, {v(Sb+i,2)}, s[{sC}:{sC+1}], {v(vNm,2)} op_sel_hi:[1,0,0]' for i in range(0, 16, 2)]
        g += [f'v_exp_f32 {v(Sb+i)}, {v(Sb+i)}' for i in range(16)]
        if u == 0:
            g += [f'v_pk_add_f32 {v(vL,2)}, {v(Sb,2)}, {v(Sb+2,2)}'] + [f'v_pk_add_f32 {v(vL,2)}, {v(vL,2)}, {v(Sb+i,2)}' for i in range(4, 16, 2)]
        else:
            g += [f'v_pk_add_f32 {v(vL,2)}, {v(vL,2)}, {v(Sb+i,2)}' for i in range(0, 16, 2)]
        g += [f'v_cvt_pk_bf16_f32 {v(Sb+i)}, {v(Sb+2*i)}, {v(Sb+2*i+1)}' for i in range(8)]
        return g

    head(8, [])
    release([TV-2, TV-1])
    e(f'ds_read_b128 {v(vT[0],4)}, {v(vMxA)}')
    tail(8)
    e(f'v_max3_f32 {v(vM)}, {v(vT[0])}, {v(vT[1])}, {v(vT[2])}')
    e(f'v_max_f32 {v(vM)}, {v(vM)}, {v(vT[3])}')
    e(f'v_mul_f32 {v(vNm)}, s{sC}, {v(vM)}')
    e(f'v_sub_f32 {v(vNm)}, 0, {v(vNm)}')
    for x in softmax(0): e(x)

    O = 96
    VF = 64
    TM = 80
    vTok = TK0 + 1
    vLse, vRl = 36, 37
    RG = [40, up(15)]
    sRX = sKs
    def rx_loads():
        for j in range(2):
            e(f'buffer_load_dwordx4 {v(RG[j],4)}, {v(vLin)}, {srd(sWS)}, s{sRX} offen offset:{j*1024} sc1', tag='RX')
    def red_write():
        for k in range(1, 4):
            e(f'v_xor_b32 {v(vT[k])}, {k*2048}, {v(vRr)}')
        for k in range(1, 4):
            e(f'ds_write_b128 {v(vT[k])}, {v(O+8*k,4)} offset:{(k-1)*SLOT}')
            e(f'ds_write_b128 {v(vT[k])}, {v(O+8*k+4,4)} offset:{(k-1)*SLOT + 1024}')
    for t in range(16):
        step = 9 + t; n = TV + t; p, u = t // 8, t % 8
        head(step, [n])
        if t in opts.get('vst', ()): stamp()
        if t >= 1: release([n - 1])
        off = slot_of[n] * SLOT
        for k in range(4):
            s_, d2 = k // 2, k % 2
            e(f'ds_read_b64_tr_b16 {v(VF+4*k,2)}, {v(vVr[d2])} offset:{off + s_*2048}')
            e(f'ds_read_b64_tr_b16 {v(VF+4*k+2,2)}, {v(vVr[d2])} offset:{off + s_*2048 + 1024}')
        tail(step)
        if t == 3:
            lp = e.newlabel('Ltk'); ld = e.newlabel('Ltkd')
            e(f's_mov_b32 s{sT3}, 0x20000')
            e.wait_vm('TKL')
            saved = {r: list(e.vm[r]) for r in e.vm}
            e.label(lp)
            e(f'v_readfirstlane_b32 s{sT1}, {v(vTok)}')
            e(f's_cmp_lg_u32 s{sT1}, 0')
            e(f's_cbranch_scc1 {ld}')
            e(f's_sub_u32 s{sT3}, s{sT3}, 1')
            e(f's_cmp_eq_u32 s{sT3}, 0')
            e(f's_cbranch_scc1 {ld}')
            e(f's_sleep 8')
            e(f'buffer_load_dword {v(vTok)}, {v(TK0+2)}, {srd(sDBG)}, 0 offen sc1', tag='TKL')
            e.wait_vm_all()
            e(f's_branch {lp}')
            e.vm = saved
            e.label(ld)
        if t == 7:
            e(f'ds_read_b128 {v(TM,4)}, {v(vMxA)} offset:1024')
            e(f's_xor_b32 s{sRX}, s2, 16'); e(f's_lshl_b32 s{sRX}, s{sRX}, 14'); e(f's_add_u32 s{sRX}, s{sRX}, {hex(WS_OX)}')
            e(f's_add_u32 s{sRX}, s{sRX}, s{sW2k}')
            e(f'v_add_f32 {v(TM)}, {v(TM)}, {v(TM+1)}')
            e(f'v_add_f32 {v(TM+2)}, {v(TM+2)}, {v(TM+3)}')
            e(f'v_add_f32 {v(TM)}, {v(TM)}, {v(TM+2)}')
            e(f'v_log_f32 {v(TM+1)}, {v(TM)}')
            e(f'v_rcp_f32 {v(vRl)}, {v(TM)}')
            e(f'v_sub_f32 {v(vLse)}, {v(TM+1)}, {v(vNm)}')
        if t == 8:
            for k in range(1, 4):
                e(f'ds_read_b128 {v(TM+8,4)}, {v(vRr)} offset:{(k-1)*SLOT}')
                e(f'ds_read_b128 {v(TM+12,4)}, {v(vRr)} offset:{(k-1)*SLOT + 1024}')
                for i in range(0, 8, 2):
                    e(f'v_pk_add_f32 {v(TM+i,2)}, {v(TM+i,2)}, {v(TM+8+i,2)}')
            for i in range(8): e(f'v_mul_f32 {v(TM+i)}, {v(TM+i)}, {v(vRl)}')
            e(f's_xor_b32 s{sT1}, s{sRX}, {hex(16 << 14)}')
            for i in range(3): e(f'v_cvt_pk_bf16_f32 {v(TM+8+i)}, {v(TM+2*i)}, {v(TM+2*i+1)}')
            e(f'v_mov_b32 {v(TM+11)}, {v(vTok)}')
            e(f'v_cvt_pk_bf16_f32 {v(TM+12)}, {v(TM+6)}, {v(TM+7)}')
            e(f'v_mov_b32 {v(TM+13)}, {v(vLse)}')
            e(f'v_mov_b32 {v(TM+15)}, {v(vTok)}')
            e(f'buffer_store_dwordx4 {v(TM+8,4)}, {v(vLin)}, {srd(sWS)}, s{sT1} offen sc1', tag='OX')
            e(f'buffer_store_dwordx4 {v(TM+12,4)}, {v(vLin)}, {srd(sWS)}, s{sT1} offen offset:1024 sc1', tag='OX')
        if t == opts.get('rxat', 13): rx_loads()
        if step in wo_read_at: wo_read(wo_read_at[step])
        sm = softmax(u + 1) if (p == 0 and u < 7) else []
        cuts = [0, 10, 20, 30, len(sm)] if sm else [0]*5
        for k in range(4):
            s_, d2 = k // 2, k % 2
            for x in sm[cuts[k]:cuts[k+1]]: e(x)
            c = '0' if (u == 0 and s_ == 0) else v(O+16*d2, 16)
            e(f'v_mfma_f32_32x32x16_bf16 {v(O+16*d2,16)}, {v(VF+4*k,4)}, {v(S0+16*u+4*s_,4)}, {c}')
        if t == 6:
            e(f'v_add_f32 {v(vL)}, {v(vL)}, {v(vL+1)}')
            xswap(vL, vT[0], 'v_add_f32')
            e(f'ds_write_b32 {v(vMo)}, {v(vL)} offset:1024')
        if t == 7:
            red_write()
            for i in range(8): e(f'v_mov_b32 {v(TM+i)}, {v(O+i)}')
            stamp()
    assert WS_OX % (32 << 14) == 0 and RS % 16384 == 0
    stamp()
    red_write()
    lp = e.newlabel('Lrx'); ld = e.newlabel('Lrxd')
    e(f's_mov_b32 s{sT3}, 0x20000')
    e.label(lp)
    e.wait_vm_all()
    e(f'v_xor_b32 {v(TM)}, {v(RG[0]+3)}, {v(vTok)}')
    e(f'v_xor_b32 {v(TM+1)}, {v(RG[1]+3)}, {v(vTok)}')
    e(f'v_or_b32 {v(TM)}, {v(TM)}, {v(TM+1)}')
    e(f'v_cmp_ne_u32 vcc, 0, {v(TM)}')
    e.nop(4)
    e(f's_cbranch_vccz {ld}')
    e(f's_sub_u32 s{sT3}, s{sT3}, 1')
    e(f's_cmp_eq_u32 s{sT3}, 0')
    e(f's_cbranch_scc1 {ld}')
    e(f's_sleep 8')
    rx_loads()
    e(f's_branch {lp}')
    for r in e.vm: e.vm[r] = []
    e.label(ld)
    e(f's_mov_b32 s{sT3}, 0xffff0000')
    t0, t1 = 38, 39
    e(f'v_sub_f32 {v(t0)}, {v(vLse)}, {v(RG[1]+1)}')
    e(f'v_sub_f32 {v(t1)}, {v(RG[1]+1)}, {v(vLse)}')
    e(f'v_exp_f32 {v(t0)}, {v(t0)}'); e(f'v_exp_f32 {v(t1)}, {v(t1)}')
    e(f'v_add_f32 {v(t0)}, 1.0, {v(t0)}'); e(f'v_add_f32 {v(t1)}, 1.0, {v(t1)}')
    e(f'v_rcp_f32 {v(t0)}, {v(t0)}'); e(f'v_rcp_f32 {v(t1)}, {v(t1)}')
    gsrc = [RG[0], RG[0]+1, RG[0]+2, RG[1]]
    for i in range(4):
        e(f'v_lshlrev_b32 {v(TM+2*i)}, 16, {v(gsrc[i])}'); e(f'v_and_b32 {v(TM+2*i+1)}, s{sT3}, {v(gsrc[i])}')
    e(f'v_mul_f32 {v(t1)}, {v(t1)}, {v(vRl)}')
    for i in range(8): e(f'v_mul_f32 {v(TM+i)}, {v(TM+i)}, {v(t0)}')
    OI = slot_of[TEND-2] * SLOT
    e(f's_add_u32 s{sT1}, s{sW1k}, {OI}')
    e(f'v_add_u32 {v(vT[0])}, s{sT1}, {v(vLin)}')
    e(f's_and_b32 s{sT2}, s{sWave}, 1'); e(f's_lshl_b32 s{sT0}, s{sT2}, 3'); e(f's_lshl_b32 s{sT1}, s{sT2}, 8')
    e(f'v_add_u32 {v(vRw)}, s{sT1}, {v(vOr)}')
    e.wait_lg(0)
    e('s_barrier')
    for k in range(1, 4):
        e(f'ds_read_b128 {v(O+8*k,4)}, {v(vRr)} offset:{(k-1)*SLOT}')
        e(f'ds_read_b128 {v(O+8*k+4,4)}, {v(vRr)} offset:{(k-1)*SLOT + 1024}')
    for k in range(1, 4):
        for i in range(0, 8, 2):
            e(f'v_pk_add_f32 {v(O+i,2)}, {v(O+i,2)}, {v(O+8*k+i,2)}')
    for i in range(8): e(f'v_fma_f32 {v(O+i)}, {v(O+i)}, {v(t1)}, {v(TM+i)}')
    for i in range(4): e(f'v_cvt_pk_bf16_f32 {v(TM+i)}, {v(O+2*i)}, {v(O+2*i+1)}')
    e(f'ds_write_b128 {v(vT[0])}, {v(TM,4)}')
    e.wait_lg(0)
    e('s_barrier')
    lo = lambda k: S0 + 16 * (k // 2) + 4 * (k % 2)
    for ck in range(4):
        for qt in range(2):
            e(f'ds_read_b128 {v(lo(2*ck+qt),4)}, {v(vOr)} offset:{OI + ck*2048 + qt*256}')
        e(f'ds_read_b128 {v(lo(8+ck),4)}, {v(vRw)} offset:{OI + ck*2048}')
    e(f's_mul_i32 s{sT1}, s2, {PART_BYTES}')
    e(f's_lshr_b32 s{sT3}, s{sWave}, 1'); e(f's_lshl_b32 s{sT3}, s{sT3}, 10'); e(f's_add_u32 s{sT3}, s{sT3}, s{sT0}')
    e(f's_add_u32 s{sT3}, s{sT3}, s{sT1}'); e(f's_add_u32 s{sT3}, s{sT3}, 32768')
    e(f's_lshl_b32 s{sT2}, s{sWave}, 12'); e(f's_add_u32 s{sT1}, s{sT1}, s{sT2}')
    AC = 84
    DD = [120, 124, 64, 68]
    for ck in range(4):
        for j in range(4):
            for qt in range(2):
                A0 = AC + 8*j + 4*qt
                c = '0' if ck == 0 else v(A0, 4)
                e(f'v_mfma_f32_16x16x32_bf16 {v(A0,4)}, {v(WF[ck][j],4)}, {v(lo(2*ck+qt),4)}, {c}')
        c = '0' if ck == 0 else v(AC+32, 4)
        e(f'v_mfma_f32_16x16x32_bf16 {v(AC+32,4)}, {v(WF[ck][4],4)}, {v(lo(8+ck),4)}, {c}')
    for j in range(4):
        D = DD[j]
        for qt in range(2):
            A0 = AC + 8*j + 4*qt
            e(f'v_cvt_pk_bf16_f32 {v(D+2*qt)}, {v(A0)}, {v(A0+1)}')
            e(f'v_cvt_pk_bf16_f32 {v(D+2*qt+1)}, {v(A0+2)}, {v(A0+3)}')
        e(f'buffer_store_dwordx4 {v(D,4)}, {v(vLin)}, {srd(sWS)}, s{sT1} offen offset:{j*1024}{st_pol}', tag='OUT')
    e(f'v_cvt_pk_bf16_f32 {v(72)}, {v(AC+32)}, {v(AC+33)}')
    e(f'v_cvt_pk_bf16_f32 {v(73)}, {v(AC+34)}, {v(AC+35)}')
    e(f'buffer_store_dwordx2 {v(72,2)}, {v(vLin)}, {srd(sWS)}, s{sT3} offen{st_pol}', tag='OUT')
    if stamps:
        stamp()
        e.wait_vm_all()
        stamp()
        e(f's_cmp_lg_u32 s{sWave}, 0'); e('s_cbranch_scc1 L_end1')
        e(f's_lshl_b32 s{sT1}, s2, 7'); e(f's_add_u32 s{sT1}, s{sT1}, {hex(WS_STAMP)}')
        e('s_mov_b64 exec, 1')
        e(f'v_mov_b32 {v(vT[2])}, 0')
        for i in range(16):
            if i < nstamp[0]:
                e(f'v_mov_b32 {v(vT[0])}, s{sStamp+2*i}'); e(f'v_mov_b32 {v(vT[1])}, s{sStamp+2*i+1}')
            else:
                e(f'v_mov_b32 {v(vT[0])}, 0'); e(f'v_mov_b32 {v(vT[1])}, 0')
            e(f'buffer_store_dwordx2 {v(vT[0],2)}, {v(vT[2])}, {srd(sWS)}, s{sT1} offen offset:{8*i}')
            e.nop(2)
    e.label('L_end1')
    e('s_endpgm')
    k1_lines = e.lines
    n1 = e.ninst
    k2_lines = gen_k2(k2_pol)

    hdr = open('standalone__sliding_block_cached__sampling.s.ref').read().split('\n')
    hdr = [l for l in hdr if l.startswith(';') and '@launch' not in l and 'Override' not in l and 'grid=ceil' not in l]
    out = hdr + [
        f'; @launch kernel={K1} grid=(256,1,1) block=(512,1,1) lds={LDS_BYTES}',
        f'; @launch kernel={K2} grid=(288,1,1) block=(256,1,1) lds=8192',
        '.amdgcn_target "amdgcn-amd-amdhsa--gfx950"', '.text'] + k1_lines + k2_lines
    def kd(name, nv, ns, acc):
        return ['.section .rodata,"a"', '.p2align 6', f'.amdhsa_kernel {name}',
                f'  .amdhsa_next_free_vgpr {nv}', f'  .amdhsa_next_free_sgpr {ns}', f'  .amdhsa_accum_offset {acc}',
                '  .amdhsa_group_segment_fixed_size 0', '  .amdhsa_kernarg_size 64', '  .amdhsa_user_sgpr_count 2',
                '  .amdhsa_user_sgpr_kernarg_segment_ptr 1', '  .amdhsa_system_sgpr_workgroup_id_x 1', '.end_amdhsa_kernel']
    out += kd(K1, 256, 102, 256) + kd(K2, 56, 32, 56)
    print('K1 instrs', n1, 'QI', QI, 'slots', [slot_of[n] for n in range(TEND)], file=sys.stderr)
    return '\n'.join(out) + '\n'

if __name__ == '__main__':
    E = 'exp/'
    st = dict(stamps=True, vst=(0, 4, 12), kst=(0, 2, 4, 6), qst=(0, 4))
    open(E + 'v8.s', 'w').write(gen({}))
    open(E + 'v8s.s', 'w').write(gen(dict(st)))
    open(E + 'v8n1.s', 'w').write(gen(dict(st, nokv=True, nowo=True)))
```

```python
import sys, math, struct
from emit import Emitter
from gen6 import gen_k2, f32bits, K1, K2

SLOT = 16384
NSLOT = 7
SCR = NSLOT * SLOT
MX = SCR + 40960
LS = MX + 1024
TOK = LS + 1024
LDS_BYTES = TOK + 64
RS = 4 * SLOT
WS_EPOCH = 0x1000000
WS_OX = 0x1100000
WS_STAMP = 0x20000000
PART_BYTES = 36864
NW, NK, NV = 18, 16, 16
TK, TV, TEND = NW, NW + NK, NW + NK + NV

def gen(opts):
    stamps = opts.get('stamps', False)
    st_pol = opts.get('st_pol', ' sc1'); k2_pol = opts.get('k2_pol', '')
    wq_pol = opts.get('wq_pol', ''); wo_pol = opts.get('wo_pol', ''); x_pol = opts.get('x_pol', '')
    e = Emitter(roles=('A', 'C'))
    sK, sV, sWQ, sX, sWO, sWS, sDBG = 20, 24, 28, 32, 36, 40, 44
    sWave, sHkv, sB, sSp = 48, 49, 50, 51
    sW2k, sT0, sT1, sT2, sT3 = 52, 53, 54, 55, 56
    sWQb, sWOb, sKc = 57, 58, 59
    sC = 60
    sKs, sG0, sVb, sW1k = 62, 63, 64, 65
    sStamp = 66
    sI4, sHH = 98, 99
    sXc, sXb = 100, 101
    nstamp = [0]
    srd = lambda n: f's[{n}:{n+3}]'
    e.role_cond[frozenset('C')] = (f's_cmp_eq_u32 s{sWave}, 7', 's_cbranch_scc0')
    e.role_cond[frozenset('A')] = (f's_cmp_eq_u32 s{sWave}, 7', 's_cbranch_scc1')
    def stamp():
        if stamps:
            i = nstamp[0]; nstamp[0] += 1
            assert i < 16
            e.wait_lg(0)
            e(f's_memrealtime s[{sStamp+2*i}:{sStamp+2*i+1}]')
            e.wait_lg(0)
    def forget(tag):
        e.vm['C'] = [x for x in e.vm['C'] if x[0] != tag]
    v = lambda n, c=1: f'v{n}' if c == 1 else f'v[{n}:{n+c-1}]'
    vLin, vLc, vLr = 1, 2, 3
    vKd = [4, 5]; vVd = 6; vVr = [7, 8]; vKr = list(range(9, 17))
    vWr = 17; vWx = 18; vMxA = 19; vMo = 20; vOr = 21
    vL = 22
    vNm = 24; vM = 25; vRw = 26; vRr = 27
    vT = [28, 29, 30, 31]
    S0 = 128; QF = 96; KF = 64; W0R = 44
    vWd = [128, 129]; vXd = 130; vQr = [132, 133]; vXb = [134, 135, 136, 137]; vXa = [138, 139, 140, 141]
    QA = 160; QB = 176; QACC = 224
    TK0 = 32

    e.raw(f'.globl {K1}'); e.raw('.p2align 8'); e.raw(f'.type {K1},@function'); e.label(K1)
    e('s_cmp_ge_u32 s2, 256')
    e('s_cbranch_scc1 L_end1')
    e('s_load_dwordx16 s[4:19], s[0:1], 0')
    if stamps:
        e(f's_memrealtime s[{sStamp}:{sStamp+1}]'); nstamp[0] = 1
    e(f'v_lshrrev_b32 {v(vT[0])}, 6, v0')
    e(f'v_and_b32 v0, 63, v0')
    e(f'v_readfirstlane_b32 s{sWave}, {v(vT[0])}')
    e(f's_and_b32 s{sHkv}, s2, 7'); e(f's_lshl_b32 s{sHkv}, s{sHkv}, 1')
    e(f's_bfe_u32 s{sT0}, s2, 0x10003'); e(f's_or_b32 s{sHkv}, s{sHkv}, s{sT0}')
    e(f's_lshr_b32 s{sB}, s2, 5')
    e(f'v_lshrrev_b32 {v(vT[0])}, 5, v0')
    e(f'v_and_b32 {v(vT[1])}, 31, v0')
    e(f'v_lshlrev_b32 {v(vT[2])}, 2, {v(vT[0])}')
    e(f'v_xor_b32 {v(vT[1])}, {v(vT[1])}, {v(vT[2])}')
    e(f'v_lshlrev_b32 {v(vT[1])}, 4, {v(vT[1])}')
    e(f'v_lshl_add_u32 {v(vWd[0])}, {v(vT[0])}, 13, {v(vT[1])}')
    e(f'v_xor_b32 {v(vWd[1])}, 0x80, {v(vWd[0])}')
    e(f'v_add_u32 {v(vWd[1])}, {16384-1024}, {v(vWd[1])}')
    e(f's_lshl_b32 s{sW2k}, s{sWave}, 11')
    e(f's_lshl_b32 s{sWQb}, s{sWave}, 15'); e(f's_lshl_b32 s{sT1}, s{sHkv}, 9'); e(f's_add_u32 s{sWQb}, s{sWQb}, s{sT1}')
    e(f's_bfe_u32 s{sKs}, s2, 0x20003'); e(f's_lshl1_add_u32 s{sKs}, s{sKs}, s{sB}')
    e(f's_cmp_ge_u32 s{sKs}, 9'); e(f's_cselect_b32 s{sT1}, 9, 0'); e(f's_sub_u32 s{sKs}, s{sKs}, s{sT1}')
    if not opts.get('rot', True): e(f's_mov_b32 s{sKs}, 0')
    e(f's_mov_b32 s{sKc}, s{sKs}')
    e(f's_and_b32 s{sI4}, s{sWave}, 3'); e(f's_lshr_b32 s{sHH}, s{sWave}, 2')
    e(f'v_lshrrev_b32 {v(vT[0])}, 3, v0')
    e(f'v_lshrrev_b32 {v(vLr)}, 4, v0')
    e(f's_and_b32 s{sT1}, s{sWave}, 1'); e(f's_lshl_b32 s{sT1}, s{sT1}, 2')
    e(f'v_or_b32 {v(vT[1])}, s{sT1}, {v(vLr)}')
    e(f'v_and_b32 {v(vT[2])}, 7, v0')
    e(f'v_xor_b32 {v(vT[1])}, {v(vT[1])}, {v(vT[2])}')
    e(f's_movk_i32 s{sT1}, 1152')
    e(f'v_mul_lo_u32 {v(vT[0])}, {v(vT[0])}, s{sT1}')
    e(f'v_lshl_add_u32 {v(vXd)}, {v(vT[1])}, 4, {v(vT[0])}')
    e(f's_mul_i32 s{sXb}, s{sB}, 36864'); e(f's_mul_i32 s{sT0}, s{sI4}, 9216'); e(f's_add_u32 s{sXb}, s{sXb}, s{sT0}')
    e(f's_add_u32 s{sXc}, s{sKs}, s{sHH}'); e(f's_cmp_eq_u32 s{sXc}, 9'); e(f's_cselect_b32 s{sXc}, 0, s{sXc}')
    e(f's_lshl_b32 s{sT2}, s{sI4}, 10'); e(f's_add_u32 s{sT2}, s{sT2}, {SCR}')
    e(f's_lshl_b32 s{sW1k}, s{sWave}, 10')
    e.wait_lg(0)
    e(f's_mov_b32 s{sX}, s4'); e(f's_mov_b32 s{sX+1}, s5'); e(f's_mov_b32 s{sX+2}, {256*1152}'); e(f's_mov_b32 s{sX+3}, 0x20000')
    e(f's_mov_b32 s{sWQ}, s10'); e(f's_mov_b32 s{sWQ+1}, s11'); e(f's_mov_b32 s{sWQ+2}, {576*8192}'); e(f's_mov_b32 s{sWQ+3}, 0x20000')

    slot_of = {}
    free = list(range(NSLOT))
    nxt = [0]
    def x_dma(k):
        e(f's_lshl_b32 s{sT1}, s{sXc}, 12'); e(f's_add_u32 m0, s{sT1}, s{sT2}')
        e(f's_lshl_b32 s{sT1}, s{sXc}, 7'); e(f's_add_u32 s{sT1}, s{sT1}, s{sXb}')
        e(f'buffer_load_dwordx4 {v(vXd)}, {srd(sX)}, s{sT1} offen{x_pol} lds', tag=f'X{k}')
        if k < 4:
            e(f's_add_u32 s{sXc}, s{sXc}, 2'); e(f's_cmp_ge_u32 s{sXc}, 9'); e(f's_cselect_b32 s{sT1}, 9, 0'); e(f's_sub_u32 s{sXc}, s{sXc}, s{sT1}')
    def dma_tile(n):
        slot = slot_of[n]
        if n < TK and n % 4 == 0: x_dma(n // 4)
        e(f's_add_u32 m0, s{sW2k}, {slot*SLOT}')
        if n < TK:
            if n % 2 == 0:
                e(f's_lshl_b32 s{sG0}, s{sKs}, 19'); e(f's_add_u32 s{sG0}, s{sG0}, s{sWQb}')
            else:
                e(f's_add_u32 s{sG0}, s{sG0}, {32*8192}')
            for i in range(2):
                e(f'buffer_load_dwordx4 {v(vWd[i])}, {srd(sWQ)}, s{sG0} offen offset:{i*1024}{wq_pol} lds', tag=f'T{n}')
            if n % 2 == 1 and n < TK - 1:
                e(f's_add_u32 s{sKs}, s{sKs}, 1'); e(f's_cmp_eq_u32 s{sKs}, 9'); e(f's_cselect_b32 s{sKs}, 0, s{sKs}')
        elif opts.get('nokv'):
            pass
        elif n < TV:
            e(f's_add_u32 s{sT1}, s{sW2k}, {(n-TK)*SLOT}')
            for i in range(2):
                e(f'buffer_load_dwordx4 {v(vKd[i])}, {srd(sK)}, s{sT1} offen offset:{i*1024} nt lds', tag=f'T{n}')
        else:
            p, u = (n - TV) // 8, (n - TV) % 8
            if n == TV + 8: e(f's_xor_b32 s{sVb}, s{sVb}, 0x80')
            e(f's_add_u32 s{sT1}, s{sVb}, {u*32768}')
            e(f'buffer_load_dwordx4 {v(vVd)}, {srd(sV)}, s{sT1} offen nt lds', tag=f'T{n}')
            e(f's_add_u32 s{sT1}, s{sT1}, 1024')
            e(f'buffer_load_dwordx4 {v(vVd)}, {srd(sV)}, s{sT1} offen offset:1024 nt lds', tag=f'T{n}')
    def issue(maxn):
        k = 0
        while nxt[0] < TEND and k < maxn:
            n = nxt[0]
            cand = [s for s in free if n < TV or s < 4]
            if not cand: break
            s = cand[0] if n >= TV else max(cand)
            free.remove(s); slot_of[n] = s; nxt[0] += 1; k += 1
            dma_tile(n)
    def release(ns):
        for n in ns: free.append(slot_of[n])
        free.sort()

    issue(2)
    issue(opts.get('w1', 1))

    e(f'v_and_b32 {v(vLc)}, 15, v0')
    e(f'v_lshlrev_b32 {v(vLin)}, 4, v0')
    e(f'v_lshrrev_b32 {v(vT[0])}, 2, {v(vLc)}')
    e(f'v_xor_b32 {v(vT[1])}, s{sWave}, {v(vT[0])}')
    e(f'v_lshlrev_b32 {v(vT[1])}, 6, {v(vT[1])}')
    e(f'v_lshl_add_u32 {v(vT[1])}, {v(vT[0])}, 9, {v(vT[1])}')
    e(f'v_lshrrev_b32 {v(vT[2])}, 5, v0')
    e(f'v_lshl_add_u32 {v(vT[1])}, {v(vT[2])}, 12, {v(vT[1])}')
    e(f'v_and_b32 {v(vT[3])}, 1, {v(vLr)}')
    e(f'v_lshl_add_u32 {v(vT[1])}, {v(vT[3])}, 5, {v(vT[1])}')
    e(f'v_and_b32 {v(vT[3])}, 3, {v(vLc)}')
    e(f'v_lshl_add_u32 {v(vQr[0])}, {v(vT[3])}, 3, {v(vT[1])}')
    e(f'v_add_u32 {v(vQr[1])}, 0x10000, {v(vQr[0])}')
    e(f'v_and_b32 {v(vT[0])}, 31, v0')
    e(f'v_bfe_u32 {v(vT[1])}, v0, 1, 3')
    e(f'v_xor_b32 {v(vT[1])}, {v(vT[1])}, {v(vT[2])}')
    e(f'v_lshlrev_b32 {v(vT[1])}, 4, {v(vT[1])}')
    e(f'v_lshl_add_u32 {v(vXb[0])}, {v(vT[0])}, 7, {v(vT[1])}')
    for k in range(1, 4): e(f'v_xor_b32 {v(vXb[k])}, {32*k}, {v(vXb[0])}')

    def mid_setup():
        e(f's_bfe_u32 s{sSp}, s2, 0x10004')
        e(f's_lshl_b32 s{sT0}, s{sB}, 4'); e(f's_add_u32 s{sT0}, s{sT0}, s{sHkv}'); e(f's_lshl_b32 s{sT0}, s{sT0}, 21')
        e(f's_lshl_b32 s{sT1}, s{sSp}, 18'); e(f's_add_u32 s{sT0}, s{sT0}, s{sT1}'); e(f's_add_u32 s{sT0}, s{sT0}, {6144*256}')
        e(f's_add_u32 s{sK}, s6, s{sT0}'); e(f's_addc_u32 s{sK+1}, s7, 0'); e(f's_mov_b32 s{sK+2}, 0x40000'); e(f's_mov_b32 s{sK+3}, 0x20000')
        e(f's_add_u32 s{sV}, s8, s{sT0}'); e(f's_addc_u32 s{sV+1}, s9, 0'); e(f's_mov_b32 s{sV+2}, 0x40000'); e(f's_mov_b32 s{sV+3}, 0x20000')
        e(f's_and_b32 s{sT1}, s{sWave}, 1'); e(f's_lshl_b32 s{sT1}, s{sT1}, 3')
        e(f'v_xor_b32 {v(vT[0])}, {v(vLr)}, {v(vLc)}')
        e(f'v_xor_b32 {v(vT[0])}, s{sT1}, {v(vT[0])}')
        e(f'v_lshlrev_b32 {v(vT[0])}, 4, {v(vT[0])}')
        e(f'v_lshl_add_u32 {v(vKd[0])}, {v(vLr)}, 8, {v(vT[0])}')
        e(f'v_xor_b32 {v(vKd[1])}, 64, {v(vKd[0])}')
    def setup_k():
        e(f'v_lshrrev_b32 {v(vT[0])}, 5, v0')
        e(f'v_xor_b32 {v(vT[0])}, {v(vT[0])}, {v(vLc)}')
        e(f'v_lshlrev_b32 {v(vT[0])}, 4, {v(vT[0])}')
        e(f'v_and_b32 {v(vT[1])}, 31, v0')
        e(f'v_lshl_add_u32 {v(vT[0])}, {v(vT[1])}, 8, {v(vT[0])}')
        e(f's_and_b32 s{sT1}, s{sWave}, 1'); e(f's_lshl_b32 s{sT1}, s{sT1}, 13')
        e(f'v_add_u32 {v(vKr[0])}, s{sT1}, {v(vT[0])}')
        for j in range(1, 8): e(f'v_xor_b32 {v(vKr[j])}, {32*j}, {v(vKr[0])}')
    def setup_w():
        e(f's_mov_b32 s{sWO}, s12'); e(f's_mov_b32 s{sWO+1}, s13'); e(f's_mov_b32 s{sWO+2}, {4096*1152}'); e(f's_mov_b32 s{sWO+3}, 0x20000')
        e(f's_mov_b32 s{sWS}, s18'); e(f's_mov_b32 s{sWS+1}, s19'); e(f's_mov_b32 s{sWS+2}, 0x30000000'); e(f's_mov_b32 s{sWS+3}, 0x20000')
        e(f's_mov_b32 s{sDBG}, s16'); e(f's_mov_b32 s{sDBG+1}, s17'); e(f's_mov_b32 s{sDBG+2}, 256'); e(f's_mov_b32 s{sDBG+3}, 0x20000')
        e(f's_lshl_b32 s{sT1}, s{sHkv}, 2'); e(f's_add_u32 s{sT1}, s{sT1}, s{sSp}')
        e(f's_mul_i32 s{sWOb}, s{sT1}, {64*1152}'); e(f's_add_u32 s{sWOb}, s{sWOb}, s{sW1k}')
        e(f'v_mov_b32 {v(TK0)}, {hex(WS_EPOCH)}'); e(f'v_mov_b32 {v(TK0+2)}, 0')
    def setup_v():
        e(f's_mov_b32 s{sC}, {hex(f32bits(math.log2(math.e) / math.sqrt(128.0)))}'); e(f's_mov_b32 s{sC+1}, s{sC}')
        e(f's_xor_b32 s{sT1}, s{sSp}, 1'); e(f's_lshl_b32 s{sT1}, s{sT1}, 7')
        e(f's_lshl_b32 s{sVb}, s{sWave}, 12'); e(f's_add_u32 s{sVb}, s{sVb}, s{sT1}')
        e(f'v_lshrrev_b32 {v(vT[0])}, 3, v0')
        e(f'v_and_b32 {v(vT[1])}, 1, {v(vLr)}')
        e(f'v_lshlrev_b32 {v(vT[1])}, 2, {v(vT[1])}')
        e(f'v_and_b32 {v(vT[2])}, 7, v0')
        e(f'v_xor_b32 {v(vT[1])}, {v(vT[1])}, {v(vT[2])}')
        e(f'v_lshlrev_b32 {v(vT[1])}, 4, {v(vT[1])}')
        e(f'v_lshl_add_u32 {v(vVd)}, {v(vT[0])}, 8, {v(vT[1])}')
        e(f'v_lshrrev_b32 {v(vT[0])}, 5, v0')
        e(f'v_lshrrev_b32 {v(vT[1])}, 2, {v(vLc)}')
        e(f'v_lshl_add_u32 {v(vT[0])}, {v(vT[0])}, 2, {v(vT[1])}')
        e(f'v_and_b32 {v(vT[1])}, 2, {v(vT[1])}')
        e(f'v_and_b32 {v(vT[2])}, 1, {v(vLr)}')
        e(f'v_or_b32 {v(vT[1])}, {v(vT[1])}, {v(vT[2])}')
        e(f'v_xor_b32 {v(vT[1])}, s{sI4}, {v(vT[1])}')
        e(f'v_lshlrev_b32 {v(vT[1])}, 5, {v(vT[1])}')
        e(f'v_lshl_add_u32 {v(vT[1])}, {v(vT[0])}, 7, {v(vT[1])}')
        e(f'v_and_b32 {v(vT[2])}, 3, {v(vLc)}')
        e(f'v_lshl_add_u32 {v(vT[1])}, {v(vT[2])}, 3, {v(vT[1])}')
        e(f's_lshl_b32 s{sT1}, s{sI4}, 12')
        e(f'v_add_u32 {v(vVr[0])}, s{sT1}, {v(vT[1])}')
        e(f'v_xor_b32 {v(vVr[1])}, 64, {v(vVr[0])}')
        e(f'v_lshrrev_b32 {v(vT[0])}, 5, v0')
        e(f'v_lshlrev_b32 {v(vT[0])}, 3, {v(vT[0])}')
        e(f'v_lshrrev_b32 {v(vT[1])}, 2, v0')
        e(f'v_add_u32 {v(vT[0])}, {v(vT[0])}, {v(vT[1])}')
        e(f's_movk_i32 s{sT1}, 1152')
        e(f'v_mul_lo_u32 {v(vT[0])}, {v(vT[0])}, s{sT1}')
        e(f'v_lshl_add_u32 {v(vT[0])}, {v(vT[2])}, 3, {v(vT[0])}')
        e(f's_lshl_b32 s{sT1}, s{sWave}, 7'); e(f's_add_u32 s{sT1}, s{sT1}, {SCR}')
        e(f'v_add_u32 {v(vWr)}, s{sT1}, {v(vT[0])}')
        e(f's_lshr_b32 s{sT1}, s{sWave}, 1'); e(f's_lshl_b32 s{sT1}, s{sT1}, 5'); e(f's_add_u32 s{sT1}, s{sT1}, {SCR + 1024}')
        e(f'v_add_u32 {v(vWx)}, s{sT1}, {v(vT[0])}')
        e(f'v_and_b32 {v(vT[0])}, 31, v0')
        e(f's_lshl_b32 s{sT1}, s{sHH}, 9'); e(f's_add_u32 s{sT1}, s{sT1}, {MX}')
        e(f'v_lshlrev_b32 {v(vT[0])}, 4, {v(vT[0])}')
        e(f'v_add_u32 {v(vMxA)}, s{sT1}, {v(vT[0])}')
        e(f's_lshl_b32 s{sT1}, s{sI4}, 2')
        e(f'v_add_u32 {v(vMo)}, s{sT1}, {v(vMxA)}')
        e(f's_add_u32 s{sT1}, s{sW2k}, {RS}')
        e(f'v_add_u32 {v(vRr)}, s{sT1}, {v(vLin)}')
        e(f'v_lshlrev_b32 {v(vT[1])}, 9, {v(vLr)}')
        e(f'v_lshl_add_u32 {v(vOr)}, {v(vLc)}, 4, {v(vT[1])}')
    mid_setup()

    QI = None
    def q_mf(q):
        o = 32 * (q % 2)
        for k in range(4):
            c = '0' if (q == 0 and k == 0) else v(QACC, 16)
            e(f'v_mfma_f32_32x32x16_bf16 {v(QACC,16)}, {v(QA+o+4*k,4)}, {v(QB+o+4*k,4)}, {c}')
    for q in range(9):
        e(f's_lshl_b32 s{sT1}, s{sKc}, 12'); e(f's_add_u32 s{sT1}, s{sT1}, {SCR}')
        for k in range(4): e(f'v_add_u32 {v(vXa[k])}, s{sT1}, {v(vXb[k])}')
        if q < 8:
            e(f's_add_u32 s{sKc}, s{sKc}, 1'); e(f's_cmp_eq_u32 s{sKc}, 9'); e(f's_cselect_b32 s{sKc}, 0, s{sKc}')
        e.wait_vm(f'T{2*q}', f'T{2*q+1}')
        if q == 0: issue(opts.get('w2', 4))
        e.wait_lg(0)
        e('s_barrier')
        if q in opts.get('qst', (0,)): stamp()
        o = 32 * (q % 2)
        for k in range(4):
            par, s_ = k // 2, k % 2
            off = slot_of[2*q+par] * SLOT + s_ * 8192
            r = vQr[off // 65536]; off %= 65536
            e(f'ds_read_b64_tr_b16 {v(QA+o+4*k,2)}, {v(r)} offset:{off}')
            e(f'ds_read_b64_tr_b16 {v(QA+o+4*k+2,2)}, {v(r)} offset:{off + 2048}')
            e(f'ds_read_b128 {v(QB+o+4*k,4)}, {v(vXa[k])}')
        if q >= 1:
            release([2*q-2, 2*q-1])
            if q == 8: QI = free.pop(0) * SLOT
            if nxt[0] < TK: issue(min(2, TK - nxt[0]))
            q_mf(q - 1)
            if nxt[0] >= TK and q < 8: issue(opts.get('kq', 2))
        if q == 7: setup_k()
    q_mf(8)
    e(f'v_and_b32 {v(vT[0])}, 31, v0')
    e(f'v_lshrrev_b32 {v(vT[1])}, 5, v0')
    e(f'v_lshlrev_b32 {v(vT[0])}, 4, {v(vT[0])}')
    e(f'v_lshl_add_u32 {v(vT[0])}, {v(vT[1])}, 3, {v(vT[0])}')
    e(f's_add_u32 s{sT1}, s{sW2k}, {QI}')
    e(f'v_add_u32 {v(vT[0])}, s{sT1}, {v(vT[0])}')
    e(f's_lshl_b32 s{sT1}, s{sHH}, 13'); e(f's_add_u32 s{sT1}, s{sT1}, {QI}')
    e(f'v_add_u32 {v(vT[2])}, s{sT1}, {v(vLin)}')
    for a_ in range(4):
        e(f'v_cvt_pk_bf16_f32 {v(QA+2*a_)}, {v(QACC+4*a_)}, {v(QACC+4*a_+1)}')
        e(f'v_cvt_pk_bf16_f32 {v(QA+2*a_+1)}, {v(QACC+4*a_+2)}, {v(QACC+4*a_+3)}')
        e(f'ds_write_b64 {v(vT[0])}, {v(QA+2*a_,2)} offset:{a_*512}')
    issue(2)
    stamp()

    def wo_dma(ck, ks):
        if opts.get('nowo'): return
        hh, jb = ck // 2, ck % 2
        for k in ks:
            e(f's_add_u32 m0, s{sW1k}, {SCR + k*8192}')
            e(f's_add_u32 s{sT1}, s{sWOb}, {(128*hh + 32*jb)*1152 + k*8192}')
            e(f'buffer_load_dwordx4 {v(vLin)}, {srd(sWO)}, s{sT1} offen{wo_pol} lds', tag=f'W{ck}')
    def up(k): return S0 + 16 * (k // 2) + 8 + 4 * (k % 2)
    WF = {0: [W0R + 4*j for j in range(5)]}
    for ck in range(1, 4): WF[ck] = [up(5*(ck-1) + j) for j in range(5)]
    def wo_read(ck):
        for j in range(4):
            for hf in range(2):
                e(f'ds_read_b64_tr_b16 {v(WF[ck][j]+2*hf,2)}, {v(vWr)} offset:{hf*9216 + 32*j}')
        for hf in range(2):
            e(f'ds_read_b64_tr_b16 {v(WF[ck][4]+2*hf,2)}, {v(vWx)} offset:{hf*9216}')
    wsched = opts.get('wsched', {0: ({0: (0, 1), 1: (2, 3), 2: (4,)}, 4),
                                 1: ({5: (0, 1), 6: (2, 3), 7: (4,)}, 11),
                                 2: ({12: (0, 1), 13: (2, 3), 14: (4,)}, 17),
                                 3: ({18: (0, 1), 19: (2, 3), 20: (4,)}, 23)})
    wo_dma_at = {}; wo_read_at = {}
    for ck, (d, rd) in wsched.items():
        for st, ks in d.items(): wo_dma_at[st] = (ck, ks)
        wo_read_at[rd] = ck

    def head(step, tiles):
        tags = [f'T{n}' for n in tiles]
        if step in wo_read_at: tags.append(f'W{wo_read_at[step]}')
        if tags: e.wait_vm(*tags)
        e.wait_lg(0)
        e('s_barrier')
    def tail(step):
        if step in wo_dma_at: wo_dma(*wo_dma_at[step])
        need = TK + ((2*step + 4) if step < 8 else (16 + step - 8 + 1))
        la = opts.get('la', 2)
        issue(max(0, min(3, need + la - nxt[0])))
    def xswap(reg, tmp, op):
        e(f'v_mov_b32 {v(tmp)}, {v(reg)}')
        e(f'v_permlane32_swap_b32 {v(reg)}, {v(tmp)}')
        e(f'{op} {v(reg)}, {v(reg)}, {v(tmp)}')

    kcur = [(0, 0)]
    for u in range(8):
        ta, tb = TK + 2*u, TK + 2*u + 1
        sa, sb = slot_of[ta] * SLOT, slot_of[tb] * SLOT
        pa, pb = kcur[0]
        da, db_ = (sa - pa) & 0xffffffff, (sb - pb) & 0xffffffff
        e(f's_cmp_lt_u32 s{sI4}, 2')
        e(f's_mov_b32 s{sT0}, {hex(db_)}')
        e(f's_cmov_b32 s{sT0}, {hex(da)}')
        for j in range(8): e(f'v_add_u32 {v(vKr[j])}, s{sT0}, {v(vKr[j])}')
        kcur[0] = (sa, sb)
        head(u, [ta, tb])
        if u in opts.get('kst', ()): stamp()
        if u == 0:
            release([TK-2, TK-1])
            for j in range(8):
                e(f'ds_read_b128 {v(QF+4*j,4)}, {v(vT[2])} offset:{j*1024}')
        else:
            release([ta-2, tb-2])
            if u == 1: free.append(QI // SLOT); free.sort()
        for j in range(8):
            e(f'ds_read_b128 {v(KF+4*j,4)}, {v(vKr[j])}')
        if u == 0: setup_w()
        tail(u)
        if u in wo_read_at: wo_read(wo_read_at[u])
        if u >= 1:
            Sp = S0 + 16 * (u - 1)
            if u == 1: e(f'v_max3_f32 {v(vM)}, {v(Sp)}, {v(Sp+1)}, {v(Sp+2)}'); st = 3
            else: st = 0
            for i in range(st, 15, 2): e(f'v_max3_f32 {v(vM)}, {v(vM)}, {v(Sp+i)}, {v(Sp+i+1)}')
            if u == 1: e(f'v_max_f32 {v(vM)}, {v(vM)}, {v(Sp+15)}')
        Sb = S0 + 16 * u
        for j in range(8):
            c = '0' if j == 0 else v(Sb, 16)
            e(f'v_mfma_f32_32x32x16_bf16 {v(Sb,16)}, {v(KF+4*j,4)}, {v(QF+4*j,4)}, {c}')
        if u == 0:
            with e.only('C'):
                lw = e.newlabel('Llead')
                saved = list(e.vm['C'])
                e(f's_cmp_lg_u32 s2, 0')
                e(f's_cbranch_scc1 {lw}')
                e(f's_mov_b64 exec, 1')
                e(f'buffer_load_dword {v(TK0+1)}, {v(TK0)}, {srd(sWS)}, 0 offen sc1', tag='EP')
                e.wait_vm_all()
                e(f'v_add_u32 {v(TK0+1)}, 1, {v(TK0+1)}')
                e(f'v_or_b32 {v(TK0+1)}, 0x80000000, {v(TK0+1)}')
                e(f'buffer_store_dword {v(TK0+1)}, {v(TK0+2)}, {srd(sDBG)}, 0 offen sc1', tag='EPS')
                e(f'buffer_store_dword {v(TK0+1)}, {v(TK0)}, {srd(sWS)}, 0 offen sc1', tag='EPS')
                e(f's_mov_b64 exec, -1')
                e.label(lw)
                e.vm['C'] = saved
        if u == 1: setup_v()
        if u == 6:
            e(f'buffer_load_dword {v(TK0+1)}, {v(TK0+2)}, {srd(sDBG)}, 0 offen', tag='TKL')
    Sp = S0 + 16 * 7
    for i in range(0, 16, 2): e(f'v_max3_f32 {v(vM)}, {v(vM)}, {v(Sp+i)}, {v(Sp+i+1)}')
    xswap(vM, vT[0], 'v_max_f32')
    e(f'ds_write_b32 {v(vMo)}, {v(vM)}')
    stamp()

    def softmax(u):
        Sb = S0 + 16 * u
        g = [f'v_pk_fma_f32 {v(Sb+i,2)}, {v(Sb+i,2)}, s[{sC}:{sC+1}], {v(vNm,2)} op_sel_hi:[1,0,0]' for i in range(0, 16, 2)]
        g += [f'v_exp_f32 {v(Sb+i)}, {v(Sb+i)}' for i in range(16)]
        if u == 0:
            g += [f'v_pk_add_f32 {v(vL,2)}, {v(Sb,2)}, {v(Sb+2,2)}'] + [f'v_pk_add_f32 {v(vL,2)}, {v(vL,2)}, {v(Sb+i,2)}' for i in range(4, 16, 2)]
        else:
            g += [f'v_pk_add_f32 {v(vL,2)}, {v(vL,2)}, {v(Sb+i,2)}' for i in range(0, 16, 2)]
        g += [f'v_cvt_pk_bf16_f32 {v(Sb+i)}, {v(Sb+2*i)}, {v(Sb+2*i+1)}' for i in range(8)]
        return g

    head(8, [])
    release([TV-2, TV-1])
    e(f'ds_read_b128 {v(vT[0],4)}, {v(vMxA)}')
    tail(8)
    e(f'v_max3_f32 {v(vM)}, {v(vT[0])}, {v(vT[1])}, {v(vT[2])}')
    e(f'v_max_f32 {v(vM)}, {v(vM)}, {v(vT[3])}')
    e(f'v_mul_f32 {v(vNm)}, s{sC}, {v(vM)}')
    e(f'v_sub_f32 {v(vNm)}, 0, {v(vNm)}')
    for x in softmax(0): e(x)

    O = 96
    VF = 64
    TM = 80
    vTok = TK0 + 1
    vLse, vRl = 36, 37
    RG = [40, up(15)]
    sRX = sKs
    def rx_loads():
        for j in range(2):
            e(f'buffer_load_dwordx4 {v(RG[j],4)}, {v(vLin)}, {srd(sWS)}, s{sRX} offen offset:{j*1024} sc1', tag='RX')
    def red_write():
        for k in range(1, 4):
            e(f'v_xor_b32 {v(vT[k])}, {k*2048}, {v(vRr)}')
        for k in range(1, 4):
            e(f'ds_write_b128 {v(vT[k])}, {v(O+8*k,4)} offset:{(k-1)*SLOT}')
            e(f'ds_write_b128 {v(vT[k])}, {v(O+8*k+4,4)} offset:{(k-1)*SLOT + 1024}')
    for t in range(16):
        step = 9 + t; n = TV + t; p, u = t // 8, t % 8
        head(step, [n])
        if t in opts.get('vst', ()): stamp()
        if t >= 1: release([n - 1])
        off = slot_of[n] * SLOT
        for k in range(4):
            s_, d2 = k // 2, k % 2
            e(f'ds_read_b64_tr_b16 {v(VF+4*k,2)}, {v(vVr[d2])} offset:{off + s_*2048}')
            e(f'ds_read_b64_tr_b16 {v(VF+4*k+2,2)}, {v(vVr[d2])} offset:{off + s_*2048 + 1024}')
        tail(step)
        if t == 3:
            lp = e.newlabel('Ltk'); ld = e.newlabel('Ltkd')
            e(f's_mov_b32 s{sT3}, 0x20000')
            e.wait_vm('TKL')
            saved = {r: list(e.vm[r]) for r in e.vm}
            e.label(lp)
            e(f'v_readfirstlane_b32 s{sT1}, {v(vTok)}')
            e(f's_cmp_lg_u32 s{sT1}, 0')
            e(f's_cbranch_scc1 {ld}')
            e(f's_sub_u32 s{sT3}, s{sT3}, 1')
            e(f's_cmp_eq_u32 s{sT3}, 0')
            e(f's_cbranch_scc1 {ld}')
            e(f's_sleep 8')
            e(f'buffer_load_dword {v(vTok)}, {v(TK0+2)}, {srd(sDBG)}, 0 offen sc1', tag='TKL')
            e.wait_vm_all()
            e(f's_branch {lp}')
            e.vm = saved
            e.label(ld)
        if t == 7:
            e(f'ds_read_b128 {v(TM,4)}, {v(vMxA)} offset:1024')
            e(f's_xor_b32 s{sRX}, s2, 16'); e(f's_lshl_b32 s{sRX}, s{sRX}, 14'); e(f's_add_u32 s{sRX}, s{sRX}, {hex(WS_OX)}')
            e(f's_add_u32 s{sRX}, s{sRX}, s{sW2k}')
            e(f'v_add_f32 {v(TM)}, {v(TM)}, {v(TM+1)}')
            e(f'v_add_f32 {v(TM+2)}, {v(TM+2)}, {v(TM+3)}')
            e(f'v_add_f32 {v(TM)}, {v(TM)}, {v(TM+2)}')
            e(f'v_log_f32 {v(TM+1)}, {v(TM)}')
            e(f'v_rcp_f32 {v(vRl)}, {v(TM)}')
            e(f'v_sub_f32 {v(vLse)}, {v(TM+1)}, {v(vNm)}')
        if t == 8:
            for k in range(1, 4):
                e(f'ds_read_b128 {v(TM+8,4)}, {v(vRr)} offset:{(k-1)*SLOT}')
                e(f'ds_read_b128 {v(TM+12,4)}, {v(vRr)} offset:{(k-1)*SLOT + 1024}')
                for i in range(0, 8, 2):
                    e(f'v_pk_add_f32 {v(TM+i,2)}, {v(TM+i,2)}, {v(TM+8+i,2)}')
            for i in range(8): e(f'v_mul_f32 {v(TM+i)}, {v(TM+i)}, {v(vRl)}')
            e(f's_xor_b32 s{sT1}, s{sRX}, {hex(16 << 14)}')
            for i in range(3): e(f'v_cvt_pk_bf16_f32 {v(TM+8+i)}, {v(TM+2*i)}, {v(TM+2*i+1)}')
            e(f'v_mov_b32 {v(TM+11)}, {v(vTok)}')
            e(f'v_cvt_pk_bf16_f32 {v(TM+12)}, {v(TM+6)}, {v(TM+7)}')
            e(f'v_mov_b32 {v(TM+13)}, {v(vLse)}')
            e(f'v_mov_b32 {v(TM+15)}, {v(vTok)}')
            if not opts.get('noox'):
                e(f'buffer_store_dwordx4 {v(TM+8,4)}, {v(vLin)}, {srd(sWS)}, s{sT1} offen sc1', tag='OX')
                e(f'buffer_store_dwordx4 {v(TM+12,4)}, {v(vLin)}, {srd(sWS)}, s{sT1} offen offset:1024 sc1', tag='OX')
        if t == opts.get('rxat', 13) and not opts.get('noox'): rx_loads()
        if step in wo_read_at: wo_read(wo_read_at[step])
        sm = softmax(u + 1) if (p == 0 and u < 7) else []
        cuts = [0, 10, 20, 30, len(sm)] if sm else [0]*5
        for k in range(4):
            s_, d2 = k // 2, k % 2
            for x in sm[cuts[k]:cuts[k+1]]: e(x)
            c = '0' if (u == 0 and s_ == 0) else v(O+16*d2, 16)
            e(f'v_mfma_f32_32x32x16_bf16 {v(O+16*d2,16)}, {v(VF+4*k,4)}, {v(S0+16*u+4*s_,4)}, {c}')
        if t == 6:
            e(f'v_add_f32 {v(vL)}, {v(vL)}, {v(vL+1)}')
            xswap(vL, vT[0], 'v_add_f32')
            e(f'ds_write_b32 {v(vMo)}, {v(vL)} offset:1024')
        if t == 7:
            red_write()
            for i in range(8): e(f'v_mov_b32 {v(TM+i)}, {v(O+i)}')
            stamp()
    assert WS_OX % (32 << 14) == 0 and RS % 16384 == 0
    stamp()
    red_write()
    lp = e.newlabel('Lrx'); ld = e.newlabel('Lrxd')
    e(f's_mov_b32 s{sT3}, 0x20000')
    e.label(lp)
    e.wait_vm_all()
    e(f'v_xor_b32 {v(TM)}, {v(RG[0]+3)}, {v(vTok)}')
    e(f'v_xor_b32 {v(TM+1)}, {v(RG[1]+3)}, {v(vTok)}')
    e(f'v_or_b32 {v(TM)}, {v(TM)}, {v(TM+1)}')
    e(f'v_cmp_ne_u32 vcc, 0, {v(TM)}')
    e.nop(4)
    e(f's_cbranch_vccz {ld}')
    if opts.get('noox'): e(f's_branch {ld}')
    e(f's_sub_u32 s{sT3}, s{sT3}, 1')
    e(f's_cmp_eq_u32 s{sT3}, 0')
    e(f's_cbranch_scc1 {ld}')
    e(f's_sleep 8')
    rx_loads()
    e(f's_branch {lp}')
    for r in e.vm: e.vm[r] = []
    e.label(ld)
    e(f's_mov_b32 s{sT3}, 0xffff0000')
    t0, t1 = 38, 39
    e(f'v_sub_f32 {v(t0)}, {v(vLse)}, {v(RG[1]+1)}')
    e(f'v_sub_f32 {v(t1)}, {v(RG[1]+1)}, {v(vLse)}')
    e(f'v_exp_f32 {v(t0)}, {v(t0)}'); e(f'v_exp_f32 {v(t1)}, {v(t1)}')
    e(f'v_add_f32 {v(t0)}, 1.0, {v(t0)}'); e(f'v_add_f32 {v(t1)}, 1.0, {v(t1)}')
    e(f'v_rcp_f32 {v(t0)}, {v(t0)}'); e(f'v_rcp_f32 {v(t1)}, {v(t1)}')
    gsrc = [RG[0], RG[0]+1, RG[0]+2, RG[1]]
    for i in range(4):
        e(f'v_lshlrev_b32 {v(TM+2*i)}, 16, {v(gsrc[i])}'); e(f'v_and_b32 {v(TM+2*i+1)}, s{sT3}, {v(gsrc[i])}')
    e(f'v_mul_f32 {v(t1)}, {v(t1)}, {v(vRl)}')
    for i in range(8): e(f'v_mul_f32 {v(TM+i)}, {v(TM+i)}, {v(t0)}')
    OI = slot_of[TEND-2] * SLOT
    e(f's_add_u32 s{sT1}, s{sW1k}, {OI}')
    e(f'v_add_u32 {v(vT[0])}, s{sT1}, {v(vLin)}')
    e(f's_and_b32 s{sT2}, s{sWave}, 1'); e(f's_lshl_b32 s{sT0}, s{sT2}, 3'); e(f's_lshl_b32 s{sT1}, s{sT2}, 8')
    e(f'v_add_u32 {v(vRw)}, s{sT1}, {v(vOr)}')
    e.wait_lg(0)
    e('s_barrier')
    for k in range(1, 4):
        e(f'ds_read_b128 {v(O+8*k,4)}, {v(vRr)} offset:{(k-1)*SLOT}')
        e(f'ds_read_b128 {v(O+8*k+4,4)}, {v(vRr)} offset:{(k-1)*SLOT + 1024}')
    for k in range(1, 4):
        for i in range(0, 8, 2):
            e(f'v_pk_add_f32 {v(O+i,2)}, {v(O+i,2)}, {v(O+8*k+i,2)}')
    for i in range(8): e(f'v_fma_f32 {v(O+i)}, {v(O+i)}, {v(t1)}, {v(TM+i)}')
    for i in range(4): e(f'v_cvt_pk_bf16_f32 {v(TM+i)}, {v(O+2*i)}, {v(O+2*i+1)}')
    e(f'ds_write_b128 {v(vT[0])}, {v(TM,4)}')
    e.wait_lg(0)
    e('s_barrier')
    lo = lambda k: S0 + 16 * (k // 2) + 4 * (k % 2)
    for ck in range(4):
        for qt in range(2):
            e(f'ds_read_b128 {v(lo(2*ck+qt),4)}, {v(vOr)} offset:{OI + ck*2048 + qt*256}')
    for ck in range(4):
        e(f'ds_read_b128 {v(lo(8+ck),4)}, {v(vRw)} offset:{OI + ck*2048}')
    e(f's_mul_i32 s{sT1}, s2, {PART_BYTES}')
    e(f's_lshr_b32 s{sT3}, s{sWave}, 1'); e(f's_lshl_b32 s{sT3}, s{sT3}, 10'); e(f's_add_u32 s{sT3}, s{sT3}, s{sT0}')
    e(f's_add_u32 s{sT3}, s{sT3}, s{sT1}'); e(f's_add_u32 s{sT3}, s{sT3}, 32768')
    e(f's_lshl_b32 s{sT2}, s{sWave}, 12'); e(f's_add_u32 s{sT1}, s{sT1}, s{sT2}')
    AC = 84
    DD = [120, 124, 64, 68]
    def fin(j):
        D = DD[j]
        for qt in range(2):
            A0 = AC + 8*j + 4*qt
            e(f'v_cvt_pk_bf16_f32 {v(D+2*qt)}, {v(A0)}, {v(A0+1)}')
            e(f'v_cvt_pk_bf16_f32 {v(D+2*qt+1)}, {v(A0+2)}, {v(A0+3)}')
        e(f'buffer_store_dwordx4 {v(D,4)}, {v(vLin)}, {srd(sWS)}, s{sT1} offen offset:{j*1024}{st_pol}', tag='OUT')
    for j in range(4):
        for ck in range(4):
            for qt in range(2):
                A0 = AC + 8*j + 4*qt
                c = '0' if ck == 0 else v(A0, 4)
                e(f'v_mfma_f32_16x16x32_bf16 {v(A0,4)}, {v(WF[ck][j],4)}, {v(lo(2*ck+qt),4)}, {c}')
        c = '0' if j == 0 else v(AC+32, 4)
        e(f'v_mfma_f32_16x16x32_bf16 {v(AC+32,4)}, {v(WF[j][4],4)}, {v(lo(8+j),4)}, {c}')
        if j >= 1: fin(j - 1)
    fin(3)
    e(f'v_cvt_pk_bf16_f32 {v(72)}, {v(AC+32)}, {v(AC+33)}')
    e(f'v_cvt_pk_bf16_f32 {v(73)}, {v(AC+34)}, {v(AC+35)}')
    e(f'buffer_store_dwordx2 {v(72,2)}, {v(vLin)}, {srd(sWS)}, s{sT3} offen{st_pol}', tag='OUT')
    if stamps:
        stamp()
        e.wait_vm_all()
        stamp()
        e(f's_cmp_lg_u32 s{sWave}, 0'); e('s_cbranch_scc1 L_end1')
        e(f's_lshl_b32 s{sT1}, s2, 7'); e(f's_add_u32 s{sT1}, s{sT1}, {hex(WS_STAMP)}')
        e('s_mov_b64 exec, 1')
        e(f'v_mov_b32 {v(vT[2])}, 0')
        for i in range(16):
            if i < nstamp[0]:
                e(f'v_mov_b32 {v(vT[0])}, s{sStamp+2*i}'); e(f'v_mov_b32 {v(vT[1])}, s{sStamp+2*i+1}')
            else:
                e(f'v_mov_b32 {v(vT[0])}, 0'); e(f'v_mov_b32 {v(vT[1])}, 0')
            e(f'buffer_store_dwordx2 {v(vT[0],2)}, {v(vT[2])}, {srd(sWS)}, s{sT1} offen offset:{8*i}')
            e.nop(2)
    e.label('L_end1')
    e('s_endpgm')
    k1_lines = e.lines
    n1 = e.ninst
    k2_lines = gen_k2(k2_pol)

    hdr = open('standalone__sliding_block_cached__sampling.s.ref').read().split('\n')
    hdr = [l for l in hdr if l.startswith(';') and '@launch' not in l and 'Override' not in l and 'grid=ceil' not in l]
    out = hdr + [
        f'; @launch kernel={K1} grid=(256,1,1) block=(512,1,1) lds={LDS_BYTES}',
        f'; @launch kernel={K2} grid=(288,1,1) block=(256,1,1) lds=8192',
        '.amdgcn_target "amdgcn-amd-amdhsa--gfx950"', '.text'] + k1_lines + k2_lines
    def kd(name, nv, ns, acc):
        return ['.section .rodata,"a"', '.p2align 6', f'.amdhsa_kernel {name}',
                f'  .amdhsa_next_free_vgpr {nv}', f'  .amdhsa_next_free_sgpr {ns}', f'  .amdhsa_accum_offset {acc}',
                '  .amdhsa_group_segment_fixed_size 0', '  .amdhsa_kernarg_size 64', '  .amdhsa_user_sgpr_count 2',
                '  .amdhsa_user_sgpr_kernarg_segment_ptr 1', '  .amdhsa_system_sgpr_workgroup_id_x 1', '.end_amdhsa_kernel']
    out += kd(K1, 256, 102, 256) + kd(K2, 56, 32, 56)
    print('K1 instrs', n1, 'QI', QI, 'slots', [slot_of[n] for n in range(TEND)], file=sys.stderr)
    return '\n'.join(out) + '\n'

if __name__ == '__main__':
    E = 'exp/'
    st = dict(stamps=True, vst=(0, 4, 12), kst=(0, 2, 4, 6), qst=(0, 4))
    open(E + 'v12.s', 'w').write(gen({}))
    open(E + 'v12s.s', 'w').write(gen(dict(st)))
    open(E + 'v12a.s', 'w').write(gen(dict(w1=0, w2=5)))
    open(E + 'v12b.s', 'w').write(gen(dict(w1=2, w2=3)))
    open(E + 'v12c.s', 'w').write(gen(dict(w1=5, w2=0)))
```

```python
import sys, math, struct
from emit import Emitter
from gen6 import f32bits
K1 = 'standalone__sliding_block_cached__sampling_kernel'
PB48 = 49152

SLOT = 16384
NSLOT = 7
SCR = NSLOT * SLOT
MX = SCR + 40960
LS = MX + 1024
TOK = LS + 1024
LDS_BYTES = TOK + 64
RS = 4 * SLOT
WS_EPOCH = 0x1000000
WS_OX = 0x1100000
WS_STAMP = 0x20000000
PART_BYTES = 36864
NW, NK, NV = 18, 16, 16
TK, TV, TEND = NW, NW + NK, NW + NK + NV

def gen(opts):
    stamps = opts.get('stamps', False)
    st_pol = opts.get('st_pol', ' sc1'); k2_pol = opts.get('k2_pol', '')
    wq_pol = opts.get('wq_pol', ''); wo_pol = opts.get('wo_pol', ''); x_pol = opts.get('x_pol', '')
    e = Emitter(roles=('A', 'C'))
    sK, sV, sWQ, sX, sWO, sWS, sDBG = 20, 24, 28, 32, 36, 40, 44
    sWave, sHkv, sB, sSp = 48, 49, 50, 51
    sW2k, sT0, sT1, sT2, sT3 = 52, 53, 54, 55, 56
    sWQb, sWOb, sKc = 57, 58, 59
    sC = 60
    sKs, sG0, sVb, sW1k = 62, 63, 64, 65
    sStamp = 66
    sI4, sHH = 98, 99
    sXc, sXb = 100, 101
    nstamp = [0]
    srd = lambda n: f's[{n}:{n+3}]'
    e.role_cond[frozenset('C')] = (f's_cmp_eq_u32 s{sWave}, 7', 's_cbranch_scc0')
    e.role_cond[frozenset('A')] = (f's_cmp_eq_u32 s{sWave}, 7', 's_cbranch_scc1')
    def stamp():
        if stamps:
            i = nstamp[0]; nstamp[0] += 1
            assert i < 16
            e.wait_lg(0)
            e(f's_memrealtime s[{sStamp+2*i}:{sStamp+2*i+1}]')
            e.wait_lg(0)
    def forget(tag):
        e.vm['C'] = [x for x in e.vm['C'] if x[0] != tag]
    v = lambda n, c=1: f'v{n}' if c == 1 else f'v[{n}:{n+c-1}]'
    vLin, vLc, vLr = 1, 2, 3
    vKd = [4, 5]; vVd = 6; vVr = [7, 8]; vKr = list(range(9, 17))
    vWr = 17; vWx = 18; vMxA = 19; vMo = 20; vOr = 21
    vL = 22
    vNm = 24; vM = 25; vRw = 26; vRr = 27
    vT = [28, 29, 30, 31]
    S0 = 128; QF = 96; KF = 64; W0R = 44
    vWd = [128, 129]; vXd = 130; vQr = [132, 133]; vXb = [134, 135, 136, 137]; vXa = [138, 139, 140, 141]
    QA = 160; QB = 176; QACC = 224
    TK0 = 32

    e.raw(f'.globl {K1}'); e.raw('.p2align 8'); e.raw(f'.type {K1},@function'); e.label(K1)
    e('s_cmp_ge_u32 s2, 256')
    e('s_cbranch_scc1 L_end1')
    e('s_load_dwordx16 s[4:19], s[0:1], 0')
    if stamps:
        e(f's_memrealtime s[{sStamp}:{sStamp+1}]'); nstamp[0] = 1
    e(f'v_lshrrev_b32 {v(vT[0])}, 6, v0')
    e(f'v_and_b32 v0, 63, v0')
    e(f'v_readfirstlane_b32 s{sWave}, {v(vT[0])}')
    e(f's_and_b32 s{sHkv}, s2, 7'); e(f's_lshl_b32 s{sHkv}, s{sHkv}, 1')
    e(f's_bfe_u32 s{sT0}, s2, 0x10003'); e(f's_or_b32 s{sHkv}, s{sHkv}, s{sT0}')
    e(f's_lshr_b32 s{sB}, s2, 5')
    e(f'v_lshrrev_b32 {v(vT[0])}, 5, v0')
    e(f'v_and_b32 {v(vT[1])}, 31, v0')
    e(f'v_lshlrev_b32 {v(vT[2])}, 2, {v(vT[0])}')
    e(f'v_xor_b32 {v(vT[1])}, {v(vT[1])}, {v(vT[2])}')
    e(f'v_lshlrev_b32 {v(vT[1])}, 4, {v(vT[1])}')
    e(f'v_lshl_add_u32 {v(vWd[0])}, {v(vT[0])}, 13, {v(vT[1])}')
    e(f'v_xor_b32 {v(vWd[1])}, 0x80, {v(vWd[0])}')
    e(f'v_add_u32 {v(vWd[1])}, {16384-1024}, {v(vWd[1])}')
    e(f's_lshl_b32 s{sW2k}, s{sWave}, 11')
    e(f's_lshl_b32 s{sWQb}, s{sWave}, 15'); e(f's_lshl_b32 s{sT1}, s{sHkv}, 9'); e(f's_add_u32 s{sWQb}, s{sWQb}, s{sT1}')
    e(f's_bfe_u32 s{sKs}, s2, 0x20003'); e(f's_lshl1_add_u32 s{sKs}, s{sKs}, s{sB}')
    e(f's_cmp_ge_u32 s{sKs}, 9'); e(f's_cselect_b32 s{sT1}, 9, 0'); e(f's_sub_u32 s{sKs}, s{sKs}, s{sT1}')
    if not opts.get('rot', True): e(f's_mov_b32 s{sKs}, 0')
    e(f's_mov_b32 s{sKc}, s{sKs}')
    e(f's_and_b32 s{sI4}, s{sWave}, 3'); e(f's_lshr_b32 s{sHH}, s{sWave}, 2')
    e(f'v_lshrrev_b32 {v(vT[0])}, 3, v0')
    e(f'v_lshrrev_b32 {v(vLr)}, 4, v0')
    e(f's_and_b32 s{sT1}, s{sWave}, 1'); e(f's_lshl_b32 s{sT1}, s{sT1}, 2')
    e(f'v_or_b32 {v(vT[1])}, s{sT1}, {v(vLr)}')
    e(f'v_and_b32 {v(vT[2])}, 7, v0')
    e(f'v_xor_b32 {v(vT[1])}, {v(vT[1])}, {v(vT[2])}')
    e(f's_movk_i32 s{sT1}, 1152')
    e(f'v_mul_lo_u32 {v(vT[0])}, {v(vT[0])}, s{sT1}')
    e(f'v_lshl_add_u32 {v(vXd)}, {v(vT[1])}, 4, {v(vT[0])}')
    e(f's_mul_i32 s{sXb}, s{sB}, 36864'); e(f's_mul_i32 s{sT0}, s{sI4}, 9216'); e(f's_add_u32 s{sXb}, s{sXb}, s{sT0}')
    e(f's_add_u32 s{sXc}, s{sKs}, s{sHH}'); e(f's_cmp_eq_u32 s{sXc}, 9'); e(f's_cselect_b32 s{sXc}, 0, s{sXc}')
    e(f's_lshl_b32 s{sT2}, s{sI4}, 10'); e(f's_add_u32 s{sT2}, s{sT2}, {SCR}')
    e(f's_lshl_b32 s{sW1k}, s{sWave}, 10')
    e.wait_lg(0)
    e(f's_mov_b32 s{sX}, s4'); e(f's_mov_b32 s{sX+1}, s5'); e(f's_mov_b32 s{sX+2}, {256*1152}'); e(f's_mov_b32 s{sX+3}, 0x20000')
    e(f's_mov_b32 s{sWQ}, s10'); e(f's_mov_b32 s{sWQ+1}, s11'); e(f's_mov_b32 s{sWQ+2}, {576*8192}'); e(f's_mov_b32 s{sWQ+3}, 0x20000')

    slot_of = {}
    free = list(range(NSLOT))
    nxt = [0]
    def x_dma(k):
        e(f's_lshl_b32 s{sT1}, s{sXc}, 12'); e(f's_add_u32 m0, s{sT1}, s{sT2}')
        e(f's_lshl_b32 s{sT1}, s{sXc}, 7'); e(f's_add_u32 s{sT1}, s{sT1}, s{sXb}')
        e(f'buffer_load_dwordx4 {v(vXd)}, {srd(sX)}, s{sT1} offen{x_pol} lds', tag=f'X{k}')
        if k < 4:
            e(f's_add_u32 s{sXc}, s{sXc}, 2'); e(f's_cmp_ge_u32 s{sXc}, 9'); e(f's_cselect_b32 s{sT1}, 9, 0'); e(f's_sub_u32 s{sXc}, s{sXc}, s{sT1}')
    def dma_tile(n):
        slot = slot_of[n]
        if n < TK and n % 4 == 0: x_dma(n // 4)
        e(f's_add_u32 m0, s{sW2k}, {slot*SLOT}')
        if n < TK:
            if n % 2 == 0:
                e(f's_lshl_b32 s{sG0}, s{sKs}, 19'); e(f's_add_u32 s{sG0}, s{sG0}, s{sWQb}')
            else:
                e(f's_add_u32 s{sG0}, s{sG0}, {32*8192}')
            for i in range(2):
                e(f'buffer_load_dwordx4 {v(vWd[i])}, {srd(sWQ)}, s{sG0} offen offset:{i*1024}{wq_pol} lds', tag=f'T{n}')
            if n % 2 == 1 and n < TK - 1:
                e(f's_add_u32 s{sKs}, s{sKs}, 1'); e(f's_cmp_eq_u32 s{sKs}, 9'); e(f's_cselect_b32 s{sKs}, 0, s{sKs}')
        elif opts.get('nokv'):
            pass
        elif n < TV:
            e(f's_add_u32 s{sT1}, s{sW2k}, {(n-TK)*SLOT}')
            for i in range(2):
                e(f'buffer_load_dwordx4 {v(vKd[i])}, {srd(sK)}, s{sT1} offen offset:{i*1024} nt lds', tag=f'T{n}')
        else:
            p, u = (n - TV) // 8, (n - TV) % 8
            if n == TV + 8: e(f's_xor_b32 s{sVb}, s{sVb}, 0x80')
            e(f's_add_u32 s{sT1}, s{sVb}, {u*32768}')
            e(f'buffer_load_dwordx4 {v(vVd)}, {srd(sV)}, s{sT1} offen nt lds', tag=f'T{n}')
            e(f's_add_u32 s{sT1}, s{sT1}, 1024')
            e(f'buffer_load_dwordx4 {v(vVd)}, {srd(sV)}, s{sT1} offen offset:1024 nt lds', tag=f'T{n}')
    def issue(maxn):
        k = 0
        while nxt[0] < TEND and k < maxn:
            n = nxt[0]
            cand = [s for s in free if n < TV or s < 4]
            if not cand: break
            s = cand[0] if n >= TV else max(cand)
            free.remove(s); slot_of[n] = s; nxt[0] += 1; k += 1
            dma_tile(n)
    def release(ns):
        for n in ns: free.append(slot_of[n])
        free.sort()

    issue(2)
    issue(opts.get('w1', 1))

    e(f'v_and_b32 {v(vLc)}, 15, v0')
    e(f'v_lshlrev_b32 {v(vLin)}, 4, v0')
    e(f'v_lshrrev_b32 {v(vT[0])}, 2, {v(vLc)}')
    e(f'v_xor_b32 {v(vT[1])}, s{sWave}, {v(vT[0])}')
    e(f'v_lshlrev_b32 {v(vT[1])}, 6, {v(vT[1])}')
    e(f'v_lshl_add_u32 {v(vT[1])}, {v(vT[0])}, 9, {v(vT[1])}')
    e(f'v_lshrrev_b32 {v(vT[2])}, 5, v0')
    e(f'v_lshl_add_u32 {v(vT[1])}, {v(vT[2])}, 12, {v(vT[1])}')
    e(f'v_and_b32 {v(vT[3])}, 1, {v(vLr)}')
    e(f'v_lshl_add_u32 {v(vT[1])}, {v(vT[3])}, 5, {v(vT[1])}')
    e(f'v_and_b32 {v(vT[3])}, 3, {v(vLc)}')
    e(f'v_lshl_add_u32 {v(vQr[0])}, {v(vT[3])}, 3, {v(vT[1])}')
    e(f'v_add_u32 {v(vQr[1])}, 0x10000, {v(vQr[0])}')
    e(f'v_and_b32 {v(vT[0])}, 31, v0')
    e(f'v_bfe_u32 {v(vT[1])}, v0, 1, 3')
    e(f'v_xor_b32 {v(vT[1])}, {v(vT[1])}, {v(vT[2])}')
    e(f'v_lshlrev_b32 {v(vT[1])}, 4, {v(vT[1])}')
    e(f'v_lshl_add_u32 {v(vXb[0])}, {v(vT[0])}, 7, {v(vT[1])}')
    for k in range(1, 4): e(f'v_xor_b32 {v(vXb[k])}, {32*k}, {v(vXb[0])}')

    def mid_setup():
        e(f's_bfe_u32 s{sSp}, s2, 0x10004')
        e(f's_lshl_b32 s{sT0}, s{sB}, 4'); e(f's_add_u32 s{sT0}, s{sT0}, s{sHkv}'); e(f's_lshl_b32 s{sT0}, s{sT0}, 21')
        e(f's_lshl_b32 s{sT1}, s{sSp}, 18'); e(f's_add_u32 s{sT0}, s{sT0}, s{sT1}'); e(f's_add_u32 s{sT0}, s{sT0}, {6144*256}')
        e(f's_add_u32 s{sK}, s6, s{sT0}'); e(f's_addc_u32 s{sK+1}, s7, 0'); e(f's_mov_b32 s{sK+2}, 0x40000'); e(f's_mov_b32 s{sK+3}, 0x20000')
        e(f's_add_u32 s{sV}, s8, s{sT0}'); e(f's_addc_u32 s{sV+1}, s9, 0'); e(f's_mov_b32 s{sV+2}, 0x40000'); e(f's_mov_b32 s{sV+3}, 0x20000')
        e(f's_and_b32 s{sT1}, s{sWave}, 1'); e(f's_lshl_b32 s{sT1}, s{sT1}, 3')
        e(f'v_xor_b32 {v(vT[0])}, {v(vLr)}, {v(vLc)}')
        e(f'v_xor_b32 {v(vT[0])}, s{sT1}, {v(vT[0])}')
        e(f'v_lshlrev_b32 {v(vT[0])}, 4, {v(vT[0])}')
        e(f'v_lshl_add_u32 {v(vKd[0])}, {v(vLr)}, 8, {v(vT[0])}')
        e(f'v_xor_b32 {v(vKd[1])}, 64, {v(vKd[0])}')
    def setup_k():
        e(f'v_lshrrev_b32 {v(vT[0])}, 5, v0')
        e(f'v_xor_b32 {v(vT[0])}, {v(vT[0])}, {v(vLc)}')
        e(f'v_lshlrev_b32 {v(vT[0])}, 4, {v(vT[0])}')
        e(f'v_and_b32 {v(vT[1])}, 31, v0')
        e(f'v_lshl_add_u32 {v(vT[0])}, {v(vT[1])}, 8, {v(vT[0])}')
        e(f's_and_b32 s{sT1}, s{sWave}, 1'); e(f's_lshl_b32 s{sT1}, s{sT1}, 13')
        e(f'v_add_u32 {v(vKr[0])}, s{sT1}, {v(vT[0])}')
        for j in range(1, 8): e(f'v_xor_b32 {v(vKr[j])}, {32*j}, {v(vKr[0])}')
    def setup_w():
        e(f's_mov_b32 s{sWO}, s12'); e(f's_mov_b32 s{sWO+1}, s13'); e(f's_mov_b32 s{sWO+2}, {4096*1152}'); e(f's_mov_b32 s{sWO+3}, 0x20000')
        e(f's_mov_b32 s{sWS}, s18'); e(f's_mov_b32 s{sWS+1}, s19'); e(f's_mov_b32 s{sWS+2}, 0x30000000'); e(f's_mov_b32 s{sWS+3}, 0x20000')
        e(f's_mov_b32 s{sDBG}, s16'); e(f's_mov_b32 s{sDBG+1}, s17'); e(f's_mov_b32 s{sDBG+2}, 256'); e(f's_mov_b32 s{sDBG+3}, 0x20000')
        e(f's_lshl_b32 s{sT1}, s{sHkv}, 2'); e(f's_add_u32 s{sT1}, s{sT1}, s{sSp}')
        e(f's_mul_i32 s{sWOb}, s{sT1}, {64*1152}'); e(f's_add_u32 s{sWOb}, s{sWOb}, s{sW1k}')
        e(f'v_mov_b32 {v(TK0)}, {hex(WS_EPOCH)}'); e(f'v_mov_b32 {v(TK0+2)}, 0')
    def setup_v():
        e(f's_mov_b32 s{sC}, {hex(f32bits(math.log2(math.e) / math.sqrt(128.0)))}'); e(f's_mov_b32 s{sC+1}, s{sC}')
        e(f's_xor_b32 s{sT1}, s{sSp}, 1'); e(f's_lshl_b32 s{sT1}, s{sT1}, 7')
        e(f's_lshl_b32 s{sVb}, s{sWave}, 12'); e(f's_add_u32 s{sVb}, s{sVb}, s{sT1}')
        e(f'v_lshrrev_b32 {v(vT[0])}, 3, v0')
        e(f'v_and_b32 {v(vT[1])}, 1, {v(vLr)}')
        e(f'v_lshlrev_b32 {v(vT[1])}, 2, {v(vT[1])}')
        e(f'v_and_b32 {v(vT[2])}, 7, v0')
        e(f'v_xor_b32 {v(vT[1])}, {v(vT[1])}, {v(vT[2])}')
        e(f'v_lshlrev_b32 {v(vT[1])}, 4, {v(vT[1])}')
        e(f'v_lshl_add_u32 {v(vVd)}, {v(vT[0])}, 8, {v(vT[1])}')
        e(f'v_lshrrev_b32 {v(vT[0])}, 5, v0')
        e(f'v_lshrrev_b32 {v(vT[1])}, 2, {v(vLc)}')
        e(f'v_lshl_add_u32 {v(vT[0])}, {v(vT[0])}, 2, {v(vT[1])}')
        e(f'v_and_b32 {v(vT[1])}, 2, {v(vT[1])}')
        e(f'v_and_b32 {v(vT[2])}, 1, {v(vLr)}')
        e(f'v_or_b32 {v(vT[1])}, {v(vT[1])}, {v(vT[2])}')
        e(f'v_xor_b32 {v(vT[1])}, s{sI4}, {v(vT[1])}')
        e(f'v_lshlrev_b32 {v(vT[1])}, 5, {v(vT[1])}')
        e(f'v_lshl_add_u32 {v(vT[1])}, {v(vT[0])}, 7, {v(vT[1])}')
        e(f'v_and_b32 {v(vT[2])}, 3, {v(vLc)}')
        e(f'v_lshl_add_u32 {v(vT[1])}, {v(vT[2])}, 3, {v(vT[1])}')
        e(f's_lshl_b32 s{sT1}, s{sI4}, 12')
        e(f'v_add_u32 {v(vVr[0])}, s{sT1}, {v(vT[1])}')
        e(f'v_xor_b32 {v(vVr[1])}, 64, {v(vVr[0])}')
        e(f'v_lshrrev_b32 {v(vT[0])}, 5, v0')
        e(f'v_lshlrev_b32 {v(vT[0])}, 3, {v(vT[0])}')
        e(f'v_lshrrev_b32 {v(vT[1])}, 2, v0')
        e(f'v_add_u32 {v(vT[0])}, {v(vT[0])}, {v(vT[1])}')
        e(f's_movk_i32 s{sT1}, 1152')
        e(f'v_mul_lo_u32 {v(vT[0])}, {v(vT[0])}, s{sT1}')
        e(f'v_lshl_add_u32 {v(vT[0])}, {v(vT[2])}, 3, {v(vT[0])}')
        e(f's_lshl_b32 s{sT1}, s{sWave}, 7'); e(f's_add_u32 s{sT1}, s{sT1}, {SCR}')
        e(f'v_add_u32 {v(vWr)}, s{sT1}, {v(vT[0])}')
        e(f's_lshr_b32 s{sT1}, s{sWave}, 1'); e(f's_lshl_b32 s{sT1}, s{sT1}, 5'); e(f's_add_u32 s{sT1}, s{sT1}, {SCR + 1024}')
        e(f'v_add_u32 {v(vWx)}, s{sT1}, {v(vT[0])}')
        e(f'v_and_b32 {v(vT[0])}, 31, v0')
        e(f's_lshl_b32 s{sT1}, s{sHH}, 9'); e(f's_add_u32 s{sT1}, s{sT1}, {MX}')
        e(f'v_lshlrev_b32 {v(vT[0])}, 4, {v(vT[0])}')
        e(f'v_add_u32 {v(vMxA)}, s{sT1}, {v(vT[0])}')
        e(f's_lshl_b32 s{sT1}, s{sI4}, 2')
        e(f'v_add_u32 {v(vMo)}, s{sT1}, {v(vMxA)}')
        e(f's_add_u32 s{sT1}, s{sW2k}, {RS}')
        e(f'v_add_u32 {v(vRr)}, s{sT1}, {v(vLin)}')
        e(f'v_lshlrev_b32 {v(vT[1])}, 9, {v(vLr)}')
        e(f'v_lshl_add_u32 {v(vOr)}, {v(vLc)}, 4, {v(vT[1])}')
    mid_setup()

    QI = None
    def q_mf(q):
        o = 32 * (q % 2)
        for k in range(4):
            c = '0' if (q == 0 and k == 0) else v(QACC, 16)
            e(f'v_mfma_f32_32x32x16_bf16 {v(QACC,16)}, {v(QA+o+4*k,4)}, {v(QB+o+4*k,4)}, {c}')
    for q in range(9):
        e(f's_lshl_b32 s{sT1}, s{sKc}, 12'); e(f's_add_u32 s{sT1}, s{sT1}, {SCR}')
        for k in range(4): e(f'v_add_u32 {v(vXa[k])}, s{sT1}, {v(vXb[k])}')
        if q < 8:
            e(f's_add_u32 s{sKc}, s{sKc}, 1'); e(f's_cmp_eq_u32 s{sKc}, 9'); e(f's_cselect_b32 s{sKc}, 0, s{sKc}')
        e.wait_vm(f'T{2*q}', f'T{2*q+1}')
        if q == 0: issue(opts.get('w2', 4))
        e.wait_lg(0)
        e('s_barrier')
        if q in opts.get('qst', (0,)): stamp()
        o = 32 * (q % 2)
        for k in range(4):
            par, s_ = k // 2, k % 2
            off = slot_of[2*q+par] * SLOT + s_ * 8192
            r = vQr[off // 65536]; off %= 65536
            e(f'ds_read_b64_tr_b16 {v(QA+o+4*k,2)}, {v(r)} offset:{off}')
            e(f'ds_read_b64_tr_b16 {v(QA+o+4*k+2,2)}, {v(r)} offset:{off + 2048}')
            e(f'ds_read_b128 {v(QB+o+4*k,4)}, {v(vXa[k])}')
        if q >= 1:
            release([2*q-2, 2*q-1])
            if q == 8: QI = free.pop(0) * SLOT
            if nxt[0] < TK: issue(min(2, TK - nxt[0]))
            q_mf(q - 1)
            if nxt[0] >= TK and q < 8: issue(opts.get('kq', 2))
        if q == 7: setup_k()
    q_mf(8)
    e(f'v_and_b32 {v(vT[0])}, 31, v0')
    e(f'v_lshrrev_b32 {v(vT[1])}, 5, v0')
    e(f'v_lshlrev_b32 {v(vT[0])}, 4, {v(vT[0])}')
    e(f'v_lshl_add_u32 {v(vT[0])}, {v(vT[1])}, 3, {v(vT[0])}')
    e(f's_add_u32 s{sT1}, s{sW2k}, {QI}')
    e(f'v_add_u32 {v(vT[0])}, s{sT1}, {v(vT[0])}')
    e(f's_lshl_b32 s{sT1}, s{sHH}, 13'); e(f's_add_u32 s{sT1}, s{sT1}, {QI}')
    e(f'v_add_u32 {v(vT[2])}, s{sT1}, {v(vLin)}')
    for a_ in range(4):
        e(f'v_cvt_pk_bf16_f32 {v(QA+2*a_)}, {v(QACC+4*a_)}, {v(QACC+4*a_+1)}')
        e(f'v_cvt_pk_bf16_f32 {v(QA+2*a_+1)}, {v(QACC+4*a_+2)}, {v(QACC+4*a_+3)}')
        e(f'ds_write_b64 {v(vT[0])}, {v(QA+2*a_,2)} offset:{a_*512}')
    issue(2)
    stamp()

    def wo_dma(ck, ks):
        if opts.get('nowo'): return
        hh, jb = ck // 2, ck % 2
        for k in ks:
            e(f's_add_u32 m0, s{sW1k}, {SCR + k*8192}')
            e(f's_add_u32 s{sT1}, s{sWOb}, {(128*hh + 32*jb)*1152 + k*8192}')
            e(f'buffer_load_dwordx4 {v(vLin)}, {srd(sWO)}, s{sT1} offen{wo_pol} lds', tag=f'W{ck}')
    def up(k): return S0 + 16 * (k // 2) + 8 + 4 * (k % 2)
    WF = {0: [W0R + 4*j for j in range(5)]}
    for ck in range(1, 4): WF[ck] = [up(5*(ck-1) + j) for j in range(5)]
    def wo_read(ck):
        for j in range(4):
            for hf in range(2):
                e(f'ds_read_b64_tr_b16 {v(WF[ck][j]+2*hf,2)}, {v(vWr)} offset:{hf*9216 + 32*j}')
        for hf in range(2):
            e(f'ds_read_b64_tr_b16 {v(WF[ck][4]+2*hf,2)}, {v(vWx)} offset:{hf*9216}')
    wsched = opts.get('wsched', {0: ({0: (0, 1), 1: (2, 3), 2: (4,)}, 4),
                                 1: ({5: (0, 1), 6: (2, 3), 7: (4,)}, 11),
                                 2: ({12: (0, 1), 13: (2, 3), 14: (4,)}, 17),
                                 3: ({18: (0, 1), 19: (2, 3), 20: (4,)}, 23)})
    wo_dma_at = {}; wo_read_at = {}
    for ck, (d, rd) in wsched.items():
        for st, ks in d.items(): wo_dma_at[st] = (ck, ks)
        wo_read_at[rd] = ck

    def head(step, tiles):
        tags = [f'T{n}' for n in tiles]
        if step in wo_read_at: tags.append(f'W{wo_read_at[step]}')
        if tags: e.wait_vm(*tags)
        e.wait_lg(0)
        e('s_barrier')
    def tail(step):
        if step in wo_dma_at: wo_dma(*wo_dma_at[step])
        need = TK + ((2*step + 4) if step < 8 else (16 + step - 8 + 1))
        la = opts.get('la', 2)
        issue(max(0, min(3, need + la - nxt[0])))
    def xswap(reg, tmp, op):
        e(f'v_mov_b32 {v(tmp)}, {v(reg)}')
        e(f'v_permlane32_swap_b32 {v(reg)}, {v(tmp)}')
        e(f'{op} {v(reg)}, {v(reg)}, {v(tmp)}')

    kcur = [(0, 0)]
    for u in range(8):
        ta, tb = TK + 2*u, TK + 2*u + 1
        sa, sb = slot_of[ta] * SLOT, slot_of[tb] * SLOT
        pa, pb = kcur[0]
        da, db_ = (sa - pa) & 0xffffffff, (sb - pb) & 0xffffffff
        e(f's_cmp_lt_u32 s{sI4}, 2')
        e(f's_mov_b32 s{sT0}, {hex(db_)}')
        e(f's_cmov_b32 s{sT0}, {hex(da)}')
        for j in range(8): e(f'v_add_u32 {v(vKr[j])}, s{sT0}, {v(vKr[j])}')
        kcur[0] = (sa, sb)
        head(u, [ta, tb])
        if u in opts.get('kst', ()): stamp()
        if u == 0:
            release([TK-2, TK-1])
            for j in range(8):
                e(f'ds_read_b128 {v(QF+4*j,4)}, {v(vT[2])} offset:{j*1024}')
        else:
            release([ta-2, tb-2])
            if u == 1: free.append(QI // SLOT); free.sort()
        for j in range(8):
            e(f'ds_read_b128 {v(KF+4*j,4)}, {v(vKr[j])}')
        if u == 0: setup_w()
        tail(u)
        if u in wo_read_at: wo_read(wo_read_at[u])
        if u >= 1:
            Sp = S0 + 16 * (u - 1)
            if u == 1: e(f'v_max3_f32 {v(vM)}, {v(Sp)}, {v(Sp+1)}, {v(Sp+2)}'); st = 3
            else: st = 0
            for i in range(st, 15, 2): e(f'v_max3_f32 {v(vM)}, {v(vM)}, {v(Sp+i)}, {v(Sp+i+1)}')
            if u == 1: e(f'v_max_f32 {v(vM)}, {v(vM)}, {v(Sp+15)}')
        Sb = S0 + 16 * u
        for j in range(8):
            c = '0' if j == 0 else v(Sb, 16)
            e(f'v_mfma_f32_32x32x16_bf16 {v(Sb,16)}, {v(KF+4*j,4)}, {v(QF+4*j,4)}, {c}')
        if u == 0:
            with e.only('C'):
                lw = e.newlabel('Llead')
                saved = list(e.vm['C'])
                e(f's_cmp_lg_u32 s2, 0')
                e(f's_cbranch_scc1 {lw}')
                e(f's_mov_b64 exec, 1')
                e(f'buffer_load_dword {v(TK0+1)}, {v(TK0)}, {srd(sWS)}, 0 offen sc1', tag='EP')
                e.wait_vm_all()
                e(f'v_add_u32 {v(TK0+1)}, 1, {v(TK0+1)}')
                e(f'v_or_b32 {v(TK0+1)}, 0x80000000, {v(TK0+1)}')
                e(f'buffer_store_dword {v(TK0+1)}, {v(TK0+2)}, {srd(sDBG)}, 0 offen sc1', tag='EPS')
                e(f'buffer_store_dword {v(TK0+1)}, {v(TK0)}, {srd(sWS)}, 0 offen sc1', tag='EPS')
                e(f's_mov_b64 exec, -1')
                e.label(lw)
                e.vm['C'] = saved
        if u == 1: setup_v()
        if u == 6:
            e(f'buffer_load_dword {v(TK0+1)}, {v(TK0+2)}, {srd(sDBG)}, 0 offen', tag='TKL')
    Sp = S0 + 16 * 7
    for i in range(0, 16, 2): e(f'v_max3_f32 {v(vM)}, {v(vM)}, {v(Sp+i)}, {v(Sp+i+1)}')
    xswap(vM, vT[0], 'v_max_f32')
    e(f'ds_write_b32 {v(vMo)}, {v(vM)}')
    stamp()

    def softmax(u):
        Sb = S0 + 16 * u
        g = [f'v_pk_fma_f32 {v(Sb+i,2)}, {v(Sb+i,2)}, s[{sC}:{sC+1}], {v(vNm,2)} op_sel_hi:[1,0,0]' for i in range(0, 16, 2)]
        g += [f'v_exp_f32 {v(Sb+i)}, {v(Sb+i)}' for i in range(16)]
        if u == 0:
            g += [f'v_pk_add_f32 {v(vL,2)}, {v(Sb,2)}, {v(Sb+2,2)}'] + [f'v_pk_add_f32 {v(vL,2)}, {v(vL,2)}, {v(Sb+i,2)}' for i in range(4, 16, 2)]
        else:
            g += [f'v_pk_add_f32 {v(vL,2)}, {v(vL,2)}, {v(Sb+i,2)}' for i in range(0, 16, 2)]
        g += [f'v_cvt_pk_bf16_f32 {v(Sb+i)}, {v(Sb+2*i)}, {v(Sb+2*i+1)}' for i in range(8)]
        return g

    head(8, [])
    release([TV-2, TV-1])
    e(f'ds_read_b128 {v(vT[0],4)}, {v(vMxA)}')
    tail(8)
    e(f'v_max3_f32 {v(vM)}, {v(vT[0])}, {v(vT[1])}, {v(vT[2])}')
    e(f'v_max_f32 {v(vM)}, {v(vM)}, {v(vT[3])}')
    e(f'v_mul_f32 {v(vNm)}, s{sC}, {v(vM)}')
    e(f'v_sub_f32 {v(vNm)}, 0, {v(vNm)}')
    for x in softmax(0): e(x)

    O = 96
    VF = 64
    TM = 80
    vTok = TK0 + 1
    vLse, vRl = 36, 37
    RG = [40, up(15)]
    sRX = sKs
    sOUT = sWQ
    vOa, vFa, vFb, vBo = 9, 10, 11, 12
    def setup_out():
        e(f's_mov_b32 s{sOUT}, s14'); e(f's_mov_b32 s{sOUT+1}, s15'); e(f's_mov_b32 s{sOUT+2}, {256*1152}'); e(f's_mov_b32 s{sOUT+3}, 0x20000')
        a, b_, c_, d_, f_, g_ = 13, 14, 15, 16, vT[0], vT[1]
        e(f's_lshl_b32 s{sT1}, s{sWave}, 6')
        e(f'v_add_u32 {v(a)}, s{sT1}, v0')
        e(f'v_mul_u32_u24 {v(b_)}, 0x5556, {v(a)}'); e(f'v_lshrrev_b32 {v(b_)}, 16, {v(b_)}')
        e(f'v_mul_u32_u24 {v(c_)}, 3, {v(b_)}'); e(f'v_sub_u32 {v(c_)}, {v(a)}, {v(c_)}')
        e(f'v_and_b32 {v(d_)}, 63, {v(b_)}')
        e(f'v_mul_u32_u24 {v(d_)}, 48, {v(d_)}')
        e(f'v_lshl_add_u32 {v(d_)}, {v(c_)}, 3, {v(d_)}')
        e(f'v_lshrrev_b32 {v(vFb)}, 6, {v(b_)}')
        e(f'v_mul_u32_u24 {v(f_)}, 24, {v(vFb)}')
        e(f'v_add_u32 {v(vFa)}, {v(d_)}, {v(f_)}')
        e(f's_and_b32 s{sT1}, s2, 31'); e(f's_mul_i32 s{sT1}, s{sT1}, 96')
        e(f'v_add_u32 {v(b_)}, s{sT1}, {v(b_)}')
        e(f'v_lshrrev_b32 {v(d_)}, 6, {v(b_)}')
        e(f'v_mul_u32_u24 {v(f_)}, 0x2aab, {v(d_)}'); e(f'v_lshrrev_b32 {v(f_)}, 16, {v(f_)}')
        e(f'v_mul_u32_u24 {v(g_)}, 6, {v(f_)}'); e(f'v_sub_u32 {v(d_)}, {v(d_)}, {v(g_)}')
        e(f'v_mad_u32_u24 {v(c_)}, {v(d_)}, 3, {v(c_)}')
        e(f'v_lshrrev_b32 {v(d_)}, 2, {v(c_)}')
        e(f'v_lshl_add_u32 {v(d_)}, {v(f_)}, 2, {v(d_)}')
        e(f'v_lshrrev_b32 {v(g_)}, 1, {v(f_)}'); e(f'v_add_u32 {v(g_)}, 32, {v(g_)}')
        e(f'v_cmp_lt_u32 vcc, 15, {v(c_)}')
        e(f'v_cndmask_b32 {v(d_)}, {v(d_)}, {v(g_)}, vcc')
        e(f'v_lshrrev_b32 {v(g_)}, 1, {v(c_)}')
        e(f'v_cndmask_b32 {v(g_)}, {v(g_)}, {v(f_)}, vcc')
        e(f'v_and_b32 {v(g_)}, 1, {v(g_)}')
        e(f'v_and_b32 {v(f_)}, 15, {v(b_)}')
        e(f'v_lshl_add_u32 {v(f_)}, {v(g_)}, 4, {v(f_)}')
        e(f'v_mul_u32_u24 {v(f_)}, 1152, {v(f_)}')
        e(f'v_lshl_add_u32 {v(f_)}, {v(d_)}, 5, {v(f_)}')
        e(f'v_bfe_u32 {v(g_)}, {v(b_)}, 4, 2')
        e(f'v_lshl_add_u32 {v(f_)}, {v(g_)}, 3, {v(f_)}')
        e(f'v_and_b32 {v(g_)}, 1, {v(c_)}')
        e(f'v_lshl_add_u32 {v(f_)}, {v(g_)}, 2, {v(f_)}')
        e(f's_mul_i32 s{sT1}, s{sB}, 36864')
        e(f'v_add_u32 {v(f_)}, s{sT1}, {v(f_)}')
        e(f'v_mov_b32 {v(g_)}, 0x7fffffff')
        e(f'v_cmp_gt_u32 vcc, 0x120, {v(a)}')
        e(f'v_cndmask_b32 {v(vOa)}, {v(g_)}, {v(f_)}, vcc')
        e(f'v_cndmask_b32 {v(vFa)}, 0, {v(vFa)}, vcc')
        e(f'v_lshrrev_b32 {v(g_)}, 5, v0')
        e(f'v_mul_u32_u24 {v(g_)}, {PB48 - 512}, {v(g_)}')
        e(f'v_add3_u32 {v(vBo)}, {v(g_)}, {v(vLin)}, 64')
        e(f'v_add_u32 {v(vBo)}, {1024 - 64}, {v(vBo)}')
        e(f'v_and_b32 {v(g_)}, 3, v0')
        e(f'v_mul_u32_u24 {v(g_)}, {PB48}, {v(g_)}')
        e(f'v_add_u32 {v(13)}, {1536 - 4}, {v(g_)}')
    def rx_loads():
        for j in range(2):
            e(f'buffer_load_dwordx4 {v(RG[j],4)}, {v(vLin)}, {srd(sWS)}, s{sRX} offen offset:{j*1024} sc1', tag='RX')
    def red_write():
        for k in range(1, 4):
            e(f'v_xor_b32 {v(vT[k])}, {k*2048}, {v(vRr)}')
        for k in range(1, 4):
            e(f'ds_write_b128 {v(vT[k])}, {v(O+8*k,4)} offset:{(k-1)*SLOT}')
            e(f'ds_write_b128 {v(vT[k])}, {v(O+8*k+4,4)} offset:{(k-1)*SLOT + 1024}')
    for t in range(16):
        step = 9 + t; n = TV + t; p, u = t // 8, t % 8
        head(step, [n])
        if t in opts.get('vst', ()): stamp()
        if t >= 1: release([n - 1])
        off = slot_of[n] * SLOT
        for k in range(4):
            s_, d2 = k // 2, k % 2
            e(f'ds_read_b64_tr_b16 {v(VF+4*k,2)}, {v(vVr[d2])} offset:{off + s_*2048}')
            e(f'ds_read_b64_tr_b16 {v(VF+4*k+2,2)}, {v(vVr[d2])} offset:{off + s_*2048 + 1024}')
        tail(step)
        if t == 3:
            lp = e.newlabel('Ltk'); ld = e.newlabel('Ltkd')
            e(f's_mov_b32 s{sT3}, 0x20000')
            e.wait_vm('TKL')
            saved = {r: list(e.vm[r]) for r in e.vm}
            e.label(lp)
            e(f'v_readfirstlane_b32 s{sT1}, {v(vTok)}')
            e(f's_cmp_lg_u32 s{sT1}, 0')
            e(f's_cbranch_scc1 {ld}')
            e(f's_sub_u32 s{sT3}, s{sT3}, 1')
            e(f's_cmp_eq_u32 s{sT3}, 0')
            e(f's_cbranch_scc1 {ld}')
            e(f's_sleep 8')
            e(f'buffer_load_dword {v(vTok)}, {v(TK0+2)}, {srd(sDBG)}, 0 offen sc1', tag='TKL')
            e.wait_vm_all()
            e(f's_branch {lp}')
            e.vm = saved
            e.label(ld)
        if t == 7:
            e(f'ds_read_b128 {v(TM,4)}, {v(vMxA)} offset:1024')
            e(f's_xor_b32 s{sRX}, s2, 16'); e(f's_lshl_b32 s{sRX}, s{sRX}, 14'); e(f's_add_u32 s{sRX}, s{sRX}, {hex(WS_OX)}')
            e(f's_add_u32 s{sRX}, s{sRX}, s{sW2k}')
            e(f'v_add_f32 {v(TM)}, {v(TM)}, {v(TM+1)}')
            e(f'v_add_f32 {v(TM+2)}, {v(TM+2)}, {v(TM+3)}')
            e(f'v_add_f32 {v(TM)}, {v(TM)}, {v(TM+2)}')
            e(f'v_log_f32 {v(TM+1)}, {v(TM)}')
            e(f'v_rcp_f32 {v(vRl)}, {v(TM)}')
            e(f'v_sub_f32 {v(vLse)}, {v(TM+1)}, {v(vNm)}')
        if t == 8:
            for k in range(1, 4):
                e(f'ds_read_b128 {v(TM+8,4)}, {v(vRr)} offset:{(k-1)*SLOT}')
                e(f'ds_read_b128 {v(TM+12,4)}, {v(vRr)} offset:{(k-1)*SLOT + 1024}')
                for i in range(0, 8, 2):
                    e(f'v_pk_add_f32 {v(TM+i,2)}, {v(TM+i,2)}, {v(TM+8+i,2)}')
            for i in range(8): e(f'v_mul_f32 {v(TM+i)}, {v(TM+i)}, {v(vRl)}')
            e(f's_xor_b32 s{sT1}, s{sRX}, {hex(16 << 14)}')
            for i in range(3): e(f'v_cvt_pk_bf16_f32 {v(TM+8+i)}, {v(TM+2*i)}, {v(TM+2*i+1)}')
            e(f'v_mov_b32 {v(TM+11)}, {v(vTok)}')
            e(f'v_cvt_pk_bf16_f32 {v(TM+12)}, {v(TM+6)}, {v(TM+7)}')
            e(f'v_mov_b32 {v(TM+13)}, {v(vLse)}')
            e(f'v_mov_b32 {v(TM+15)}, {v(vTok)}')
            if not opts.get('noox'):
                e(f'buffer_store_dwordx4 {v(TM+8,4)}, {v(vLin)}, {srd(sWS)}, s{sT1} offen sc1', tag='OX')
                e(f'buffer_store_dwordx4 {v(TM+12,4)}, {v(vLin)}, {srd(sWS)}, s{sT1} offen offset:1024 sc1', tag='OX')
        if t == 10: setup_out()
        if t == opts.get('rxat', 13) and not opts.get('noox'): rx_loads()
        if step in wo_read_at: wo_read(wo_read_at[step])
        sm = softmax(u + 1) if (p == 0 and u < 7) else []
        cuts = [0, 10, 20, 30, len(sm)] if sm else [0]*5
        for k in range(4):
            s_, d2 = k // 2, k % 2
            for x in sm[cuts[k]:cuts[k+1]]: e(x)
            c = '0' if (u == 0 and s_ == 0) else v(O+16*d2, 16)
            e(f'v_mfma_f32_32x32x16_bf16 {v(O+16*d2,16)}, {v(VF+4*k,4)}, {v(S0+16*u+4*s_,4)}, {c}')
        if t == 6:
            e(f'v_add_f32 {v(vL)}, {v(vL)}, {v(vL+1)}')
            xswap(vL, vT[0], 'v_add_f32')
            e(f'ds_write_b32 {v(vMo)}, {v(vL)} offset:1024')
        if t == 7:
            red_write()
            for i in range(8): e(f'v_mov_b32 {v(TM+i)}, {v(O+i)}')
            stamp()
    assert WS_OX % (32 << 14) == 0 and RS % 16384 == 0
    stamp()
    red_write()
    lp = e.newlabel('Lrx'); ld = e.newlabel('Lrxd')
    e(f's_mov_b32 s{sT3}, 0x20000')
    e.label(lp)
    e.wait_vm_all()
    e(f'v_xor_b32 {v(TM)}, {v(RG[0]+3)}, {v(vTok)}')
    e(f'v_xor_b32 {v(TM+1)}, {v(RG[1]+3)}, {v(vTok)}')
    e(f'v_or_b32 {v(TM)}, {v(TM)}, {v(TM+1)}')
    e(f'v_cmp_ne_u32 vcc, 0, {v(TM)}')
    e.nop(4)
    e(f's_cbranch_vccz {ld}')
    if opts.get('noox'): e(f's_branch {ld}')
    e(f's_sub_u32 s{sT3}, s{sT3}, 1')
    e(f's_cmp_eq_u32 s{sT3}, 0')
    e(f's_cbranch_scc1 {ld}')
    e(f's_sleep 8')
    rx_loads()
    e(f's_branch {lp}')
    for r in e.vm: e.vm[r] = []
    e.label(ld)
    e(f's_mov_b32 s{sT3}, 0xffff0000')
    t0, t1 = 38, 39
    e(f'v_sub_f32 {v(t0)}, {v(vLse)}, {v(RG[1]+1)}')
    e(f'v_sub_f32 {v(t1)}, {v(RG[1]+1)}, {v(vLse)}')
    e(f'v_exp_f32 {v(t0)}, {v(t0)}'); e(f'v_exp_f32 {v(t1)}, {v(t1)}')
    e(f'v_add_f32 {v(t0)}, 1.0, {v(t0)}'); e(f'v_add_f32 {v(t1)}, 1.0, {v(t1)}')
    e(f'v_rcp_f32 {v(t0)}, {v(t0)}'); e(f'v_rcp_f32 {v(t1)}, {v(t1)}')
    gsrc = [RG[0], RG[0]+1, RG[0]+2, RG[1]]
    for i in range(4):
        e(f'v_lshlrev_b32 {v(TM+2*i)}, 16, {v(gsrc[i])}'); e(f'v_and_b32 {v(TM+2*i+1)}, s{sT3}, {v(gsrc[i])}')
    e(f'v_mul_f32 {v(t1)}, {v(t1)}, {v(vRl)}')
    for i in range(8): e(f'v_mul_f32 {v(TM+i)}, {v(TM+i)}, {v(t0)}')
    OI = slot_of[TEND-2] * SLOT
    e(f's_add_u32 s{sT1}, s{sW1k}, {OI}')
    e(f'v_add_u32 {v(vT[0])}, s{sT1}, {v(vLin)}')
    e(f's_and_b32 s{sT2}, s{sWave}, 1'); e(f's_lshl_b32 s{sT0}, s{sT2}, 3'); e(f's_lshl_b32 s{sT1}, s{sT2}, 8')
    e(f'v_add_u32 {v(vRw)}, s{sT1}, {v(vOr)}')
    e.wait_lg(0)
    e('s_barrier')
    for k in range(1, 4):
        e(f'ds_read_b128 {v(O+8*k,4)}, {v(vRr)} offset:{(k-1)*SLOT}')
        e(f'ds_read_b128 {v(O+8*k+4,4)}, {v(vRr)} offset:{(k-1)*SLOT + 1024}')
    for k in range(1, 4):
        for i in range(0, 8, 2):
            e(f'v_pk_add_f32 {v(O+i,2)}, {v(O+i,2)}, {v(O+8*k+i,2)}')
    for i in range(8): e(f'v_fma_f32 {v(O+i)}, {v(O+i)}, {v(t1)}, {v(TM+i)}')
    for i in range(4): e(f'v_cvt_pk_bf16_f32 {v(TM+i)}, {v(O+2*i)}, {v(O+2*i+1)}')
    e(f'ds_write_b128 {v(vT[0])}, {v(TM,4)}')
    e.wait_lg(0)
    e('s_barrier')
    lo = lambda k: S0 + 16 * (k // 2) + 4 * (k % 2)
    for ck in range(4):
        for qt in range(2):
            e(f'ds_read_b128 {v(lo(2*ck+qt),4)}, {v(vOr)} offset:{OI + ck*2048 + qt*256}')
    for ck in range(4):
        e(f'ds_read_b128 {v(lo(8+ck),4)}, {v(vRw)} offset:{OI + ck*2048}')
    e(f's_mul_i32 s{sT1}, s2, {PB48}')
    e(f's_mul_i32 s{sT2}, s{sWave}, 6144'); e(f's_add_u32 s{sT1}, s{sT1}, s{sT2}'); e(f's_add_u32 s{sT2}, s{sT1}, 4096')
    AC = 88
    G = 64
    for j6 in range(6): e(f'v_mov_b32 {v(G+4*j6+3)}, {v(vTok)}')
    def cv(p0, p1):
        for p_ in range(p0, p1):
            e(f'v_cvt_pk_bf16_f32 {v(G+4*(p_//3)+p_%3)}, {v(AC+2*p_)}, {v(AC+2*p_+1)}')
            if p_ % 3 == 2:
                j6 = p_ // 3
                so = sT1 if j6 < 4 else sT2
                e(f'buffer_store_dwordx4 {v(G+4*j6,4)}, {v(vLin)}, {srd(sWS)}, s{so} offen offset:{(j6%4)*1024} sc1', tag='OUT')
    for j in range(4):
        for ck in range(4):
            for qt in range(2):
                A0 = AC + 8*j + 4*qt
                c = '0' if ck == 0 else v(A0, 4)
                e(f'v_mfma_f32_16x16x32_bf16 {v(A0,4)}, {v(WF[ck][j],4)}, {v(lo(2*ck+qt),4)}, {c}')
        c = '0' if j == 0 else v(AC+32, 4)
        e(f'v_mfma_f32_16x16x32_bf16 {v(AC+32,4)}, {v(WF[j][4],4)}, {v(lo(8+j),4)}, {c}')
        if j >= 1: cv(4*(j-1), 4*j)
    cv(12, 18)
    stamp()
    e(f's_lshl_b32 s{sT1}, s{sB}, 5'); e(f's_lshl_b32 s{sT2}, s{sWave}, 2'); e(f's_add_u32 s{sT1}, s{sT1}, s{sT2}')
    e(f's_mul_i32 s{sT0}, s{sT1}, {PB48}')
    e(f's_and_b32 s{sT1}, s2, 31'); e(f's_mul_i32 s{sT1}, s{sT1}, 1536'); e(f's_add_u32 s{sT0}, s{sT0}, s{sT1}')
    e(f's_add_u32 s{sT1}, s{sT0}, {PB48}'); e(f's_add_u32 s{sT2}, s{sT0}, {2*PB48}'); e(f's_add_u32 s{sG0}, s{sT0}, {3*PB48}')
    LD = 128
    def red_loads():
        for l, (va, so) in enumerate([(vLin, sT0), (vLin, sT1), (vLin, sT2), (vLin, sG0), (vBo, sT0), (vBo, sT2)]):
            e(f'buffer_load_dwordx4 {v(LD+4*l,4)}, {v(va)}, {srd(sWS)}, s{so} offen sc1', tag='RD')
    lp = e.newlabel('Lrd'); ld = e.newlabel('Lrdd')
    e(f's_mov_b32 s{sT3}, 0x20000')
    e(f's_mul_i32 s{sVb}, s{sWave}, 3072')
    e(f'v_mul_u32_u24 {v(vT[3])}, 48, v0')
    e(f'v_add_u32 {v(vT[3])}, s{sVb}, {v(vT[3])}')
    e.label(lp)
    if opts.get('sample', True):
        sp_ = e.newlabel('Lsm'); sd_ = e.newlabel('Lsmd')
        e.label(sp_)
        e(f'buffer_load_dword {v(vT[0])}, {v(13)}, {srd(sWS)}, s{sT0} offen sc1', tag='SM')
        e.wait_vm_all()
        e(f'v_cmp_ne_u32 vcc, {v(vT[0])}, {v(vTok)}')
        e.nop(4)
        e(f's_cbranch_vccz {sd_}')
        e(f's_sub_u32 s{sT3}, s{sT3}, 1')
        e(f's_cmp_eq_u32 s{sT3}, 0')
        e(f's_cbranch_scc1 {ld}')
        e(f's_sleep {opts.get("ssleep", 2)}')
        e(f's_branch {sp_}')
        e.label(sd_)
    red_loads()
    e.wait_vm_all()
    for l in range(6): e(f'v_xor_b32 {v(LD+4*l+3)}, {v(LD+4*l+3)}, {v(vTok)}')
    e(f'v_or3_b32 {v(vT[0])}, {v(LD+3)}, {v(LD+7)}, {v(LD+11)}')
    e(f'v_or3_b32 {v(vT[1])}, {v(LD+15)}, {v(LD+19)}, {v(LD+23)}')
    e(f'v_or_b32 {v(vT[0])}, {v(vT[0])}, {v(vT[1])}')
    e(f'v_cmp_ne_u32 vcc, 0, {v(vT[0])}')
    e.nop(4)
    e(f's_cbranch_vccz {ld}')
    e(f's_sub_u32 s{sT3}, s{sT3}, 1')
    e(f's_cmp_eq_u32 s{sT3}, 0')
    e(f's_cbranch_scc1 {ld}')
    e(f's_sleep {opts.get("rsleep", 4)}')
    e(f's_branch {lp}')
    e.label(ld)
    stamp()
    e(f's_mov_b32 s{sT3}, 0xffff0000')
    ACCR = 160
    U = 176
    for l in range(6):
        base = ACCR if l < 4 else ACCR + 6
        first = l in (0, 4)
        for k in range(3):
            d0 = base + 2*k if first else U + 2*k
            e(f'v_lshlrev_b32 {v(d0)}, 16, {v(LD+4*l+k)}'); e(f'v_and_b32 {v(d0+1)}, s{sT3}, {v(LD+4*l+k)}')
        if not first:
            for k in range(3):
                e(f'v_pk_add_f32 {v(base+2*k,2)}, {v(base+2*k,2)}, {v(U+2*k,2)}')
    FA = RS
    e(f'v_add_u32 {v(vT[3])}, {hex(FA)}, {v(vT[3])}')
    e(f'v_add_u32 {v(vFa)}, {hex(FA)}, {v(vFa)}')
    for i in range(3):
        e(f'ds_write_b128 {v(vT[3])}, {v(ACCR+4*i,4)} offset:{16*i}')
    e.wait_lg(0)
    e('s_barrier')
    e(f's_cmp_ge_u32 s{sWave}, 5'); e('s_cbranch_scc1 L_end1')
    for w in range(8):
        e(f'ds_read_b64 {v(LD+2*w,2)}, {v(vFa)} offset:{w*3072}')
    for w in range(8):
        e(f'ds_read_b64 {v(LD+16+2*w,2)}, {v(vFa)} offset:{w*3072 + 32*48}')
    for w in range(1, 8): e(f'v_pk_add_f32 {v(LD,2)}, {v(LD,2)}, {v(LD+2*w,2)}')
    for w in range(1, 8): e(f'v_pk_add_f32 {v(LD+16,2)}, {v(LD+16,2)}, {v(LD+16+2*w,2)}')
    e(f'v_cmp_ne_u32 vcc, 0, {v(vFb)}')
    e(f'v_cndmask_b32 {v(LD+16)}, 0, {v(LD+16)}, vcc')
    e(f'v_cndmask_b32 {v(LD+17)}, 0, {v(LD+17)}, vcc')
    e(f'v_pk_add_f32 {v(LD,2)}, {v(LD,2)}, {v(LD+16,2)}')
    e(f'v_cvt_pk_bf16_f32 {v(LD)}, {v(LD)}, {v(LD+1)}')
    e(f'buffer_store_dword {v(LD)}, {v(vOa)}, {srd(sOUT)}, 0 offen', tag='FIN')
    if stamps:
        e.wait_vm_all()
        stamp()
        e(f's_cmp_lg_u32 s{sWave}, 0'); e('s_cbranch_scc1 L_end1')
        if opts.get('dbgwg') is not None:
            e(f's_cmp_lg_u32 s2, {opts["dbgwg"]}'); e('s_cbranch_scc1 L_end1')
            e('s_mov_b64 exec, 1')
            e(f'v_mov_b32 {v(vT[2])}, 0')
            for i in range(1, nstamp[0]):
                e(f's_sub_u32 s{sT1}, s{sStamp+2*i}, s{sStamp}')
                e(f'v_mov_b32 {v(vT[0])}, s{sT1}')
                e(f'buffer_store_dword {v(vT[0])}, {v(vT[2])}, {srd(sDBG)}, 0 offen offset:{4*i}')
                e.nop(2)
        else:
            e(f's_lshl_b32 s{sT1}, s2, 7'); e(f's_add_u32 s{sT1}, s{sT1}, {hex(WS_STAMP)}')
            e('s_mov_b64 exec, 1')
            e(f'v_mov_b32 {v(vT[2])}, 0')
            for i in range(16):
                if i < nstamp[0]:
                    e(f'v_mov_b32 {v(vT[0])}, s{sStamp+2*i}'); e(f'v_mov_b32 {v(vT[1])}, s{sStamp+2*i+1}')
                else:
                    e(f'v_mov_b32 {v(vT[0])}, 0'); e(f'v_mov_b32 {v(vT[1])}, 0')
                e(f'buffer_store_dwordx2 {v(vT[0],2)}, {v(vT[2])}, {srd(sWS)}, s{sT1} offen offset:{8*i}')
                e.nop(2)
    e.label('L_end1')
    e('s_endpgm')
    k1_lines = e.lines
    n1 = e.ninst

    hdr = open('standalone__sliding_block_cached__sampling.s.ref').read().split('\n')
    hdr = [l for l in hdr if l.startswith(';') and '@launch' not in l and 'Override' not in l and 'grid=ceil' not in l]
    out = hdr + [
        f'; @launch grid=(256,1,1) block=(512,1,1) lds={LDS_BYTES}',
        '.amdgcn_target "amdgcn-amd-amdhsa--gfx950"', '.text'] + k1_lines
    def kd(name, nv, ns, acc):
        return ['.section .rodata,"a"', '.p2align 6', f'.amdhsa_kernel {name}',
                f'  .amdhsa_next_free_vgpr {nv}', f'  .amdhsa_next_free_sgpr {ns}', f'  .amdhsa_accum_offset {acc}',
                '  .amdhsa_group_segment_fixed_size 0', '  .amdhsa_kernarg_size 64', '  .amdhsa_user_sgpr_count 2',
                '  .amdhsa_user_sgpr_kernarg_segment_ptr 1', '  .amdhsa_system_sgpr_workgroup_id_x 1', '.end_amdhsa_kernel']
    out += kd(K1, 256, 102, 256)
    print('K1 instrs', n1, 'QI', QI, 'slots', [slot_of[n] for n in range(TEND)], file=sys.stderr)
    return '\n'.join(out) + '\n'

if __name__ == '__main__':
    E = 'exp/'
    st = dict(stamps=True, vst=(0, 12), kst=(0, 4), qst=(0, 4))
    open(E + 'v13d.s', 'w').write(gen(dict(st, dbgwg=77)))
    open(E + 'v13e.s', 'w').write(gen(dict(st, dbgwg=200)))
```

```python
import sys, math, struct
from emit import Emitter
from gen6 import f32bits
K1 = 'standalone__sliding_block_cached__sampling_kernel'
PB48 = 49152

SLOT = 16384
NSLOT = 7
SCR = NSLOT * SLOT
MX = SCR + 40960
LS = MX + 1024
TOK = LS + 1024
LDS_BYTES = TOK + 64
RS = 4 * SLOT
WS_EPOCH = 0x1000000
WS_OX = 0x1100000
WS_STAMP = 0x20000000
PART_BYTES = 36864
NW, NK, NV = 18, 16, 16
TK, TV, TEND = NW, NW + NK, NW + NK + NV

def gen(opts):
    stamps = opts.get('stamps', False)
    st_pol = opts.get('st_pol', ' sc1'); k2_pol = opts.get('k2_pol', '')
    wq_pol = opts.get('wq_pol', ''); wo_pol = opts.get('wo_pol', ''); x_pol = opts.get('x_pol', '')
    e = Emitter(roles=('A', 'C'))
    sK, sV, sWQ, sX, sWO, sWS, sDBG = 20, 24, 28, 32, 36, 40, 44
    sWave, sHkv, sB, sSp = 48, 49, 50, 51
    sW2k, sT0, sT1, sT2, sT3 = 52, 53, 54, 55, 56
    sWQb, sWOb, sKc = 57, 58, 59
    sC = 60
    sKs, sG0, sVb, sW1k = 62, 63, 64, 65
    sStamp = 66
    sI4, sHH = 98, 99
    sXc, sXb = 100, 101
    nstamp = [0]
    srd = lambda n: f's[{n}:{n+3}]'
    e.role_cond[frozenset('C')] = (f's_cmp_eq_u32 s{sWave}, 7', 's_cbranch_scc0')
    e.role_cond[frozenset('A')] = (f's_cmp_eq_u32 s{sWave}, 7', 's_cbranch_scc1')
    def stamp():
        if stamps:
            i = nstamp[0]; nstamp[0] += 1
            assert i < 16
            e.wait_lg(0)
            e(f's_memrealtime s[{sStamp+2*i}:{sStamp+2*i+1}]')
            e.wait_lg(0)
    def forget(tag):
        e.vm['C'] = [x for x in e.vm['C'] if x[0] != tag]
    v = lambda n, c=1: f'v{n}' if c == 1 else f'v[{n}:{n+c-1}]'
    vLin, vLc, vLr = 1, 2, 3
    vKd = [4, 5]; vVd = 6; vVr = [7, 8]; vKr = list(range(9, 17))
    vWr = 17; vWx = 18; vMxA = 19; vMo = 20; vOr = 21
    vL = 22
    vNm = 24; vM = 25; vRw = 26; vRr = 27
    vT = [28, 29, 30, 31]
    S0 = 128; QF = 96; KF = 64; W0R = 44
    vWd = [128, 129]; vXd = 130; vQr = [132, 133]; vXb = [134, 135, 136, 137]; vXa = [138, 139, 140, 141]
    QA = 160; QB = 176; QACC = 224
    TK0 = 32

    e.raw(f'.globl {K1}'); e.raw('.p2align 8'); e.raw(f'.type {K1},@function'); e.label(K1)
    e('s_cmp_ge_u32 s2, 256')
    e('s_cbranch_scc1 L_end1')
    e('s_load_dwordx16 s[4:19], s[0:1], 0')
    if stamps:
        e(f's_memrealtime s[{sStamp}:{sStamp+1}]'); nstamp[0] = 1
    e(f'v_lshrrev_b32 {v(vT[0])}, 6, v0')
    e(f'v_and_b32 v0, 63, v0')
    e(f'v_readfirstlane_b32 s{sWave}, {v(vT[0])}')
    e(f's_and_b32 s{sHkv}, s2, 7'); e(f's_lshl_b32 s{sHkv}, s{sHkv}, 1')
    e(f's_bfe_u32 s{sT0}, s2, 0x10003'); e(f's_or_b32 s{sHkv}, s{sHkv}, s{sT0}')
    e(f's_lshr_b32 s{sB}, s2, 5')
    e(f'v_lshrrev_b32 {v(vT[0])}, 5, v0')
    e(f'v_and_b32 {v(vT[1])}, 31, v0')
    e(f'v_lshlrev_b32 {v(vT[2])}, 2, {v(vT[0])}')
    e(f'v_xor_b32 {v(vT[1])}, {v(vT[1])}, {v(vT[2])}')
    e(f'v_lshlrev_b32 {v(vT[1])}, 4, {v(vT[1])}')
    e(f'v_lshl_add_u32 {v(vWd[0])}, {v(vT[0])}, 13, {v(vT[1])}')
    e(f'v_xor_b32 {v(vWd[1])}, 0x80, {v(vWd[0])}')
    e(f'v_add_u32 {v(vWd[1])}, {16384-1024}, {v(vWd[1])}')
    e(f's_lshl_b32 s{sW2k}, s{sWave}, 11')
    e(f's_lshl_b32 s{sWQb}, s{sWave}, 15'); e(f's_lshl_b32 s{sT1}, s{sHkv}, 9'); e(f's_add_u32 s{sWQb}, s{sWQb}, s{sT1}')
    e(f's_bfe_u32 s{sKs}, s2, 0x20003'); e(f's_lshl1_add_u32 s{sKs}, s{sKs}, s{sB}')
    e(f's_cmp_ge_u32 s{sKs}, 9'); e(f's_cselect_b32 s{sT1}, 9, 0'); e(f's_sub_u32 s{sKs}, s{sKs}, s{sT1}')
    if not opts.get('rot', True): e(f's_mov_b32 s{sKs}, 0')
    e(f's_mov_b32 s{sKc}, s{sKs}')
    e(f's_and_b32 s{sI4}, s{sWave}, 3'); e(f's_lshr_b32 s{sHH}, s{sWave}, 2')
    e(f'v_lshrrev_b32 {v(vT[0])}, 3, v0')
    e(f'v_lshrrev_b32 {v(vLr)}, 4, v0')
    e(f's_and_b32 s{sT1}, s{sWave}, 1'); e(f's_lshl_b32 s{sT1}, s{sT1}, 2')
    e(f'v_or_b32 {v(vT[1])}, s{sT1}, {v(vLr)}')
    e(f'v_and_b32 {v(vT[2])}, 7, v0')
    e(f'v_xor_b32 {v(vT[1])}, {v(vT[1])}, {v(vT[2])}')
    e(f's_movk_i32 s{sT1}, 1152')
    e(f'v_mul_lo_u32 {v(vT[0])}, {v(vT[0])}, s{sT1}')
    e(f'v_lshl_add_u32 {v(vXd)}, {v(vT[1])}, 4, {v(vT[0])}')
    e(f's_mul_i32 s{sXb}, s{sB}, 36864'); e(f's_mul_i32 s{sT0}, s{sI4}, 9216'); e(f's_add_u32 s{sXb}, s{sXb}, s{sT0}')
    e(f's_add_u32 s{sXc}, s{sKs}, s{sHH}'); e(f's_cmp_eq_u32 s{sXc}, 9'); e(f's_cselect_b32 s{sXc}, 0, s{sXc}')
    e(f's_lshl_b32 s{sT2}, s{sI4}, 10'); e(f's_add_u32 s{sT2}, s{sT2}, {SCR}')
    e(f's_lshl_b32 s{sW1k}, s{sWave}, 10')
    e.wait_lg(0)
    e(f's_mov_b32 s{sX}, s4'); e(f's_mov_b32 s{sX+1}, s5'); e(f's_mov_b32 s{sX+2}, {256*1152}'); e(f's_mov_b32 s{sX+3}, 0x20000')
    e(f's_mov_b32 s{sWQ}, s10'); e(f's_mov_b32 s{sWQ+1}, s11'); e(f's_mov_b32 s{sWQ+2}, {576*8192}'); e(f's_mov_b32 s{sWQ+3}, 0x20000')

    slot_of = {}
    free = list(range(NSLOT))
    nxt = [0]
    def x_dma(k):
        e(f's_lshl_b32 s{sT1}, s{sXc}, 12'); e(f's_add_u32 m0, s{sT1}, s{sT2}')
        e(f's_lshl_b32 s{sT1}, s{sXc}, 7'); e(f's_add_u32 s{sT1}, s{sT1}, s{sXb}')
        e(f'buffer_load_dwordx4 {v(vXd)}, {srd(sX)}, s{sT1} offen{x_pol} lds', tag=f'X{k}')
        if k < 4:
            e(f's_add_u32 s{sXc}, s{sXc}, 2'); e(f's_cmp_ge_u32 s{sXc}, 9'); e(f's_cselect_b32 s{sT1}, 9, 0'); e(f's_sub_u32 s{sXc}, s{sXc}, s{sT1}')
    def dma_tile(n):
        slot = slot_of[n]
        if n < TK and n % 4 == 0: x_dma(n // 4)
        e(f's_add_u32 m0, s{sW2k}, {slot*SLOT}')
        if n < TK:
            if n % 2 == 0:
                e(f's_lshl_b32 s{sG0}, s{sKs}, 19'); e(f's_add_u32 s{sG0}, s{sG0}, s{sWQb}')
            else:
                e(f's_add_u32 s{sG0}, s{sG0}, {32*8192}')
            for i in range(2):
                e(f'buffer_load_dwordx4 {v(vWd[i])}, {srd(sWQ)}, s{sG0} offen offset:{i*1024}{wq_pol} lds', tag=f'T{n}')
            if n % 2 == 1 and n < TK - 1:
                e(f's_add_u32 s{sKs}, s{sKs}, 1'); e(f's_cmp_eq_u32 s{sKs}, 9'); e(f's_cselect_b32 s{sKs}, 0, s{sKs}')
        elif opts.get('nokv'):
            pass
        elif n < TV:
            e(f's_add_u32 s{sT1}, s{sW2k}, {(n-TK)*SLOT}')
            for i in range(2):
                e(f'buffer_load_dwordx4 {v(vKd[i])}, {srd(sK)}, s{sT1} offen offset:{i*1024} nt lds', tag=f'T{n}')
        else:
            p, u = (n - TV) // 8, (n - TV) % 8
            if n == TV + 8: e(f's_xor_b32 s{sVb}, s{sVb}, 0x80')
            e(f's_add_u32 s{sT1}, s{sVb}, {u*32768}')
            e(f'buffer_load_dwordx4 {v(vVd)}, {srd(sV)}, s{sT1} offen nt lds', tag=f'T{n}')
            e(f's_add_u32 s{sT1}, s{sT1}, 1024')
            e(f'buffer_load_dwordx4 {v(vVd)}, {srd(sV)}, s{sT1} offen offset:1024 nt lds', tag=f'T{n}')
    def issue(maxn):
        k = 0
        while nxt[0] < TEND and k < maxn:
            n = nxt[0]
            cand = [s for s in free if n < TV or s < 4]
            if not cand: break
            s = cand[0] if n >= TV else max(cand)
            free.remove(s); slot_of[n] = s; nxt[0] += 1; k += 1
            dma_tile(n)
    def release(ns):
        for n in ns: free.append(slot_of[n])
        free.sort()

    issue(2)
    issue(opts.get('w1', 1))

    e(f'v_and_b32 {v(vLc)}, 15, v0')
    e(f'v_lshlrev_b32 {v(vLin)}, 4, v0')
    e(f'v_lshrrev_b32 {v(vT[0])}, 2, {v(vLc)}')
    e(f'v_xor_b32 {v(vT[1])}, s{sWave}, {v(vT[0])}')
    e(f'v_lshlrev_b32 {v(vT[1])}, 6, {v(vT[1])}')
    e(f'v_lshl_add_u32 {v(vT[1])}, {v(vT[0])}, 9, {v(vT[1])}')
    e(f'v_lshrrev_b32 {v(vT[2])}, 5, v0')
    e(f'v_lshl_add_u32 {v(vT[1])}, {v(vT[2])}, 12, {v(vT[1])}')
    e(f'v_and_b32 {v(vT[3])}, 1, {v(vLr)}')
    e(f'v_lshl_add_u32 {v(vT[1])}, {v(vT[3])}, 5, {v(vT[1])}')
    e(f'v_and_b32 {v(vT[3])}, 3, {v(vLc)}')
    e(f'v_lshl_add_u32 {v(vQr[0])}, {v(vT[3])}, 3, {v(vT[1])}')
    e(f'v_add_u32 {v(vQr[1])}, 0x10000, {v(vQr[0])}')
    e(f'v_and_b32 {v(vT[0])}, 31, v0')
    e(f'v_bfe_u32 {v(vT[1])}, v0, 1, 3')
    e(f'v_xor_b32 {v(vT[1])}, {v(vT[1])}, {v(vT[2])}')
    e(f'v_lshlrev_b32 {v(vT[1])}, 4, {v(vT[1])}')
    e(f'v_lshl_add_u32 {v(vXb[0])}, {v(vT[0])}, 7, {v(vT[1])}')
    for k in range(1, 4): e(f'v_xor_b32 {v(vXb[k])}, {32*k}, {v(vXb[0])}')

    def mid_setup():
        e(f's_bfe_u32 s{sSp}, s2, 0x10004')
        e(f's_lshl_b32 s{sT0}, s{sB}, 4'); e(f's_add_u32 s{sT0}, s{sT0}, s{sHkv}'); e(f's_lshl_b32 s{sT0}, s{sT0}, 21')
        e(f's_lshl_b32 s{sT1}, s{sSp}, 18'); e(f's_add_u32 s{sT0}, s{sT0}, s{sT1}'); e(f's_add_u32 s{sT0}, s{sT0}, {6144*256}')
        e(f's_add_u32 s{sK}, s6, s{sT0}'); e(f's_addc_u32 s{sK+1}, s7, 0'); e(f's_mov_b32 s{sK+2}, 0x40000'); e(f's_mov_b32 s{sK+3}, 0x20000')
        e(f's_add_u32 s{sV}, s8, s{sT0}'); e(f's_addc_u32 s{sV+1}, s9, 0'); e(f's_mov_b32 s{sV+2}, 0x40000'); e(f's_mov_b32 s{sV+3}, 0x20000')
        e(f's_and_b32 s{sT1}, s{sWave}, 1'); e(f's_lshl_b32 s{sT1}, s{sT1}, 3')
        e(f'v_xor_b32 {v(vT[0])}, {v(vLr)}, {v(vLc)}')
        e(f'v_xor_b32 {v(vT[0])}, s{sT1}, {v(vT[0])}')
        e(f'v_lshlrev_b32 {v(vT[0])}, 4, {v(vT[0])}')
        e(f'v_lshl_add_u32 {v(vKd[0])}, {v(vLr)}, 8, {v(vT[0])}')
        e(f'v_xor_b32 {v(vKd[1])}, 64, {v(vKd[0])}')
    def setup_k():
        e(f'v_lshrrev_b32 {v(vT[0])}, 5, v0')
        e(f'v_xor_b32 {v(vT[0])}, {v(vT[0])}, {v(vLc)}')
        e(f'v_lshlrev_b32 {v(vT[0])}, 4, {v(vT[0])}')
        e(f'v_and_b32 {v(vT[1])}, 31, v0')
        e(f'v_lshl_add_u32 {v(vT[0])}, {v(vT[1])}, 8, {v(vT[0])}')
        e(f's_and_b32 s{sT1}, s{sWave}, 1'); e(f's_lshl_b32 s{sT1}, s{sT1}, 13')
        e(f'v_add_u32 {v(vKr[0])}, s{sT1}, {v(vT[0])}')
        for j in range(1, 8): e(f'v_xor_b32 {v(vKr[j])}, {32*j}, {v(vKr[0])}')
    def setup_w():
        e(f's_mov_b32 s{sWO}, s12'); e(f's_mov_b32 s{sWO+1}, s13'); e(f's_mov_b32 s{sWO+2}, {4096*1152}'); e(f's_mov_b32 s{sWO+3}, 0x20000')
        e(f's_mov_b32 s{sWS}, s18'); e(f's_mov_b32 s{sWS+1}, s19'); e(f's_mov_b32 s{sWS+2}, 0x30000000'); e(f's_mov_b32 s{sWS+3}, 0x20000')
        e(f's_mov_b32 s{sDBG}, s16'); e(f's_mov_b32 s{sDBG+1}, s17'); e(f's_mov_b32 s{sDBG+2}, 256'); e(f's_mov_b32 s{sDBG+3}, 0x20000')
        e(f's_lshl_b32 s{sT1}, s{sHkv}, 2'); e(f's_add_u32 s{sT1}, s{sT1}, s{sSp}')
        e(f's_mul_i32 s{sWOb}, s{sT1}, {64*1152}'); e(f's_add_u32 s{sWOb}, s{sWOb}, s{sW1k}')
        e(f'v_mov_b32 {v(TK0)}, {hex(WS_EPOCH)}'); e(f'v_mov_b32 {v(TK0+2)}, 0')
    def setup_v():
        e(f's_mov_b32 s{sC}, {hex(f32bits(math.log2(math.e) / math.sqrt(128.0)))}'); e(f's_mov_b32 s{sC+1}, s{sC}')
        e(f's_xor_b32 s{sT1}, s{sSp}, 1'); e(f's_lshl_b32 s{sT1}, s{sT1}, 7')
        e(f's_lshl_b32 s{sVb}, s{sWave}, 12'); e(f's_add_u32 s{sVb}, s{sVb}, s{sT1}')
        e(f'v_lshrrev_b32 {v(vT[0])}, 3, v0')
        e(f'v_and_b32 {v(vT[1])}, 1, {v(vLr)}')
        e(f'v_lshlrev_b32 {v(vT[1])}, 2, {v(vT[1])}')
        e(f'v_and_b32 {v(vT[2])}, 7, v0')
        e(f'v_xor_b32 {v(vT[1])}, {v(vT[1])}, {v(vT[2])}')
        e(f'v_lshlrev_b32 {v(vT[1])}, 4, {v(vT[1])}')
        e(f'v_lshl_add_u32 {v(vVd)}, {v(vT[0])}, 8, {v(vT[1])}')
        e(f'v_lshrrev_b32 {v(vT[0])}, 5, v0')
        e(f'v_lshrrev_b32 {v(vT[1])}, 2, {v(vLc)}')
        e(f'v_lshl_add_u32 {v(vT[0])}, {v(vT[0])}, 2, {v(vT[1])}')
        e(f'v_and_b32 {v(vT[1])}, 2, {v(vT[1])}')
        e(f'v_and_b32 {v(vT[2])}, 1, {v(vLr)}')
        e(f'v_or_b32 {v(vT[1])}, {v(vT[1])}, {v(vT[2])}')
        e(f'v_xor_b32 {v(vT[1])}, s{sI4}, {v(vT[1])}')
        e(f'v_lshlrev_b32 {v(vT[1])}, 5, {v(vT[1])}')
        e(f'v_lshl_add_u32 {v(vT[1])}, {v(vT[0])}, 7, {v(vT[1])}')
        e(f'v_and_b32 {v(vT[2])}, 3, {v(vLc)}')
        e(f'v_lshl_add_u32 {v(vT[1])}, {v(vT[2])}, 3, {v(vT[1])}')
        e(f's_lshl_b32 s{sT1}, s{sI4}, 12')
        e(f'v_add_u32 {v(vVr[0])}, s{sT1}, {v(vT[1])}')
        e(f'v_xor_b32 {v(vVr[1])}, 64, {v(vVr[0])}')
        e(f'v_lshrrev_b32 {v(vT[0])}, 5, v0')
        e(f'v_lshlrev_b32 {v(vT[0])}, 3, {v(vT[0])}')
        e(f'v_lshrrev_b32 {v(vT[1])}, 2, v0')
        e(f'v_add_u32 {v(vT[0])}, {v(vT[0])}, {v(vT[1])}')
        e(f's_movk_i32 s{sT1}, 1152')
        e(f'v_mul_lo_u32 {v(vT[0])}, {v(vT[0])}, s{sT1}')
        e(f'v_lshl_add_u32 {v(vT[0])}, {v(vT[2])}, 3, {v(vT[0])}')
        e(f's_lshl_b32 s{sT1}, s{sWave}, 7'); e(f's_add_u32 s{sT1}, s{sT1}, {SCR}')
        e(f'v_add_u32 {v(vWr)}, s{sT1}, {v(vT[0])}')
        e(f's_lshr_b32 s{sT1}, s{sWave}, 1'); e(f's_lshl_b32 s{sT1}, s{sT1}, 5'); e(f's_add_u32 s{sT1}, s{sT1}, {SCR + 1024}')
        e(f'v_add_u32 {v(vWx)}, s{sT1}, {v(vT[0])}')
        e(f'v_and_b32 {v(vT[0])}, 31, v0')
        e(f's_lshl_b32 s{sT1}, s{sHH}, 9'); e(f's_add_u32 s{sT1}, s{sT1}, {MX}')
        e(f'v_lshlrev_b32 {v(vT[0])}, 4, {v(vT[0])}')
        e(f'v_add_u32 {v(vMxA)}, s{sT1}, {v(vT[0])}')
        e(f's_lshl_b32 s{sT1}, s{sI4}, 2')
        e(f'v_add_u32 {v(vMo)}, s{sT1}, {v(vMxA)}')
        e(f's_add_u32 s{sT1}, s{sW2k}, {RS}')
        e(f'v_add_u32 {v(vRr)}, s{sT1}, {v(vLin)}')
        e(f'v_lshlrev_b32 {v(vT[1])}, 9, {v(vLr)}')
        e(f'v_lshl_add_u32 {v(vOr)}, {v(vLc)}, 4, {v(vT[1])}')
    mid_setup()

    QI = None
    def q_mf(q):
        o = 32 * (q % 2)
        for k in range(4):
            c = '0' if (q == 0 and k == 0) else v(QACC, 16)
            e(f'v_mfma_f32_32x32x16_bf16 {v(QACC,16)}, {v(QA+o+4*k,4)}, {v(QB+o+4*k,4)}, {c}')
    for q in range(9):
        e(f's_lshl_b32 s{sT1}, s{sKc}, 12'); e(f's_add_u32 s{sT1}, s{sT1}, {SCR}')
        for k in range(4): e(f'v_add_u32 {v(vXa[k])}, s{sT1}, {v(vXb[k])}')
        if q < 8:
            e(f's_add_u32 s{sKc}, s{sKc}, 1'); e(f's_cmp_eq_u32 s{sKc}, 9'); e(f's_cselect_b32 s{sKc}, 0, s{sKc}')
        e.wait_vm(f'T{2*q}', f'T{2*q+1}')
        if q == 0: issue(opts.get('w2', 4))
        e.wait_lg(0)
        e('s_barrier')
        if q in opts.get('qst', (0,)): stamp()
        o = 32 * (q % 2)
        for k in range(4):
            par, s_ = k // 2, k % 2
            off = slot_of[2*q+par] * SLOT + s_ * 8192
            r = vQr[off // 65536]; off %= 65536
            e(f'ds_read_b64_tr_b16 {v(QA+o+4*k,2)}, {v(r)} offset:{off}')
            e(f'ds_read_b64_tr_b16 {v(QA+o+4*k+2,2)}, {v(r)} offset:{off + 2048}')
            e(f'ds_read_b128 {v(QB+o+4*k,4)}, {v(vXa[k])}')
        if q >= 1:
            release([2*q-2, 2*q-1])
            if q == 8: QI = free.pop(0) * SLOT
            if nxt[0] < TK: issue(min(2, TK - nxt[0]))
            q_mf(q - 1)
            if nxt[0] >= TK and q < 8: issue(opts.get('kq', 2))
        if q == 7: setup_k()
    q_mf(8)
    e(f'v_and_b32 {v(vT[0])}, 31, v0')
    e(f'v_lshrrev_b32 {v(vT[1])}, 5, v0')
    e(f'v_lshlrev_b32 {v(vT[0])}, 4, {v(vT[0])}')
    e(f'v_lshl_add_u32 {v(vT[0])}, {v(vT[1])}, 3, {v(vT[0])}')
    e(f's_add_u32 s{sT1}, s{sW2k}, {QI}')
    e(f'v_add_u32 {v(vT[0])}, s{sT1}, {v(vT[0])}')
    e(f's_lshl_b32 s{sT1}, s{sHH}, 13'); e(f's_add_u32 s{sT1}, s{sT1}, {QI}')
    e(f'v_add_u32 {v(vT[2])}, s{sT1}, {v(vLin)}')
    for a_ in range(4):
        e(f'v_cvt_pk_bf16_f32 {v(QA+2*a_)}, {v(QACC+4*a_)}, {v(QACC+4*a_+1)}')
        e(f'v_cvt_pk_bf16_f32 {v(QA+2*a_+1)}, {v(QACC+4*a_+2)}, {v(QACC+4*a_+3)}')
        e(f'ds_write_b64 {v(vT[0])}, {v(QA+2*a_,2)} offset:{a_*512}')
    issue(2)
    stamp()

    def wo_dma(ck, ks):
        if opts.get('nowo'): return
        hh, jb = ck // 2, ck % 2
        for k in ks:
            e(f's_add_u32 m0, s{sW1k}, {SCR + k*8192}')
            e(f's_add_u32 s{sT1}, s{sWOb}, {(128*hh + 32*jb)*1152 + k*8192}')
            e(f'buffer_load_dwordx4 {v(vLin)}, {srd(sWO)}, s{sT1} offen{wo_pol} lds', tag=f'W{ck}')
    def up(k): return S0 + 16 * (k // 2) + 8 + 4 * (k % 2)
    WF = {0: [W0R + 4*j for j in range(5)]}
    for ck in range(1, 4): WF[ck] = [up(5*(ck-1) + j) for j in range(5)]
    def wo_read(ck):
        for j in range(4):
            for hf in range(2):
                e(f'ds_read_b64_tr_b16 {v(WF[ck][j]+2*hf,2)}, {v(vWr)} offset:{hf*9216 + 32*j}')
        for hf in range(2):
            e(f'ds_read_b64_tr_b16 {v(WF[ck][4]+2*hf,2)}, {v(vWx)} offset:{hf*9216}')
    wsched = opts.get('wsched', {0: ({0: (0, 1), 1: (2, 3), 2: (4,)}, 4),
                                 1: ({5: (0, 1), 6: (2, 3), 7: (4,)}, 11),
                                 2: ({12: (0, 1), 13: (2, 3), 14: (4,)}, 17),
                                 3: ({18: (0, 1), 19: (2, 3), 20: (4,)}, 23)})
    wo_dma_at = {}; wo_read_at = {}
    for ck, (d, rd) in wsched.items():
        for st, ks in d.items(): wo_dma_at[st] = (ck, ks)
        wo_read_at[rd] = ck

    def head(step, tiles):
        tags = [f'T{n}' for n in tiles]
        if step in wo_read_at: tags.append(f'W{wo_read_at[step]}')
        if tags: e.wait_vm(*tags)
        e.wait_lg(0)
        e('s_barrier')
    def tail(step):
        if step in wo_dma_at: wo_dma(*wo_dma_at[step])
        need = TK + ((2*step + 4) if step < 8 else (16 + step - 8 + 1))
        la = opts.get('la', 2)
        issue(max(0, min(3, need + la - nxt[0])))
    def xswap(reg, tmp, op):
        e(f'v_mov_b32 {v(tmp)}, {v(reg)}')
        e(f'v_permlane32_swap_b32 {v(reg)}, {v(tmp)}')
        e(f'{op} {v(reg)}, {v(reg)}, {v(tmp)}')

    kcur = [(0, 0)]
    for u in range(8):
        ta, tb = TK + 2*u, TK + 2*u + 1
        sa, sb = slot_of[ta] * SLOT, slot_of[tb] * SLOT
        pa, pb = kcur[0]
        da, db_ = (sa - pa) & 0xffffffff, (sb - pb) & 0xffffffff
        e(f's_cmp_lt_u32 s{sI4}, 2')
        e(f's_mov_b32 s{sT0}, {hex(db_)}')
        e(f's_cmov_b32 s{sT0}, {hex(da)}')
        for j in range(8): e(f'v_add_u32 {v(vKr[j])}, s{sT0}, {v(vKr[j])}')
        kcur[0] = (sa, sb)
        head(u, [ta, tb])
        if u in opts.get('kst', ()): stamp()
        if u == 0:
            release([TK-2, TK-1])
            for j in range(8):
                e(f'ds_read_b128 {v(QF+4*j,4)}, {v(vT[2])} offset:{j*1024}')
        else:
            release([ta-2, tb-2])
            if u == 1: free.append(QI // SLOT); free.sort()
        for j in range(8):
            e(f'ds_read_b128 {v(KF+4*j,4)}, {v(vKr[j])}')
        if u == 0: setup_w()
        tail(u)
        if u in wo_read_at: wo_read(wo_read_at[u])
        if u >= 1:
            Sp = S0 + 16 * (u - 1)
            if u == 1: e(f'v_max3_f32 {v(vM)}, {v(Sp)}, {v(Sp+1)}, {v(Sp+2)}'); st = 3
            else: st = 0
            for i in range(st, 15, 2): e(f'v_max3_f32 {v(vM)}, {v(vM)}, {v(Sp+i)}, {v(Sp+i+1)}')
            if u == 1: e(f'v_max_f32 {v(vM)}, {v(vM)}, {v(Sp+15)}')
        Sb = S0 + 16 * u
        for j in range(8):
            c = '0' if j == 0 else v(Sb, 16)
            e(f'v_mfma_f32_32x32x16_bf16 {v(Sb,16)}, {v(KF+4*j,4)}, {v(QF+4*j,4)}, {c}')
        if u == 0:
            with e.only('C'):
                lw = e.newlabel('Llead')
                saved = list(e.vm['C'])
                e(f's_cmp_lg_u32 s2, 0')
                e(f's_cbranch_scc1 {lw}')
                e(f's_mov_b64 exec, 1')
                e(f'buffer_load_dword {v(TK0+1)}, {v(TK0)}, {srd(sWS)}, 0 offen sc1', tag='EP')
                e.wait_vm_all()
                e(f'v_add_u32 {v(TK0+1)}, 1, {v(TK0+1)}')
                e(f'v_or_b32 {v(TK0+1)}, 0x80000000, {v(TK0+1)}')
                e(f'buffer_store_dword {v(TK0+1)}, {v(TK0+2)}, {srd(sDBG)}, 0 offen sc1', tag='EPS')
                e(f'buffer_store_dword {v(TK0+1)}, {v(TK0)}, {srd(sWS)}, 0 offen sc1', tag='EPS')
                e(f's_mov_b64 exec, -1')
                e.label(lw)
                e.vm['C'] = saved
        if u == 1: setup_v()
        if u == 6:
            e(f'buffer_load_dword {v(TK0+1)}, {v(TK0+2)}, {srd(sDBG)}, 0 offen', tag='TKL')
    Sp = S0 + 16 * 7
    for i in range(0, 16, 2): e(f'v_max3_f32 {v(vM)}, {v(vM)}, {v(Sp+i)}, {v(Sp+i+1)}')
    xswap(vM, vT[0], 'v_max_f32')
    e(f'ds_write_b32 {v(vMo)}, {v(vM)}')
    stamp()

    def softmax(u):
        Sb = S0 + 16 * u
        g = [f'v_pk_fma_f32 {v(Sb+i,2)}, {v(Sb+i,2)}, s[{sC}:{sC+1}], {v(vNm,2)} op_sel_hi:[1,0,0]' for i in range(0, 16, 2)]
        g += [f'v_exp_f32 {v(Sb+i)}, {v(Sb+i)}' for i in range(16)]
        if u == 0:
            g += [f'v_pk_add_f32 {v(vL,2)}, {v(Sb,2)}, {v(Sb+2,2)}'] + [f'v_pk_add_f32 {v(vL,2)}, {v(vL,2)}, {v(Sb+i,2)}' for i in range(4, 16, 2)]
        else:
            g += [f'v_pk_add_f32 {v(vL,2)}, {v(vL,2)}, {v(Sb+i,2)}' for i in range(0, 16, 2)]
        g += [f'v_cvt_pk_bf16_f32 {v(Sb+i)}, {v(Sb+2*i)}, {v(Sb+2*i+1)}' for i in range(8)]
        return g

    head(8, [])
    release([TV-2, TV-1])
    e(f'ds_read_b128 {v(vT[0],4)}, {v(vMxA)}')
    tail(8)
    e(f'v_max3_f32 {v(vM)}, {v(vT[0])}, {v(vT[1])}, {v(vT[2])}')
    e(f'v_max_f32 {v(vM)}, {v(vM)}, {v(vT[3])}')
    e(f'v_mul_f32 {v(vNm)}, s{sC}, {v(vM)}')
    e(f'v_sub_f32 {v(vNm)}, 0, {v(vNm)}')
    for x in softmax(0): e(x)

    O = 96
    VF = 64
    TM = 80
    vTok = TK0 + 1
    vLse, vRl = 36, 37
    RG = [40, up(15)]
    sRX = sKs
    sOUT = sWQ
    vOa, vFa, vFb, vBo = 9, 10, 11, 12
    def setup_out():
        e(f's_mov_b32 s{sOUT}, s14'); e(f's_mov_b32 s{sOUT+1}, s15'); e(f's_mov_b32 s{sOUT+2}, {256*1152}'); e(f's_mov_b32 s{sOUT+3}, 0x20000')
        a, b_, c_, d_, f_, g_ = 13, 14, 15, 16, vT[0], vT[1]
        e(f's_lshl_b32 s{sT1}, s{sWave}, 6')
        e(f'v_add_u32 {v(a)}, s{sT1}, v0')
        e(f'v_mul_u32_u24 {v(b_)}, 0x5556, {v(a)}'); e(f'v_lshrrev_b32 {v(b_)}, 16, {v(b_)}')
        e(f'v_mul_u32_u24 {v(c_)}, 3, {v(b_)}'); e(f'v_sub_u32 {v(c_)}, {v(a)}, {v(c_)}')
        e(f'v_and_b32 {v(d_)}, 63, {v(b_)}')
        e(f'v_mul_u32_u24 {v(d_)}, 48, {v(d_)}')
        e(f'v_lshl_add_u32 {v(d_)}, {v(c_)}, 3, {v(d_)}')
        e(f'v_lshrrev_b32 {v(vFb)}, 6, {v(b_)}')
        e(f'v_mul_u32_u24 {v(f_)}, 24, {v(vFb)}')
        e(f'v_add_u32 {v(vFa)}, {v(d_)}, {v(f_)}')
        e(f's_and_b32 s{sT1}, s2, 31'); e(f's_mul_i32 s{sT1}, s{sT1}, 96')
        e(f'v_add_u32 {v(b_)}, s{sT1}, {v(b_)}')
        e(f'v_lshrrev_b32 {v(d_)}, 6, {v(b_)}')
        e(f'v_mul_u32_u24 {v(f_)}, 0x2aab, {v(d_)}'); e(f'v_lshrrev_b32 {v(f_)}, 16, {v(f_)}')
        e(f'v_mul_u32_u24 {v(g_)}, 6, {v(f_)}'); e(f'v_sub_u32 {v(d_)}, {v(d_)}, {v(g_)}')
        e(f'v_mad_u32_u24 {v(c_)}, {v(d_)}, 3, {v(c_)}')
        e(f'v_lshrrev_b32 {v(d_)}, 2, {v(c_)}')
        e(f'v_lshl_add_u32 {v(d_)}, {v(f_)}, 2, {v(d_)}')
        e(f'v_lshrrev_b32 {v(g_)}, 1, {v(f_)}'); e(f'v_add_u32 {v(g_)}, 32, {v(g_)}')
        e(f'v_cmp_lt_u32 vcc, 15, {v(c_)}')
        e(f'v_cndmask_b32 {v(d_)}, {v(d_)}, {v(g_)}, vcc')
        e(f'v_lshrrev_b32 {v(g_)}, 1, {v(c_)}')
        e(f'v_cndmask_b32 {v(g_)}, {v(g_)}, {v(f_)}, vcc')
        e(f'v_and_b32 {v(g_)}, 1, {v(g_)}')
        e(f'v_and_b32 {v(f_)}, 15, {v(b_)}')
        e(f'v_lshl_add_u32 {v(f_)}, {v(g_)}, 4, {v(f_)}')
        e(f'v_mul_u32_u24 {v(f_)}, 1152, {v(f_)}')
        e(f'v_lshl_add_u32 {v(f_)}, {v(d_)}, 5, {v(f_)}')
        e(f'v_bfe_u32 {v(g_)}, {v(b_)}, 4, 2')
        e(f'v_lshl_add_u32 {v(f_)}, {v(g_)}, 3, {v(f_)}')
        e(f'v_and_b32 {v(g_)}, 1, {v(c_)}')
        e(f'v_lshl_add_u32 {v(f_)}, {v(g_)}, 2, {v(f_)}')
        e(f's_mul_i32 s{sT1}, s{sB}, 36864')
        e(f'v_add_u32 {v(f_)}, s{sT1}, {v(f_)}')
        e(f'v_mov_b32 {v(g_)}, 0x7fffffff')
        e(f'v_cmp_gt_u32 vcc, 0x120, {v(a)}')
        e(f'v_cndmask_b32 {v(vOa)}, {v(g_)}, {v(f_)}, vcc')
        e(f'v_cndmask_b32 {v(vFa)}, 0, {v(vFa)}, vcc')
        e(f'v_lshrrev_b32 {v(g_)}, 5, v0')
        e(f'v_mul_u32_u24 {v(g_)}, {PB48 - 512}, {v(g_)}')
        e(f'v_add3_u32 {v(vBo)}, {v(g_)}, {v(vLin)}, 64')
        e(f'v_add_u32 {v(vBo)}, {1024 - 64}, {v(vBo)}')
        e(f'v_and_b32 {v(g_)}, 3, v0')
        e(f'v_mul_u32_u24 {v(g_)}, {PB48}, {v(g_)}')
        e(f'v_add_u32 {v(13)}, {1536 - 4}, {v(g_)}')
    def rx_loads():
        for j in range(2):
            e(f'buffer_load_dwordx4 {v(RG[j],4)}, {v(vLin)}, {srd(sWS)}, s{sRX} offen offset:{j*1024} sc1', tag='RX')
    def red_write():
        for k in range(1, 4):
            e(f'v_xor_b32 {v(vT[k])}, {k*2048}, {v(vRr)}')
        for k in range(1, 4):
            e(f'ds_write_b128 {v(vT[k])}, {v(O+8*k,4)} offset:{(k-1)*SLOT}')
            e(f'ds_write_b128 {v(vT[k])}, {v(O+8*k+4,4)} offset:{(k-1)*SLOT + 1024}')
    for t in range(16):
        step = 9 + t; n = TV + t; p, u = t // 8, t % 8
        head(step, [n])
        if t in opts.get('vst', ()): stamp()
        if t >= 1: release([n - 1])
        off = slot_of[n] * SLOT
        for k in range(4):
            s_, d2 = k // 2, k % 2
            e(f'ds_read_b64_tr_b16 {v(VF+4*k,2)}, {v(vVr[d2])} offset:{off + s_*2048}')
            e(f'ds_read_b64_tr_b16 {v(VF+4*k+2,2)}, {v(vVr[d2])} offset:{off + s_*2048 + 1024}')
        tail(step)
        if t == 3:
            lp = e.newlabel('Ltk'); ld = e.newlabel('Ltkd')
            e(f's_mov_b32 s{sT3}, 0x20000')
            e.wait_vm('TKL')
            saved = {r: list(e.vm[r]) for r in e.vm}
            e.label(lp)
            e(f'v_readfirstlane_b32 s{sT1}, {v(vTok)}')
            e(f's_cmp_lg_u32 s{sT1}, 0')
            e(f's_cbranch_scc1 {ld}')
            e(f's_sub_u32 s{sT3}, s{sT3}, 1')
            e(f's_cmp_eq_u32 s{sT3}, 0')
            e(f's_cbranch_scc1 {ld}')
            e(f's_sleep 8')
            e(f'buffer_load_dword {v(vTok)}, {v(TK0+2)}, {srd(sDBG)}, 0 offen sc1', tag='TKL')
            e.wait_vm_all()
            e(f's_branch {lp}')
            e.vm = saved
            e.label(ld)
        if t == 7:
            e(f'ds_read_b128 {v(TM,4)}, {v(vMxA)} offset:1024')
            e(f's_xor_b32 s{sRX}, s2, 16'); e(f's_lshl_b32 s{sRX}, s{sRX}, 14'); e(f's_add_u32 s{sRX}, s{sRX}, {hex(WS_OX)}')
            e(f's_add_u32 s{sRX}, s{sRX}, s{sW2k}')
            e(f'v_add_f32 {v(TM)}, {v(TM)}, {v(TM+1)}')
            e(f'v_add_f32 {v(TM+2)}, {v(TM+2)}, {v(TM+3)}')
            e(f'v_add_f32 {v(TM)}, {v(TM)}, {v(TM+2)}')
            e(f'v_log_f32 {v(TM+1)}, {v(TM)}')
            e(f'v_rcp_f32 {v(vRl)}, {v(TM)}')
            e(f'v_sub_f32 {v(vLse)}, {v(TM+1)}, {v(vNm)}')
        if t == 8:
            for k in range(1, 4):
                e(f'ds_read_b128 {v(TM+8,4)}, {v(vRr)} offset:{(k-1)*SLOT}')
                e(f'ds_read_b128 {v(TM+12,4)}, {v(vRr)} offset:{(k-1)*SLOT + 1024}')
                for i in range(0, 8, 2):
                    e(f'v_pk_add_f32 {v(TM+i,2)}, {v(TM+i,2)}, {v(TM+8+i,2)}')
            for i in range(8): e(f'v_mul_f32 {v(TM+i)}, {v(TM+i)}, {v(vRl)}')
            e(f's_xor_b32 s{sT1}, s{sRX}, {hex(16 << 14)}')
            for i in range(3): e(f'v_cvt_pk_bf16_f32 {v(TM+8+i)}, {v(TM+2*i)}, {v(TM+2*i+1)}')
            e(f'v_mov_b32 {v(TM+11)}, {v(vTok)}')
            e(f'v_cvt_pk_bf16_f32 {v(TM+12)}, {v(TM+6)}, {v(TM+7)}')
            e(f'v_mov_b32 {v(TM+13)}, {v(vLse)}')
            e(f'v_mov_b32 {v(TM+15)}, {v(vTok)}')
            if not opts.get('noox'):
                e(f'buffer_store_dwordx4 {v(TM+8,4)}, {v(vLin)}, {srd(sWS)}, s{sT1} offen sc1', tag='OX')
                e(f'buffer_store_dwordx4 {v(TM+12,4)}, {v(vLin)}, {srd(sWS)}, s{sT1} offen offset:1024 sc1', tag='OX')
        if t == 10: setup_out()
        if t == opts.get('rxat', 13) and not opts.get('noox'): rx_loads()
        if step in wo_read_at: wo_read(wo_read_at[step])
        sm = softmax(u + 1) if (p == 0 and u < 7) else []
        cuts = [0, 10, 20, 30, len(sm)] if sm else [0]*5
        for k in range(4):
            s_, d2 = k // 2, k % 2
            for x in sm[cuts[k]:cuts[k+1]]: e(x)
            c = '0' if (u == 0 and s_ == 0) else v(O+16*d2, 16)
            e(f'v_mfma_f32_32x32x16_bf16 {v(O+16*d2,16)}, {v(VF+4*k,4)}, {v(S0+16*u+4*s_,4)}, {c}')
        if t == 6:
            e(f'v_add_f32 {v(vL)}, {v(vL)}, {v(vL+1)}')
            xswap(vL, vT[0], 'v_add_f32')
            e(f'ds_write_b32 {v(vMo)}, {v(vL)} offset:1024')
        if t == 7:
            red_write()
            for i in range(8): e(f'v_mov_b32 {v(TM+i)}, {v(O+i)}')
            stamp()
    assert WS_OX % (32 << 14) == 0 and RS % 16384 == 0
    stamp()
    red_write()
    lp = e.newlabel('Lrx'); ld = e.newlabel('Lrxd')
    e(f's_mov_b32 s{sT3}, 0x20000')
    e.label(lp)
    e.wait_vm_all()
    e(f'v_xor_b32 {v(TM)}, {v(RG[0]+3)}, {v(vTok)}')
    e(f'v_xor_b32 {v(TM+1)}, {v(RG[1]+3)}, {v(vTok)}')
    e(f'v_or_b32 {v(TM)}, {v(TM)}, {v(TM+1)}')
    e(f'v_cmp_ne_u32 vcc, 0, {v(TM)}')
    e.nop(4)
    e(f's_cbranch_vccz {ld}')
    if opts.get('noox'): e(f's_branch {ld}')
    e(f's_sub_u32 s{sT3}, s{sT3}, 1')
    e(f's_cmp_eq_u32 s{sT3}, 0')
    e(f's_cbranch_scc1 {ld}')
    e(f's_sleep 8')
    rx_loads()
    e(f's_branch {lp}')
    for r in e.vm: e.vm[r] = []
    e.label(ld)
    e(f's_mov_b32 s{sT3}, 0xffff0000')
    t0, t1 = 38, 39
    e(f'v_sub_f32 {v(t0)}, {v(vLse)}, {v(RG[1]+1)}')
    e(f'v_sub_f32 {v(t1)}, {v(RG[1]+1)}, {v(vLse)}')
    e(f'v_exp_f32 {v(t0)}, {v(t0)}'); e(f'v_exp_f32 {v(t1)}, {v(t1)}')
    e(f'v_add_f32 {v(t0)}, 1.0, {v(t0)}'); e(f'v_add_f32 {v(t1)}, 1.0, {v(t1)}')
    e(f'v_rcp_f32 {v(t0)}, {v(t0)}'); e(f'v_rcp_f32 {v(t1)}, {v(t1)}')
    gsrc = [RG[0], RG[0]+1, RG[0]+2, RG[1]]
    for i in range(4):
        e(f'v_lshlrev_b32 {v(TM+2*i)}, 16, {v(gsrc[i])}'); e(f'v_and_b32 {v(TM+2*i+1)}, s{sT3}, {v(gsrc[i])}')
    e(f'v_mul_f32 {v(t1)}, {v(t1)}, {v(vRl)}')
    for i in range(8): e(f'v_mul_f32 {v(TM+i)}, {v(TM+i)}, {v(t0)}')
    OI = slot_of[TEND-2] * SLOT
    e(f's_add_u32 s{sT1}, s{sW1k}, {OI}')
    e(f'v_add_u32 {v(vT[0])}, s{sT1}, {v(vLin)}')
    e(f's_and_b32 s{sT2}, s{sWave}, 1'); e(f's_lshl_b32 s{sT0}, s{sT2}, 3'); e(f's_lshl_b32 s{sT1}, s{sT2}, 8')
    e(f'v_add_u32 {v(vRw)}, s{sT1}, {v(vOr)}')
    e.wait_lg(0)
    e('s_barrier')
    for k in range(1, 4):
        e(f'ds_read_b128 {v(O+8*k,4)}, {v(vRr)} offset:{(k-1)*SLOT}')
        e(f'ds_read_b128 {v(O+8*k+4,4)}, {v(vRr)} offset:{(k-1)*SLOT + 1024}')
    for k in range(1, 4):
        for i in range(0, 8, 2):
            e(f'v_pk_add_f32 {v(O+i,2)}, {v(O+i,2)}, {v(O+8*k+i,2)}')
    for i in range(8): e(f'v_fma_f32 {v(O+i)}, {v(O+i)}, {v(t1)}, {v(TM+i)}')
    for i in range(4): e(f'v_cvt_pk_bf16_f32 {v(TM+i)}, {v(O+2*i)}, {v(O+2*i+1)}')
    e(f'ds_write_b128 {v(vT[0])}, {v(TM,4)}')
    e.wait_lg(0)
    e('s_barrier')
    lo = lambda k: S0 + 16 * (k // 2) + 4 * (k % 2)
    for ck in range(4):
        for qt in range(2):
            e(f'ds_read_b128 {v(lo(2*ck+qt),4)}, {v(vOr)} offset:{OI + ck*2048 + qt*256}')
    for ck in range(4):
        e(f'ds_read_b128 {v(lo(8+ck),4)}, {v(vRw)} offset:{OI + ck*2048}')
    e(f's_mul_i32 s{sT1}, s2, {PB48}')
    e(f's_mul_i32 s{sT2}, s{sWave}, 6144'); e(f's_add_u32 s{sT1}, s{sT1}, s{sT2}'); e(f's_add_u32 s{sT2}, s{sT1}, 4096')
    AC = 88
    G = 64
    for j6 in range(6): e(f'v_mov_b32 {v(G+4*j6+3)}, {v(vTok)}')
    def cv(p0, p1):
        for p_ in range(p0, p1):
            e(f'v_cvt_pk_bf16_f32 {v(G+4*(p_//3)+p_%3)}, {v(AC+2*p_)}, {v(AC+2*p_+1)}')
            if p_ % 3 == 2:
                j6 = p_ // 3
                so = sT1 if j6 < 4 else sT2
                e(f'buffer_store_dwordx4 {v(G+4*j6,4)}, {v(vLin)}, {srd(sWS)}, s{so} offen offset:{(j6%4)*1024} sc1', tag='OUT')
    for j in range(4):
        for ck in range(4):
            for qt in range(2):
                A0 = AC + 8*j + 4*qt
                c = '0' if ck == 0 else v(A0, 4)
                e(f'v_mfma_f32_16x16x32_bf16 {v(A0,4)}, {v(WF[ck][j],4)}, {v(lo(2*ck+qt),4)}, {c}')
        c = '0' if j == 0 else v(AC+32, 4)
        e(f'v_mfma_f32_16x16x32_bf16 {v(AC+32,4)}, {v(WF[j][4],4)}, {v(lo(8+j),4)}, {c}')
        if j >= 1: cv(4*(j-1), 4*j)
    cv(12, 18)
    stamp()
    e(f's_lshl_b32 s{sT1}, s{sB}, 5'); e(f's_lshl_b32 s{sT2}, s{sWave}, 2'); e(f's_add_u32 s{sT1}, s{sT1}, s{sT2}')
    e(f's_mul_i32 s{sT0}, s{sT1}, {PB48}')
    e(f's_and_b32 s{sT1}, s2, 31'); e(f's_mul_i32 s{sT1}, s{sT1}, 1536'); e(f's_add_u32 s{sT0}, s{sT0}, s{sT1}')
    e(f's_add_u32 s{sT1}, s{sT0}, {PB48}'); e(f's_add_u32 s{sT2}, s{sT0}, {2*PB48}'); e(f's_add_u32 s{sG0}, s{sT0}, {3*PB48}')
    LD = 128
    def red_loads():
        for l, (va, so) in enumerate([(vLin, sT0), (vLin, sT1), (vLin, sT2), (vLin, sG0), (vBo, sT0), (vBo, sT2)]):
            e(f'buffer_load_dwordx4 {v(LD+4*l,4)}, {v(va)}, {srd(sWS)}, s{so} offen sc1', tag='RD')
    lp = e.newlabel('Lrd'); ld = e.newlabel('Lrdd')
    e(f's_mov_b32 s{sT3}, 0x20000')
    e(f's_mul_i32 s{sVb}, s{sWave}, 3072')
    e(f'v_mul_u32_u24 {v(vT[3])}, 48, v0')
    e(f'v_add_u32 {v(vT[3])}, s{sVb}, {v(vT[3])}')
    e.label(lp)
    if opts.get('sample', True):
        sp_ = e.newlabel('Lsm'); sd_ = e.newlabel('Lsmd')
        e.label(sp_)
        e(f'buffer_load_dword {v(vT[0])}, {v(13)}, {srd(sWS)}, s{sT0} offen sc1', tag='SM')
        e.wait_vm_all()
        e(f'v_cmp_ne_u32 vcc, {v(vT[0])}, {v(vTok)}')
        e.nop(4)
        e(f's_cbranch_vccz {sd_}')
        e(f's_sub_u32 s{sT3}, s{sT3}, 1')
        e(f's_cmp_eq_u32 s{sT3}, 0')
        e(f's_cbranch_scc1 {ld}')
        e(f's_sleep {opts.get("ssleep", 2)}')
        e(f's_branch {sp_}')
        e.label(sd_)
    red_loads()
    e.wait_vm_all()
    for l in range(6): e(f'v_xor_b32 {v(LD+4*l+3)}, {v(LD+4*l+3)}, {v(vTok)}')
    e(f'v_or3_b32 {v(vT[0])}, {v(LD+3)}, {v(LD+7)}, {v(LD+11)}')
    e(f'v_or3_b32 {v(vT[1])}, {v(LD+15)}, {v(LD+19)}, {v(LD+23)}')
    e(f'v_or_b32 {v(vT[0])}, {v(vT[0])}, {v(vT[1])}')
    e(f'v_cmp_ne_u32 vcc, 0, {v(vT[0])}')
    e.nop(4)
    e(f's_cbranch_vccz {ld}')
    e(f's_sub_u32 s{sT3}, s{sT3}, 1')
    e(f's_cmp_eq_u32 s{sT3}, 0')
    e(f's_cbranch_scc1 {ld}')
    e(f's_sleep {opts.get("rsleep", 4)}')
    e(f's_branch {lp}')
    e.label(ld)
    stamp()
    e(f's_mov_b32 s{sT3}, 0xffff0000')
    ACCR = 160
    U = 176
    for l in range(6):
        base = ACCR if l < 4 else ACCR + 6
        first = l in (0, 4)
        for k in range(3):
            d0 = base + 2*k if first else U + 2*k
            e(f'v_lshlrev_b32 {v(d0)}, 16, {v(LD+4*l+k)}'); e(f'v_and_b32 {v(d0+1)}, s{sT3}, {v(LD+4*l+k)}')
        if not first:
            for k in range(3):
                e(f'v_pk_add_f32 {v(base+2*k,2)}, {v(base+2*k,2)}, {v(U+2*k,2)}')
    FA = RS
    e(f'v_add_u32 {v(vT[3])}, {hex(FA)}, {v(vT[3])}')
    e(f'v_add_u32 {v(vFa)}, {hex(FA)}, {v(vFa)}')
    for i in range(3):
        e(f'ds_write_b128 {v(vT[3])}, {v(ACCR+4*i,4)} offset:{16*i}')
    e.wait_lg(0)
    e('s_barrier')
    e(f's_cmp_ge_u32 s{sWave}, 5'); e('s_cbranch_scc1 L_end1')
    for w in range(8):
        e(f'ds_read_b64 {v(LD+2*w,2)}, {v(vFa)} offset:{w*3072}')
    for w in range(8):
        e(f'ds_read_b64 {v(LD+16+2*w,2)}, {v(vFa)} offset:{w*3072 + 32*48}')
    for w in range(1, 8): e(f'v_pk_add_f32 {v(LD,2)}, {v(LD,2)}, {v(LD+2*w,2)}')
    for w in range(1, 8): e(f'v_pk_add_f32 {v(LD+16,2)}, {v(LD+16,2)}, {v(LD+16+2*w,2)}')
    e(f'v_cmp_ne_u32 vcc, 0, {v(vFb)}')
    e(f'v_cndmask_b32 {v(LD+16)}, 0, {v(LD+16)}, vcc')
    e(f'v_cndmask_b32 {v(LD+17)}, 0, {v(LD+17)}, vcc')
    e(f'v_pk_add_f32 {v(LD,2)}, {v(LD,2)}, {v(LD+16,2)}')
    e(f'v_cvt_pk_bf16_f32 {v(LD)}, {v(LD)}, {v(LD+1)}')
    e(f'buffer_store_dword {v(LD)}, {v(vOa)}, {srd(sOUT)}, 0 offen', tag='FIN')
    if stamps:
        e.wait_vm_all()
        stamp()
        e(f's_cmp_lg_u32 s{sWave}, 0'); e('s_cbranch_scc1 L_end1')
        if opts.get('padto') is not None:
            k = opts['padto']
            e(f's_add_u32 s{sT2}, s{sStamp+2*k}, 6000')
            e.label('L_pad')
            e(f's_memrealtime s[{sT0+1}:{sT0+2}]'.replace(f's[{sT0+1}:{sT0+2}]', 's[100:101]'))
            e.wait_lg(0)
            e(f's_sub_u32 s{sT1}, s100, s{sT2}')
            e(f's_cmp_lt_i32 s{sT1}, 0')
            e('s_cbranch_scc1 L_pad')
        elif opts.get('dbgwg') is not None:
            e(f's_cmp_lg_u32 s2, {opts["dbgwg"]}'); e('s_cbranch_scc1 L_end1')
            e('s_mov_b64 exec, 1')
            e(f'v_mov_b32 {v(vT[2])}, 0')
            for i in range(1, nstamp[0]):
                e(f's_sub_u32 s{sT1}, s{sStamp+2*i}, s{sStamp}')
                e(f'v_mov_b32 {v(vT[0])}, s{sT1}')
                e(f'buffer_store_dword {v(vT[0])}, {v(vT[2])}, {srd(sDBG)}, 0 offen offset:{4*i}')
                e.nop(2)
        else:
            e(f's_lshl_b32 s{sT1}, s2, 7'); e(f's_add_u32 s{sT1}, s{sT1}, {hex(WS_STAMP)}')
            e('s_mov_b64 exec, 1')
            e(f'v_mov_b32 {v(vT[2])}, 0')
            for i in range(16):
                if i < nstamp[0]:
                    e(f'v_mov_b32 {v(vT[0])}, s{sStamp+2*i}'); e(f'v_mov_b32 {v(vT[1])}, s{sStamp+2*i+1}')
                else:
                    e(f'v_mov_b32 {v(vT[0])}, 0'); e(f'v_mov_b32 {v(vT[1])}, 0')
                e(f'buffer_store_dwordx2 {v(vT[0],2)}, {v(vT[2])}, {srd(sWS)}, s{sT1} offen offset:{8*i}')
                e.nop(2)
    e.label('L_end1')
    e('s_endpgm')
    k1_lines = e.lines
    n1 = e.ninst

    hdr = open('standalone__sliding_block_cached__sampling.s.ref').read().split('\n')
    hdr = [l for l in hdr if l.startswith(';') and '@launch' not in l and 'Override' not in l and 'grid=ceil' not in l]
    out = hdr + [
        f'; @launch grid=(256,1,1) block=(512,1,1) lds={LDS_BYTES}',
        '.amdgcn_target "amdgcn-amd-amdhsa--gfx950"', '.text'] + k1_lines
    def kd(name, nv, ns, acc):
        return ['.section .rodata,"a"', '.p2align 6', f'.amdhsa_kernel {name}',
                f'  .amdhsa_next_free_vgpr {nv}', f'  .amdhsa_next_free_sgpr {ns}', f'  .amdhsa_accum_offset {acc}',
                '  .amdhsa_group_segment_fixed_size 0', '  .amdhsa_kernarg_size 64', '  .amdhsa_user_sgpr_count 2',
                '  .amdhsa_user_sgpr_kernarg_segment_ptr 1', '  .amdhsa_system_sgpr_workgroup_id_x 1', '.end_amdhsa_kernel']
    out += kd(K1, 256, 102, 256)
    print('K1 instrs', n1, 'QI', QI, 'slots', [slot_of[n] for n in range(TEND)], file=sys.stderr)
    return '\n'.join(out) + '\n'

if __name__ == '__main__':
    E = 'exp/'
    st = dict(stamps=True, vst=(0, 12), kst=(0, 4), qst=(0, 4))
    for k in (0, 1, 4, 6, 10, 13):
        open(E + f'd{k}.s', 'w').write(gen(dict(st, padto=k)))
```

```python
import sys, math, struct
from emit import Emitter
from gen6 import gen_k2, f32bits, K1, K2

SLOT = 16384
NSLOT = 7
SCR = NSLOT * SLOT
MX = SCR + 40960
LS = MX + 1024
TOK = LS + 1024
LDS_BYTES = TOK + 64
RS = 4 * SLOT
WS_EPOCH = 0x1000000
WS_OX = 0x1100000
WS_STAMP = 0x20000000
PART_BYTES = 36864
NW, NK, NV = 18, 16, 16
TK, TV, TEND = NW, NW + NK, NW + NK + NV

def gen(opts):
    stamps = opts.get('stamps', False)
    st_pol = opts.get('st_pol', ' sc1'); k2_pol = opts.get('k2_pol', '')
    wq_pol = opts.get('wq_pol', ''); wo_pol = opts.get('wo_pol', ''); x_pol = opts.get('x_pol', '')
    e = Emitter(roles=('A', 'C'))
    sK, sV, sWQ, sX, sWO, sWS, sDBG = 20, 24, 28, 32, 36, 40, 44
    sWave, sHkv, sB, sSp = 48, 49, 50, 51
    sW2k, sT0, sT1, sT2, sT3 = 52, 53, 54, 55, 56
    sWQb, sWOb, sKc = 57, 58, 59
    sC = 60
    sKs, sG0, sVb, sW1k = 62, 63, 64, 65
    sStamp = 66
    sI4, sHH = 98, 99
    sXc, sXb = 100, 101
    nstamp = [0]
    srd = lambda n: f's[{n}:{n+3}]'
    e.role_cond[frozenset('C')] = (f's_cmp_eq_u32 s{sWave}, 7', 's_cbranch_scc0')
    e.role_cond[frozenset('A')] = (f's_cmp_eq_u32 s{sWave}, 7', 's_cbranch_scc1')
    def stamp():
        if stamps:
            i = nstamp[0]; nstamp[0] += 1
            assert i < 16
            e.wait_lg(0)
            e(f's_memrealtime s[{sStamp+2*i}:{sStamp+2*i+1}]')
            e.wait_lg(0)
    def forget(tag):
        e.vm['C'] = [x for x in e.vm['C'] if x[0] != tag]
    v = lambda n, c=1: f'v{n}' if c == 1 else f'v[{n}:{n+c-1}]'
    vLin, vLc, vLr = 1, 2, 3
    vKd = [4, 5]; vVd = 6; vVr = [7, 8]; vKr = list(range(9, 17))
    vWr = 17; vWx = 18; vMxA = 19; vMo = 20; vOr = 21
    vL = 22
    vNm = 24; vM = 25; vRw = 26; vRr = 27
    vT = [28, 29, 30, 31]
    S0 = 128; QF = 96; KF = 64; W0R = 44
    vWd = [128, 129]; vXd = 130; vQr = [132, 133]; vXb = [134, 135, 136, 137]; vXa = [138, 139, 140, 141]
    QA = 160; QB = 176; QACC = 224
    TK0 = 32

    e.raw(f'.globl {K1}'); e.raw('.p2align 8'); e.raw(f'.type {K1},@function'); e.label(K1)
    e('s_cmp_ge_u32 s2, 256')
    e('s_cbranch_scc1 L_end1')
    e('s_load_dwordx16 s[4:19], s[0:1], 0')
    if stamps:
        e(f's_memrealtime s[{sStamp}:{sStamp+1}]'); nstamp[0] = 1
    e(f'v_lshrrev_b32 {v(vT[0])}, 6, v0')
    e(f'v_and_b32 v0, 63, v0')
    e(f'v_readfirstlane_b32 s{sWave}, {v(vT[0])}')
    e(f's_and_b32 s{sHkv}, s2, 7'); e(f's_lshl_b32 s{sHkv}, s{sHkv}, 1')
    e(f's_bfe_u32 s{sT0}, s2, 0x10003'); e(f's_or_b32 s{sHkv}, s{sHkv}, s{sT0}')
    e(f's_lshr_b32 s{sB}, s2, 5')
    e(f'v_lshrrev_b32 {v(vT[0])}, 5, v0')
    e(f'v_and_b32 {v(vT[1])}, 31, v0')
    e(f'v_lshlrev_b32 {v(vT[2])}, 2, {v(vT[0])}')
    e(f'v_xor_b32 {v(vT[1])}, {v(vT[1])}, {v(vT[2])}')
    e(f'v_lshlrev_b32 {v(vT[1])}, 4, {v(vT[1])}')
    e(f'v_lshl_add_u32 {v(vWd[0])}, {v(vT[0])}, 13, {v(vT[1])}')
    e(f'v_xor_b32 {v(vWd[1])}, 0x80, {v(vWd[0])}')
    e(f'v_add_u32 {v(vWd[1])}, {16384-1024}, {v(vWd[1])}')
    e(f's_lshl_b32 s{sW2k}, s{sWave}, 11')
    e(f's_lshl_b32 s{sWQb}, s{sWave}, 15'); e(f's_lshl_b32 s{sT1}, s{sHkv}, 9'); e(f's_add_u32 s{sWQb}, s{sWQb}, s{sT1}')
    e(f's_bfe_u32 s{sKs}, s2, 0x20003'); e(f's_lshl1_add_u32 s{sKs}, s{sKs}, s{sB}')
    e(f's_cmp_ge_u32 s{sKs}, 9'); e(f's_cselect_b32 s{sT1}, 9, 0'); e(f's_sub_u32 s{sKs}, s{sKs}, s{sT1}')
    if not opts.get('rot', True): e(f's_mov_b32 s{sKs}, 0')
    e(f's_mov_b32 s{sKc}, s{sKs}')
    e(f's_and_b32 s{sI4}, s{sWave}, 3'); e(f's_lshr_b32 s{sHH}, s{sWave}, 2')
    e(f'v_lshrrev_b32 {v(vT[0])}, 3, v0')
    e(f'v_lshrrev_b32 {v(vLr)}, 4, v0')
    e(f's_and_b32 s{sT1}, s{sWave}, 1'); e(f's_lshl_b32 s{sT1}, s{sT1}, 2')
    e(f'v_or_b32 {v(vT[1])}, s{sT1}, {v(vLr)}')
    e(f'v_and_b32 {v(vT[2])}, 7, v0')
    e(f'v_xor_b32 {v(vT[1])}, {v(vT[1])}, {v(vT[2])}')
    e(f's_movk_i32 s{sT1}, 1152')
    e(f'v_mul_lo_u32 {v(vT[0])}, {v(vT[0])}, s{sT1}')
    e(f'v_lshl_add_u32 {v(vXd)}, {v(vT[1])}, 4, {v(vT[0])}')
    e(f's_mul_i32 s{sXb}, s{sB}, 36864'); e(f's_mul_i32 s{sT0}, s{sI4}, 9216'); e(f's_add_u32 s{sXb}, s{sXb}, s{sT0}')
    e(f's_add_u32 s{sXc}, s{sKs}, s{sHH}'); e(f's_cmp_eq_u32 s{sXc}, 9'); e(f's_cselect_b32 s{sXc}, 0, s{sXc}')
    e(f's_lshl_b32 s{sT2}, s{sI4}, 10'); e(f's_add_u32 s{sT2}, s{sT2}, {SCR}')
    e(f's_lshl_b32 s{sW1k}, s{sWave}, 10')
    e.wait_lg(0)
    e(f's_mov_b32 s{sX}, s4'); e(f's_mov_b32 s{sX+1}, s5'); e(f's_mov_b32 s{sX+2}, {256*1152}'); e(f's_mov_b32 s{sX+3}, 0x20000')
    e(f's_mov_b32 s{sWQ}, s10'); e(f's_mov_b32 s{sWQ+1}, s11'); e(f's_mov_b32 s{sWQ+2}, {576*8192}'); e(f's_mov_b32 s{sWQ+3}, 0x20000')

    slot_of = {}
    free = list(range(NSLOT))
    nxt = [0]
    def x_dma(k):
        e(f's_lshl_b32 s{sT1}, s{sXc}, 12'); e(f's_add_u32 m0, s{sT1}, s{sT2}')
        e(f's_lshl_b32 s{sT1}, s{sXc}, 7'); e(f's_add_u32 s{sT1}, s{sT1}, s{sXb}')
        e(f'buffer_load_dwordx4 {v(vXd)}, {srd(sX)}, s{sT1} offen{x_pol} lds', tag=f'X{k}')
        if k < 4:
            e(f's_add_u32 s{sXc}, s{sXc}, 2'); e(f's_cmp_ge_u32 s{sXc}, 9'); e(f's_cselect_b32 s{sT1}, 9, 0'); e(f's_sub_u32 s{sXc}, s{sXc}, s{sT1}')
    def dma_tile(n):
        slot = slot_of[n]
        if n < TK and n % 4 == 0: x_dma(n // 4)
        e(f's_add_u32 m0, s{sW2k}, {slot*SLOT}')
        if n < TK:
            if n % 2 == 0:
                e(f's_lshl_b32 s{sG0}, s{sKs}, 19'); e(f's_add_u32 s{sG0}, s{sG0}, s{sWQb}')
            else:
                e(f's_add_u32 s{sG0}, s{sG0}, {32*8192}')
            for i in range(2):
                e(f'buffer_load_dwordx4 {v(vWd[i])}, {srd(sWQ)}, s{sG0} offen offset:{i*1024}{wq_pol} lds', tag=f'T{n}')
            if n % 2 == 1 and n < TK - 1:
                e(f's_add_u32 s{sKs}, s{sKs}, 1'); e(f's_cmp_eq_u32 s{sKs}, 9'); e(f's_cselect_b32 s{sKs}, 0, s{sKs}')
        elif opts.get('nokv'):
            pass
        elif n < TV:
            e(f's_add_u32 s{sT1}, s{sW2k}, {(n-TK)*SLOT}')
            for i in range(2):
                e(f'buffer_load_dwordx4 {v(vKd[i])}, {srd(sK)}, s{sT1} offen offset:{i*1024} nt lds', tag=f'T{n}')
        else:
            p, u = (n - TV) // 8, (n - TV) % 8
            if n == TV + 8: e(f's_xor_b32 s{sVb}, s{sVb}, 0x80')
            e(f's_add_u32 s{sT1}, s{sVb}, {u*32768}')
            e(f'buffer_load_dwordx4 {v(vVd)}, {srd(sV)}, s{sT1} offen nt lds', tag=f'T{n}')
            e(f's_add_u32 s{sT1}, s{sT1}, 1024')
            e(f'buffer_load_dwordx4 {v(vVd)}, {srd(sV)}, s{sT1} offen offset:1024 nt lds', tag=f'T{n}')
    def issue(maxn):
        k = 0
        while nxt[0] < TEND and k < maxn:
            n = nxt[0]
            if n in slot_of: nxt[0] += 1; continue
            cand = [s for s in free if n < TV or s < 4]
            if not cand: break
            s = cand[0] if n >= TV else max(cand)
            free.remove(s); slot_of[n] = s; nxt[0] += 1; k += 1
            dma_tile(n)
    def release(ns):
        for n in ns: free.append(slot_of[n])
        free.sort()

    def mid_setup():
        e(f's_bfe_u32 s{sSp}, s2, 0x10004')
        e(f's_lshl_b32 s{sT0}, s{sB}, 4'); e(f's_add_u32 s{sT0}, s{sT0}, s{sHkv}'); e(f's_lshl_b32 s{sT0}, s{sT0}, 21')
        e(f's_lshl_b32 s{sT1}, s{sSp}, 18'); e(f's_add_u32 s{sT0}, s{sT0}, s{sT1}'); e(f's_add_u32 s{sT0}, s{sT0}, {6144*256}')
        e(f's_add_u32 s{sK}, s6, s{sT0}'); e(f's_addc_u32 s{sK+1}, s7, 0'); e(f's_mov_b32 s{sK+2}, 0x40000'); e(f's_mov_b32 s{sK+3}, 0x20000')
        e(f's_add_u32 s{sV}, s8, s{sT0}'); e(f's_addc_u32 s{sV+1}, s9, 0'); e(f's_mov_b32 s{sV+2}, 0x40000'); e(f's_mov_b32 s{sV+3}, 0x20000')
        e(f's_and_b32 s{sT1}, s{sWave}, 1'); e(f's_lshl_b32 s{sT1}, s{sT1}, 3')
        e(f'v_xor_b32 {v(vT[0])}, {v(vLr)}, {v(vLc)}')
        e(f'v_xor_b32 {v(vT[0])}, s{sT1}, {v(vT[0])}')
        e(f'v_lshlrev_b32 {v(vT[0])}, 4, {v(vT[0])}')
        e(f'v_lshl_add_u32 {v(vKd[0])}, {v(vLr)}, 8, {v(vT[0])}')
        e(f'v_xor_b32 {v(vKd[1])}, 64, {v(vKd[0])}')
    issue(2)
    e(f'v_and_b32 {v(vLc)}, 15, v0')
    mid_setup()
    def k_early(j):
        n = TK + j
        slot_of[n] = min(free); free.remove(slot_of[n]); dma_tile(n)
    for j in range(opts.get('kearly', 0)): k_early(j)
    issue(opts.get('w1', 1))

    e(f'v_lshlrev_b32 {v(vLin)}, 4, v0')
    e(f'v_lshrrev_b32 {v(vT[0])}, 2, {v(vLc)}')
    e(f'v_xor_b32 {v(vT[1])}, s{sWave}, {v(vT[0])}')
    e(f'v_lshlrev_b32 {v(vT[1])}, 6, {v(vT[1])}')
    e(f'v_lshl_add_u32 {v(vT[1])}, {v(vT[0])}, 9, {v(vT[1])}')
    e(f'v_lshrrev_b32 {v(vT[2])}, 5, v0')
    e(f'v_lshl_add_u32 {v(vT[1])}, {v(vT[2])}, 12, {v(vT[1])}')
    e(f'v_and_b32 {v(vT[3])}, 1, {v(vLr)}')
    e(f'v_lshl_add_u32 {v(vT[1])}, {v(vT[3])}, 5, {v(vT[1])}')
    e(f'v_and_b32 {v(vT[3])}, 3, {v(vLc)}')
    e(f'v_lshl_add_u32 {v(vQr[0])}, {v(vT[3])}, 3, {v(vT[1])}')
    e(f'v_add_u32 {v(vQr[1])}, 0x10000, {v(vQr[0])}')
    e(f'v_and_b32 {v(vT[0])}, 31, v0')
    e(f'v_bfe_u32 {v(vT[1])}, v0, 1, 3')
    e(f'v_xor_b32 {v(vT[1])}, {v(vT[1])}, {v(vT[2])}')
    e(f'v_lshlrev_b32 {v(vT[1])}, 4, {v(vT[1])}')
    e(f'v_lshl_add_u32 {v(vXb[0])}, {v(vT[0])}, 7, {v(vT[1])}')
    for k in range(1, 4): e(f'v_xor_b32 {v(vXb[k])}, {32*k}, {v(vXb[0])}')

    def setup_k():
        e(f'v_lshrrev_b32 {v(vT[0])}, 5, v0')
        e(f'v_xor_b32 {v(vT[0])}, {v(vT[0])}, {v(vLc)}')
        e(f'v_lshlrev_b32 {v(vT[0])}, 4, {v(vT[0])}')
        e(f'v_and_b32 {v(vT[1])}, 31, v0')
        e(f'v_lshl_add_u32 {v(vT[0])}, {v(vT[1])}, 8, {v(vT[0])}')
        e(f's_and_b32 s{sT1}, s{sWave}, 1'); e(f's_lshl_b32 s{sT1}, s{sT1}, 13')
        e(f'v_add_u32 {v(vKr[0])}, s{sT1}, {v(vT[0])}')
        for j in range(1, 8): e(f'v_xor_b32 {v(vKr[j])}, {32*j}, {v(vKr[0])}')
    def setup_w():
        e(f's_mov_b32 s{sWO}, s12'); e(f's_mov_b32 s{sWO+1}, s13'); e(f's_mov_b32 s{sWO+2}, {4096*1152}'); e(f's_mov_b32 s{sWO+3}, 0x20000')
        e(f's_mov_b32 s{sWS}, s18'); e(f's_mov_b32 s{sWS+1}, s19'); e(f's_mov_b32 s{sWS+2}, 0x30000000'); e(f's_mov_b32 s{sWS+3}, 0x20000')
        e(f's_mov_b32 s{sDBG}, s16'); e(f's_mov_b32 s{sDBG+1}, s17'); e(f's_mov_b32 s{sDBG+2}, 256'); e(f's_mov_b32 s{sDBG+3}, 0x20000')
        e(f's_lshl_b32 s{sT1}, s{sHkv}, 2'); e(f's_add_u32 s{sT1}, s{sT1}, s{sSp}')
        e(f's_mul_i32 s{sWOb}, s{sT1}, {64*1152}'); e(f's_add_u32 s{sWOb}, s{sWOb}, s{sW1k}')
        e(f'v_mov_b32 {v(TK0)}, {hex(WS_EPOCH)}'); e(f'v_mov_b32 {v(TK0+2)}, 0')
    def setup_v():
        e(f's_mov_b32 s{sC}, {hex(f32bits(math.log2(math.e) / math.sqrt(128.0)))}'); e(f's_mov_b32 s{sC+1}, s{sC}')
        e(f's_xor_b32 s{sT1}, s{sSp}, 1'); e(f's_lshl_b32 s{sT1}, s{sT1}, 7')
        e(f's_lshl_b32 s{sVb}, s{sWave}, 12'); e(f's_add_u32 s{sVb}, s{sVb}, s{sT1}')
        e(f'v_lshrrev_b32 {v(vT[0])}, 3, v0')
        e(f'v_and_b32 {v(vT[1])}, 1, {v(vLr)}')
        e(f'v_lshlrev_b32 {v(vT[1])}, 2, {v(vT[1])}')
        e(f'v_and_b32 {v(vT[2])}, 7, v0')
        e(f'v_xor_b32 {v(vT[1])}, {v(vT[1])}, {v(vT[2])}')
        e(f'v_lshlrev_b32 {v(vT[1])}, 4, {v(vT[1])}')
        e(f'v_lshl_add_u32 {v(vVd)}, {v(vT[0])}, 8, {v(vT[1])}')
        e(f'v_lshrrev_b32 {v(vT[0])}, 5, v0')
        e(f'v_lshrrev_b32 {v(vT[1])}, 2, {v(vLc)}')
        e(f'v_lshl_add_u32 {v(vT[0])}, {v(vT[0])}, 2, {v(vT[1])}')
        e(f'v_and_b32 {v(vT[1])}, 2, {v(vT[1])}')
        e(f'v_and_b32 {v(vT[2])}, 1, {v(vLr)}')
        e(f'v_or_b32 {v(vT[1])}, {v(vT[1])}, {v(vT[2])}')
        e(f'v_xor_b32 {v(vT[1])}, s{sI4}, {v(vT[1])}')
        e(f'v_lshlrev_b32 {v(vT[1])}, 5, {v(vT[1])}')
        e(f'v_lshl_add_u32 {v(vT[1])}, {v(vT[0])}, 7, {v(vT[1])}')
        e(f'v_and_b32 {v(vT[2])}, 3, {v(vLc)}')
        e(f'v_lshl_add_u32 {v(vT[1])}, {v(vT[2])}, 3, {v(vT[1])}')
        e(f's_lshl_b32 s{sT1}, s{sI4}, 12')
        e(f'v_add_u32 {v(vVr[0])}, s{sT1}, {v(vT[1])}')
        e(f'v_xor_b32 {v(vVr[1])}, 64, {v(vVr[0])}')
        e(f'v_lshrrev_b32 {v(vT[0])}, 5, v0')
        e(f'v_lshlrev_b32 {v(vT[0])}, 3, {v(vT[0])}')
        e(f'v_lshrrev_b32 {v(vT[1])}, 2, v0')
        e(f'v_add_u32 {v(vT[0])}, {v(vT[0])}, {v(vT[1])}')
        e(f's_movk_i32 s{sT1}, 1152')
        e(f'v_mul_lo_u32 {v(vT[0])}, {v(vT[0])}, s{sT1}')
        e(f'v_lshl_add_u32 {v(vT[0])}, {v(vT[2])}, 3, {v(vT[0])}')
        e(f's_lshl_b32 s{sT1}, s{sWave}, 7'); e(f's_add_u32 s{sT1}, s{sT1}, {SCR}')
        e(f'v_add_u32 {v(vWr)}, s{sT1}, {v(vT[0])}')
        e(f's_lshr_b32 s{sT1}, s{sWave}, 1'); e(f's_lshl_b32 s{sT1}, s{sT1}, 5'); e(f's_add_u32 s{sT1}, s{sT1}, {SCR + 1024}')
        e(f'v_add_u32 {v(vWx)}, s{sT1}, {v(vT[0])}')
        e(f'v_and_b32 {v(vT[0])}, 31, v0')
        e(f's_lshl_b32 s{sT1}, s{sHH}, 9'); e(f's_add_u32 s{sT1}, s{sT1}, {MX}')
        e(f'v_lshlrev_b32 {v(vT[0])}, 4, {v(vT[0])}')
        e(f'v_add_u32 {v(vMxA)}, s{sT1}, {v(vT[0])}')
        e(f's_lshl_b32 s{sT1}, s{sI4}, 2')
        e(f'v_add_u32 {v(vMo)}, s{sT1}, {v(vMxA)}')
        e(f's_add_u32 s{sT1}, s{sW2k}, {RS}')
        e(f'v_add_u32 {v(vRr)}, s{sT1}, {v(vLin)}')
        e(f'v_lshlrev_b32 {v(vT[1])}, 9, {v(vLr)}')
        e(f'v_lshl_add_u32 {v(vOr)}, {v(vLc)}, 4, {v(vT[1])}')

    QI = None
    def q_mf(q):
        o = 32 * (q % 2)
        for k in range(4):
            c = '0' if (q == 0 and k == 0) else v(QACC, 16)
            e(f'v_mfma_f32_32x32x16_bf16 {v(QACC,16)}, {v(QA+o+4*k,4)}, {v(QB+o+4*k,4)}, {c}')
    for q in range(9):
        e(f's_lshl_b32 s{sT1}, s{sKc}, 12'); e(f's_add_u32 s{sT1}, s{sT1}, {SCR}')
        for k in range(4): e(f'v_add_u32 {v(vXa[k])}, s{sT1}, {v(vXb[k])}')
        if q < 8:
            e(f's_add_u32 s{sKc}, s{sKc}, 1'); e(f's_cmp_eq_u32 s{sKc}, 9'); e(f's_cselect_b32 s{sKc}, 0, s{sKc}')
        e.wait_vm(f'T{2*q}', f'T{2*q+1}')
        if q == 0: issue(opts.get('w2', 4))
        e.wait_lg(0)
        e('s_barrier')
        if q in opts.get('qst', (0,)): stamp()
        o = 32 * (q % 2)
        if q >= 1:
            release([2*q-2, 2*q-1])
            if q == 8: QI = free.pop(0) * SLOT
            if opts.get('dmafirst') and nxt[0] < TK: issue(min(2, TK - nxt[0]))
        for k in range(4):
            par, s_ = k // 2, k % 2
            off = slot_of[2*q+par] * SLOT + s_ * 8192
            r = vQr[off // 65536]; off %= 65536
            e(f'ds_read_b64_tr_b16 {v(QA+o+4*k,2)}, {v(r)} offset:{off}')
            e(f'ds_read_b64_tr_b16 {v(QA+o+4*k+2,2)}, {v(r)} offset:{off + 2048}')
            e(f'ds_read_b128 {v(QB+o+4*k,4)}, {v(vXa[k])}')
        if q >= 1:
            if not opts.get('dmafirst') and nxt[0] < TK: issue(min(2, TK - nxt[0]))
            if opts.get('kfirst') and nxt[0] >= TK: issue(2)
            q_mf(q - 1)
            if nxt[0] >= TK and q < 8: issue(opts.get('kq', 2))
        if q == 7: setup_k()
    q_mf(8)
    e(f'v_and_b32 {v(vT[0])}, 31, v0')
    e(f'v_lshrrev_b32 {v(vT[1])}, 5, v0')
    e(f'v_lshlrev_b32 {v(vT[0])}, 4, {v(vT[0])}')
    e(f'v_lshl_add_u32 {v(vT[0])}, {v(vT[1])}, 3, {v(vT[0])}')
    e(f's_add_u32 s{sT1}, s{sW2k}, {QI}')
    e(f'v_add_u32 {v(vT[0])}, s{sT1}, {v(vT[0])}')
    e(f's_lshl_b32 s{sT1}, s{sHH}, 13'); e(f's_add_u32 s{sT1}, s{sT1}, {QI}')
    e(f'v_add_u32 {v(vT[2])}, s{sT1}, {v(vLin)}')
    for a_ in range(4):
        e(f'v_cvt_pk_bf16_f32 {v(QA+2*a_)}, {v(QACC+4*a_)}, {v(QACC+4*a_+1)}')
        e(f'v_cvt_pk_bf16_f32 {v(QA+2*a_+1)}, {v(QACC+4*a_+2)}, {v(QACC+4*a_+3)}')
        e(f'ds_write_b64 {v(vT[0])}, {v(QA+2*a_,2)} offset:{a_*512}')
    issue(2)
    stamp()

    def wo_dma(ck, ks):
        if opts.get('nowo'): return
        hh, jb = ck // 2, ck % 2
        for k in ks:
            e(f's_add_u32 m0, s{sW1k}, {SCR + k*8192}')
            e(f's_add_u32 s{sT1}, s{sWOb}, {(128*hh + 32*jb)*1152 + k*8192}')
            e(f'buffer_load_dwordx4 {v(vLin)}, {srd(sWO)}, s{sT1} offen{wo_pol} lds', tag=f'W{ck}')
    def up(k): return S0 + 16 * (k // 2) + 8 + 4 * (k % 2)
    WF = {0: [W0R + 4*j for j in range(5)]}
    for ck in range(1, 4): WF[ck] = [up(5*(ck-1) + j) for j in range(5)]
    def wo_read(ck):
        for j in range(4):
            for hf in range(2):
                e(f'ds_read_b64_tr_b16 {v(WF[ck][j]+2*hf,2)}, {v(vWr)} offset:{hf*9216 + 32*j}')
        for hf in range(2):
            e(f'ds_read_b64_tr_b16 {v(WF[ck][4]+2*hf,2)}, {v(vWx)} offset:{hf*9216}')
    wsched = opts.get('wsched', {0: ({0: (0, 1), 1: (2, 3), 2: (4,)}, 4),
                                 1: ({5: (0, 1), 6: (2, 3), 7: (4,)}, 11),
                                 2: ({12: (0, 1), 13: (2, 3), 14: (4,)}, 17),
                                 3: ({18: (0, 1), 19: (2, 3), 20: (4,)}, 23)})
    wo_dma_at = {}; wo_read_at = {}
    for ck, (d, rd) in wsched.items():
        for st, ks in d.items(): wo_dma_at[st] = (ck, ks)
        wo_read_at[rd] = ck

    def head(step, tiles):
        tags = [f'T{n}' for n in tiles]
        if step in wo_read_at: tags.append(f'W{wo_read_at[step]}')
        if tags: e.wait_vm(*tags)
        e.wait_lg(0)
        e('s_barrier')
    def tail(step):
        if step in wo_dma_at: wo_dma(*wo_dma_at[step])
        need = TK + ((2*step + 4) if step < 8 else (16 + step - 8 + 1))
        la = opts.get('la', 2)
        issue(max(0, min(3, need + la - nxt[0])))
    def xswap(reg, tmp, op):
        e(f'v_mov_b32 {v(tmp)}, {v(reg)}')
        e(f'v_permlane32_swap_b32 {v(reg)}, {v(tmp)}')
        e(f'{op} {v(reg)}, {v(reg)}, {v(tmp)}')

    kcur = [(0, 0)]
    for u in range(8):
        ta, tb = TK + 2*u, TK + 2*u + 1
        sa, sb = slot_of[ta] * SLOT, slot_of[tb] * SLOT
        pa, pb = kcur[0]
        da, db_ = (sa - pa) & 0xffffffff, (sb - pb) & 0xffffffff
        e(f's_cmp_lt_u32 s{sI4}, 2')
        e(f's_mov_b32 s{sT0}, {hex(db_)}')
        e(f's_cmov_b32 s{sT0}, {hex(da)}')
        for j in range(8): e(f'v_add_u32 {v(vKr[j])}, s{sT0}, {v(vKr[j])}')
        kcur[0] = (sa, sb)
        head(u, [ta, tb])
        if u in opts.get('kst', ()): stamp()
        if u == 0:
            release([TK-2, TK-1])
            for j in range(8):
                e(f'ds_read_b128 {v(QF+4*j,4)}, {v(vT[2])} offset:{j*1024}')
        else:
            release([ta-2, tb-2])
            if u == 1: free.append(QI // SLOT); free.sort()
        for j in range(8):
            e(f'ds_read_b128 {v(KF+4*j,4)}, {v(vKr[j])}')
        if u == 0: setup_w()
        tail(u)
        if u in wo_read_at: wo_read(wo_read_at[u])
        if u >= 1:
            Sp = S0 + 16 * (u - 1)
            if u == 1: e(f'v_max3_f32 {v(vM)}, {v(Sp)}, {v(Sp+1)}, {v(Sp+2)}'); st = 3
            else: st = 0
            for i in range(st, 15, 2): e(f'v_max3_f32 {v(vM)}, {v(vM)}, {v(Sp+i)}, {v(Sp+i+1)}')
            if u == 1: e(f'v_max_f32 {v(vM)}, {v(vM)}, {v(Sp+15)}')
        Sb = S0 + 16 * u
        for j in range(8):
            c = '0' if j == 0 else v(Sb, 16)
            e(f'v_mfma_f32_32x32x16_bf16 {v(Sb,16)}, {v(KF+4*j,4)}, {v(QF+4*j,4)}, {c}')
        if u == 0:
            with e.only('C'):
                lw = e.newlabel('Llead')
                saved = list(e.vm['C'])
                e(f's_cmp_lg_u32 s2, 0')
                e(f's_cbranch_scc1 {lw}')
                e(f's_mov_b64 exec, 1')
                e(f'buffer_load_dword {v(TK0+1)}, {v(TK0)}, {srd(sWS)}, 0 offen sc1', tag='EP')
                e.wait_vm_all()
                e(f'v_add_u32 {v(TK0+1)}, 1, {v(TK0+1)}')
                e(f'v_or_b32 {v(TK0+1)}, 0x80000000, {v(TK0+1)}')
                e(f'buffer_store_dword {v(TK0+1)}, {v(TK0+2)}, {srd(sDBG)}, 0 offen sc1', tag='EPS')
                e(f'buffer_store_dword {v(TK0+1)}, {v(TK0)}, {srd(sWS)}, 0 offen sc1', tag='EPS')
                e(f's_mov_b64 exec, -1')
                e.label(lw)
                e.vm['C'] = saved
        if u == 1: setup_v()
        if u == 6:
            e(f'buffer_load_dword {v(TK0+1)}, {v(TK0+2)}, {srd(sDBG)}, 0 offen', tag='TKL')
    Sp = S0 + 16 * 7
    for i in range(0, 16, 2): e(f'v_max3_f32 {v(vM)}, {v(vM)}, {v(Sp+i)}, {v(Sp+i+1)}')
    xswap(vM, vT[0], 'v_max_f32')
    e(f'ds_write_b32 {v(vMo)}, {v(vM)}')
    stamp()

    def softmax(u):
        Sb = S0 + 16 * u
        g = [f'v_pk_fma_f32 {v(Sb+i,2)}, {v(Sb+i,2)}, s[{sC}:{sC+1}], {v(vNm,2)} op_sel_hi:[1,0,0]' for i in range(0, 16, 2)]
        g += [f'v_exp_f32 {v(Sb+i)}, {v(Sb+i)}' for i in range(16)]
        if u == 0:
            g += [f'v_pk_add_f32 {v(vL,2)}, {v(Sb,2)}, {v(Sb+2,2)}'] + [f'v_pk_add_f32 {v(vL,2)}, {v(vL,2)}, {v(Sb+i,2)}' for i in range(4, 16, 2)]
        else:
            g += [f'v_pk_add_f32 {v(vL,2)}, {v(vL,2)}, {v(Sb+i,2)}' for i in range(0, 16, 2)]
        g += [f'v_cvt_pk_bf16_f32 {v(Sb+i)}, {v(Sb+2*i)}, {v(Sb+2*i+1)}' for i in range(8)]
        return g

    head(8, [])
    release([TV-2, TV-1])
    e(f'ds_read_b128 {v(vT[0],4)}, {v(vMxA)}')
    tail(8)
    e(f'v_max3_f32 {v(vM)}, {v(vT[0])}, {v(vT[1])}, {v(vT[2])}')
    e(f'v_max_f32 {v(vM)}, {v(vM)}, {v(vT[3])}')
    e(f'v_mul_f32 {v(vNm)}, s{sC}, {v(vM)}')
    e(f'v_sub_f32 {v(vNm)}, 0, {v(vNm)}')
    for x in softmax(0): e(x)

    O = 96
    VF = 64
    TM = 80
    vTok = TK0 + 1
    vLse, vRl = 36, 37
    RG = [40, up(15)]
    sRX = sKs
    vL8 = 9
    def rx_loads():
        e(f'buffer_load_dwordx4 {v(RG[0],4)}, {v(vLin)}, {srd(sWS)}, s{sRX} offen sc1', tag='RX')
        e(f'buffer_load_dwordx2 {v(RG[1],2)}, {v(vL8)}, {srd(sWS)}, s{sRX} offen offset:1024 sc1', tag='RX')
    def red_write():
        for k in range(1, 4):
            e(f'v_xor_b32 {v(vT[k])}, {k*2048}, {v(vRr)}')
        for k in range(1, 4):
            e(f'ds_write_b128 {v(vT[k])}, {v(O+8*k,4)} offset:{(k-1)*SLOT}')
            e(f'ds_write_b128 {v(vT[k])}, {v(O+8*k+4,4)} offset:{(k-1)*SLOT + 1024}')
    for t in range(16):
        step = 9 + t; n = TV + t; p, u = t // 8, t % 8
        head(step, [n])
        if t in opts.get('vst', ()): stamp()
        if t >= 1: release([n - 1])
        off = slot_of[n] * SLOT
        for k in range(4):
            s_, d2 = k // 2, k % 2
            e(f'ds_read_b64_tr_b16 {v(VF+4*k,2)}, {v(vVr[d2])} offset:{off + s_*2048}')
            e(f'ds_read_b64_tr_b16 {v(VF+4*k+2,2)}, {v(vVr[d2])} offset:{off + s_*2048 + 1024}')
        tail(step)
        if t == 3:
            lp = e.newlabel('Ltk'); ld = e.newlabel('Ltkd')
            e(f's_mov_b32 s{sT3}, 0x20000')
            e.wait_vm('TKL')
            saved = {r: list(e.vm[r]) for r in e.vm}
            e.label(lp)
            e(f'v_readfirstlane_b32 s{sT1}, {v(vTok)}')
            e(f's_cmp_lg_u32 s{sT1}, 0')
            e(f's_cbranch_scc1 {ld}')
            e(f's_sub_u32 s{sT3}, s{sT3}, 1')
            e(f's_cmp_eq_u32 s{sT3}, 0')
            e(f's_cbranch_scc1 {ld}')
            e(f's_sleep 8')
            e(f'buffer_load_dword {v(vTok)}, {v(TK0+2)}, {srd(sDBG)}, 0 offen sc1', tag='TKL')
            e.wait_vm_all()
            e(f's_branch {lp}')
            e.vm = saved
            e.label(ld)
        if t == 7:
            e(f'ds_read_b128 {v(TM,4)}, {v(vMxA)} offset:1024')
            e(f's_xor_b32 s{sRX}, s2, 16'); e(f's_lshl_b32 s{sRX}, s{sRX}, 14'); e(f's_add_u32 s{sRX}, s{sRX}, {hex(WS_OX)}')
            e(f's_add_u32 s{sRX}, s{sRX}, s{sW2k}')
            e(f'v_add_f32 {v(TM)}, {v(TM)}, {v(TM+1)}')
            e(f'v_add_f32 {v(TM+2)}, {v(TM+2)}, {v(TM+3)}')
            e(f'v_add_f32 {v(TM)}, {v(TM)}, {v(TM+2)}')
            e(f'v_log_f32 {v(TM+1)}, {v(TM)}')
            e(f'v_rcp_f32 {v(vRl)}, {v(TM)}')
            e(f'v_sub_f32 {v(vLse)}, {v(TM+1)}, {v(vNm)}')
        if t == 8:
            for k in range(1, 4):
                e(f'ds_read_b128 {v(TM+8,4)}, {v(vRr)} offset:{(k-1)*SLOT}')
                e(f'ds_read_b128 {v(TM+12,4)}, {v(vRr)} offset:{(k-1)*SLOT + 1024}')
                for i in range(0, 8, 2):
                    e(f'v_pk_add_f32 {v(TM+i,2)}, {v(TM+i,2)}, {v(TM+8+i,2)}')
            for i in range(8): e(f'v_mul_f32 {v(TM+i)}, {v(TM+i)}, {v(vRl)}')
            e(f's_xor_b32 s{sT1}, s{sRX}, {hex(16 << 14)}')
            for i in range(4): e(f'v_cvt_pk_bf16_f32 {v(TM+8+i)}, {v(TM+2*i)}, {v(TM+2*i+1)}')
            e(f'v_lshlrev_b32 {v(vL8)}, 3, v0')
            e(f'buffer_store_dwordx4 {v(TM+8,4)}, {v(vLin)}, {srd(sWS)}, s{sT1} offen sc1', tag='OX')
            e(f'v_xor_b32 {v(TM+12)}, {v(TM+8)}, {v(TM+9)}')
            e(f'v_xor_b32 {v(TM+14)}, {v(TM+10)}, {v(TM+11)}')
            e(f'v_xor_b32 {v(TM+15)}, {v(vTok)}, {v(vLse)}')
            e(f'v_mov_b32 {v(TM+13)}, {v(vLse)}')
            e(f'v_xor_b32 {v(TM+12)}, {v(TM+12)}, {v(TM+14)}')
            e(f'v_xor_b32 {v(TM+12)}, {v(TM+12)}, {v(TM+15)}')
            e(f'buffer_store_dwordx2 {v(TM+12,2)}, {v(vL8)}, {srd(sWS)}, s{sT1} offen offset:1024 sc1', tag='OX')
        if t == opts.get('rxat', 13) and (not opts.get('noox') or opts.get('keepld')): rx_loads()
        if step in wo_read_at: wo_read(wo_read_at[step])
        sm = softmax(u + 1) if (p == 0 and u < 7) else []
        cuts = [0, 10, 20, 30, len(sm)] if sm else [0]*5
        for k in range(4):
            s_, d2 = k // 2, k % 2
            for x in sm[cuts[k]:cuts[k+1]]: e(x)
            c = '0' if (u == 0 and s_ == 0) else v(O+16*d2, 16)
            e(f'v_mfma_f32_32x32x16_bf16 {v(O+16*d2,16)}, {v(VF+4*k,4)}, {v(S0+16*u+4*s_,4)}, {c}')
        if t == 6:
            e(f'v_add_f32 {v(vL)}, {v(vL)}, {v(vL+1)}')
            xswap(vL, vT[0], 'v_add_f32')
            e(f'ds_write_b32 {v(vMo)}, {v(vL)} offset:1024')
        if t == 7:
            red_write()
            for i in range(8): e(f'v_mov_b32 {v(TM+i)}, {v(O+i)}')
            stamp()
    assert WS_OX % (32 << 14) == 0 and RS % 16384 == 0
    stamp()
    red_write()
    lp = e.newlabel('Lrx'); ld = e.newlabel('Lrxd')
    e(f's_mov_b32 s{sT3}, 0x20000')
    e.label(lp)
    e.wait_vm_all()
    e(f'v_xor_b32 {v(TM)}, {v(RG[0])}, {v(RG[0]+1)}')
    e(f'v_xor_b32 {v(TM+1)}, {v(RG[0]+2)}, {v(RG[0]+3)}')
    e(f'v_xor_b32 {v(TM+2)}, {v(RG[1])}, {v(RG[1]+1)}')
    e(f'v_xor_b32 {v(TM)}, {v(TM)}, {v(vTok)}')
    e(f'v_xor_b32 {v(TM+1)}, {v(TM+1)}, {v(TM+2)}')
    e(f'v_xor_b32 {v(TM)}, {v(TM)}, {v(TM+1)}')
    e(f'v_cmp_ne_u32 vcc, 0, {v(TM)}')
    e.nop(4)
    e(f's_cbranch_vccz {ld}')
    if opts.get('noox'): e(f's_branch {ld}')
    e(f's_sub_u32 s{sT3}, s{sT3}, 1')
    e(f's_cmp_eq_u32 s{sT3}, 0')
    e(f's_cbranch_scc1 {ld}')
    if opts.get('ox_pol', ' sc1') != ' sc1': e('buffer_wbl2 sc1')
    e(f's_sleep 8')
    rx_loads()
    e(f's_branch {lp}')
    for r in e.vm: e.vm[r] = []
    e.label(ld)
    e(f's_mov_b32 s{sT3}, 0xffff0000')
    t0, t1 = 38, 39
    e(f'v_sub_f32 {v(t0)}, {v(vLse)}, {v(RG[1]+1)}')
    e(f'v_sub_f32 {v(t1)}, {v(RG[1]+1)}, {v(vLse)}')
    e(f'v_exp_f32 {v(t0)}, {v(t0)}'); e(f'v_exp_f32 {v(t1)}, {v(t1)}')
    e(f'v_add_f32 {v(t0)}, 1.0, {v(t0)}'); e(f'v_add_f32 {v(t1)}, 1.0, {v(t1)}')
    e(f'v_rcp_f32 {v(t0)}, {v(t0)}'); e(f'v_rcp_f32 {v(t1)}, {v(t1)}')
    gsrc = [RG[0], RG[0]+1, RG[0]+2, RG[0]+3]
    for i in range(4):
        e(f'v_lshlrev_b32 {v(TM+2*i)}, 16, {v(gsrc[i])}'); e(f'v_and_b32 {v(TM+2*i+1)}, s{sT3}, {v(gsrc[i])}')
    e(f'v_mul_f32 {v(t1)}, {v(t1)}, {v(vRl)}')
    for i in range(8): e(f'v_mul_f32 {v(TM+i)}, {v(TM+i)}, {v(t0)}')
    OI = slot_of[TEND-2] * SLOT
    e(f's_add_u32 s{sT1}, s{sW1k}, {OI}')
    e(f'v_add_u32 {v(vT[0])}, s{sT1}, {v(vLin)}')
    e(f's_and_b32 s{sT2}, s{sWave}, 1'); e(f's_lshl_b32 s{sT0}, s{sT2}, 3'); e(f's_lshl_b32 s{sT1}, s{sT2}, 8')
    e(f'v_add_u32 {v(vRw)}, s{sT1}, {v(vOr)}')
    e.wait_lg(0)
    e('s_barrier')
    for k in range(1, 4):
        e(f'ds_read_b128 {v(O+8*k,4)}, {v(vRr)} offset:{(k-1)*SLOT}')
        e(f'ds_read_b128 {v(O+8*k+4,4)}, {v(vRr)} offset:{(k-1)*SLOT + 1024}')
    for k in range(1, 4):
        for i in range(0, 8, 2):
            e(f'v_pk_add_f32 {v(O+i,2)}, {v(O+i,2)}, {v(O+8*k+i,2)}')
    for i in range(8): e(f'v_fma_f32 {v(O+i)}, {v(O+i)}, {v(t1)}, {v(TM+i)}')
    for i in range(4): e(f'v_cvt_pk_bf16_f32 {v(TM+i)}, {v(O+2*i)}, {v(O+2*i+1)}')
    e(f'ds_write_b128 {v(vT[0])}, {v(TM,4)}')
    e.wait_lg(0)
    e('s_barrier')
    lo = lambda k: S0 + 16 * (k // 2) + 4 * (k % 2)
    for ck in range(4):
        for qt in range(2):
            e(f'ds_read_b128 {v(lo(2*ck+qt),4)}, {v(vOr)} offset:{OI + ck*2048 + qt*256}')
    for ck in range(4):
        e(f'ds_read_b128 {v(lo(8+ck),4)}, {v(vRw)} offset:{OI + ck*2048}')
    e(f's_mul_i32 s{sT1}, s2, {PART_BYTES}')
    e(f's_lshr_b32 s{sT3}, s{sWave}, 1'); e(f's_lshl_b32 s{sT3}, s{sT3}, 10'); e(f's_add_u32 s{sT3}, s{sT3}, s{sT0}')
    e(f's_add_u32 s{sT3}, s{sT3}, s{sT1}'); e(f's_add_u32 s{sT3}, s{sT3}, 32768')
    e(f's_lshl_b32 s{sT2}, s{sWave}, 12'); e(f's_add_u32 s{sT1}, s{sT1}, s{sT2}')
    AC = 84
    DD = [120, 124, 64, 68]
    def fin(j):
        D = DD[j]
        for qt in range(2):
            A0 = AC + 8*j + 4*qt
            e(f'v_cvt_pk_bf16_f32 {v(D+2*qt)}, {v(A0)}, {v(A0+1)}')
            e(f'v_cvt_pk_bf16_f32 {v(D+2*qt+1)}, {v(A0+2)}, {v(A0+3)}')
        e(f'buffer_store_dwordx4 {v(D,4)}, {v(vLin)}, {srd(sWS)}, s{sT1} offen offset:{j*1024}{st_pol}', tag='OUT')
    for j in range(4):
        for ck in range(4):
            for qt in range(2):
                A0 = AC + 8*j + 4*qt
                c = '0' if ck == 0 else v(A0, 4)
                e(f'v_mfma_f32_16x16x32_bf16 {v(A0,4)}, {v(WF[ck][j],4)}, {v(lo(2*ck+qt),4)}, {c}')
        c = '0' if j == 0 else v(AC+32, 4)
        e(f'v_mfma_f32_16x16x32_bf16 {v(AC+32,4)}, {v(WF[j][4],4)}, {v(lo(8+j),4)}, {c}')
        if j >= 1: fin(j - 1)
    fin(3)
    e(f'v_cvt_pk_bf16_f32 {v(72)}, {v(AC+32)}, {v(AC+33)}')
    e(f'v_cvt_pk_bf16_f32 {v(73)}, {v(AC+34)}, {v(AC+35)}')
    e(f'buffer_store_dwordx2 {v(72,2)}, {v(vLin)}, {srd(sWS)}, s{sT3} offen{st_pol}', tag='OUT')
    if stamps:
        stamp()
        e.wait_vm_all()
        stamp()
        e(f's_cmp_lg_u32 s{sWave}, 0'); e('s_cbranch_scc1 L_end1')
        e(f's_lshl_b32 s{sT1}, s2, 7'); e(f's_add_u32 s{sT1}, s{sT1}, {hex(WS_STAMP)}')
        e('s_mov_b64 exec, 1')
        e(f'v_mov_b32 {v(vT[2])}, 0')
        for i in range(16):
            if i < nstamp[0]:
                e(f'v_mov_b32 {v(vT[0])}, s{sStamp+2*i}'); e(f'v_mov_b32 {v(vT[1])}, s{sStamp+2*i+1}')
            else:
                e(f'v_mov_b32 {v(vT[0])}, 0'); e(f'v_mov_b32 {v(vT[1])}, 0')
            e(f'buffer_store_dwordx2 {v(vT[0],2)}, {v(vT[2])}, {srd(sWS)}, s{sT1} offen offset:{8*i}')
            e.nop(2)
    e.label('L_end1')
    e('s_endpgm')
    k1_lines = e.lines
    n1 = e.ninst
    k2_lines = gen_k2(k2_pol)

    hdr = open('standalone__sliding_block_cached__sampling.s.ref').read().split('\n')
    hdr = [l for l in hdr if l.startswith(';') and '@launch' not in l and 'Override' not in l and 'grid=ceil' not in l]
    out = hdr + [
        f'; @launch kernel={K1} grid=(256,1,1) block=(512,1,1) lds={LDS_BYTES}',
        f'; @launch kernel={K2} grid=(288,1,1) block=(256,1,1) lds=8192',
        '.amdgcn_target "amdgcn-amd-amdhsa--gfx950"', '.text'] + k1_lines + k2_lines
    def kd(name, nv, ns, acc):
        return ['.section .rodata,"a"', '.p2align 6', f'.amdhsa_kernel {name}',
                f'  .amdhsa_next_free_vgpr {nv}', f'  .amdhsa_next_free_sgpr {ns}', f'  .amdhsa_accum_offset {acc}',
                '  .amdhsa_group_segment_fixed_size 0', '  .amdhsa_kernarg_size 64', '  .amdhsa_user_sgpr_count 2',
                '  .amdhsa_user_sgpr_kernarg_segment_ptr 1', '  .amdhsa_system_sgpr_workgroup_id_x 1', '.end_amdhsa_kernel']
    out += kd(K1, 256, 102, 256) + kd(K2, 56, 32, 56)
    print('K1 instrs', n1, 'QI', QI, 'slots', [slot_of[n] for n in range(TEND)], file=sys.stderr)
    return '\n'.join(out) + '\n'

if __name__ == '__main__':
    E = 'exp/'
    b = dict(dmafirst=True)
    open(E + 'v17.s', 'w').write(gen(dict(b)))
```

```python
import sys, math, struct
from emit import Emitter
from gen6 import gen_k2, f32bits, K1, K2

SLOT = 16384
NSLOT = 7
SCR = NSLOT * SLOT
MX = SCR + 40960
LS = MX + 1024
TOK = LS + 1024
LDS_BYTES = TOK + 64
RS = 4 * SLOT
WS_EPOCH = 0x1000000
WS_OX = 0x1100000
WS_STAMP = 0x20000000
PART_BYTES = 36864
NW, NK, NV = 18, 16, 16
TK, TV, TEND = NW, NW + NK, NW + NK + NV

def gen(opts):
    stamps = opts.get('stamps', False)
    st_pol = opts.get('st_pol', ' sc1'); k2_pol = opts.get('k2_pol', '')
    wq_pol = opts.get('wq_pol', ''); wo_pol = opts.get('wo_pol', ''); x_pol = opts.get('x_pol', '')
    e = Emitter(roles=('A', 'C'))
    sK, sV, sWQ, sX, sWO, sWS, sDBG = 20, 24, 28, 32, 36, 40, 44
    sWave, sHkv, sB, sSp = 48, 49, 50, 51
    sW2k, sT0, sT1, sT2, sT3 = 52, 53, 54, 55, 56
    sWQb, sWOb, sKc = 57, 58, 59
    sC = 60
    sKs, sG0, sVb, sW1k = 62, 63, 64, 65
    sStamp = 66
    sI4, sHH = 98, 99
    sXc, sXb = 100, 101
    nstamp = [0]
    srd = lambda n: f's[{n}:{n+3}]'
    e.role_cond[frozenset('C')] = (f's_cmp_eq_u32 s{sWave}, 7', 's_cbranch_scc0')
    e.role_cond[frozenset('A')] = (f's_cmp_eq_u32 s{sWave}, 7', 's_cbranch_scc1')
    def stamp():
        if stamps:
            i = nstamp[0]; nstamp[0] += 1
            assert i < 16
            e.wait_lg(0)
            e(f's_memrealtime s[{sStamp+2*i}:{sStamp+2*i+1}]')
            e.wait_lg(0)
    def forget(tag):
        e.vm['C'] = [x for x in e.vm['C'] if x[0] != tag]
    v = lambda n, c=1: f'v{n}' if c == 1 else f'v[{n}:{n+c-1}]'
    vLin, vLc, vLr = 1, 2, 3
    vKd = [4, 5]; vVd = 6; vVr = [7, 8]; vKr = list(range(9, 17))
    vWr = 17; vWx = 18; vMxA = 19; vMo = 20; vOr = 21
    vL = 22
    vNm = 24; vM = 25; vRw = 26; vRr = 27
    vT = [28, 29, 30, 31]
    S0 = 128; QF = 96; KF = 64; W0R = 44
    vWd = [128, 129]; vXd = 130; vQr = [132, 133]; vXb = [134, 135, 136, 137]; vXa = [138, 139, 140, 141]
    QA = 160; QB = 176; QACC = 224
    TK0 = 32

    e.raw(f'.globl {K1}'); e.raw('.p2align 8'); e.raw(f'.type {K1},@function'); e.label(K1)
    e('s_cmp_ge_u32 s2, 256')
    e('s_cbranch_scc1 L_end1')
    e('s_load_dwordx16 s[4:19], s[0:1], 0')
    if stamps:
        e(f's_memrealtime s[{sStamp}:{sStamp+1}]'); nstamp[0] = 1
    e(f'v_lshrrev_b32 {v(vT[0])}, 6, v0')
    e(f'v_and_b32 v0, 63, v0')
    e(f'v_readfirstlane_b32 s{sWave}, {v(vT[0])}')
    e(f's_and_b32 s{sHkv}, s2, 7'); e(f's_lshl_b32 s{sHkv}, s{sHkv}, 1')
    e(f's_bfe_u32 s{sT0}, s2, 0x10003'); e(f's_or_b32 s{sHkv}, s{sHkv}, s{sT0}')
    e(f's_lshr_b32 s{sB}, s2, 5')
    e(f'v_lshrrev_b32 {v(vT[0])}, 5, v0')
    e(f'v_and_b32 {v(vT[1])}, 31, v0')
    e(f'v_lshlrev_b32 {v(vT[2])}, 2, {v(vT[0])}')
    e(f'v_xor_b32 {v(vT[1])}, {v(vT[1])}, {v(vT[2])}')
    e(f'v_lshlrev_b32 {v(vT[1])}, 4, {v(vT[1])}')
    e(f'v_lshl_add_u32 {v(vWd[0])}, {v(vT[0])}, 13, {v(vT[1])}')
    e(f'v_xor_b32 {v(vWd[1])}, 0x80, {v(vWd[0])}')
    e(f'v_add_u32 {v(vWd[1])}, {16384-1024}, {v(vWd[1])}')
    e(f's_lshl_b32 s{sW2k}, s{sWave}, 11')
    e(f's_lshl_b32 s{sWQb}, s{sWave}, 15'); e(f's_lshl_b32 s{sT1}, s{sHkv}, 9'); e(f's_add_u32 s{sWQb}, s{sWQb}, s{sT1}')
    e(f's_bfe_u32 s{sKs}, s2, 0x20003'); e(f's_lshl1_add_u32 s{sKs}, s{sKs}, s{sB}')
    e(f's_cmp_ge_u32 s{sKs}, 9'); e(f's_cselect_b32 s{sT1}, 9, 0'); e(f's_sub_u32 s{sKs}, s{sKs}, s{sT1}')
    if not opts.get('rot', True): e(f's_mov_b32 s{sKs}, 0')
    e(f's_mov_b32 s{sKc}, s{sKs}')
    e(f's_and_b32 s{sI4}, s{sWave}, 3'); e(f's_lshr_b32 s{sHH}, s{sWave}, 2')
    e(f'v_lshrrev_b32 {v(vT[0])}, 3, v0')
    e(f'v_lshrrev_b32 {v(vLr)}, 4, v0')
    e(f's_and_b32 s{sT1}, s{sWave}, 1'); e(f's_lshl_b32 s{sT1}, s{sT1}, 2')
    e(f'v_or_b32 {v(vT[1])}, s{sT1}, {v(vLr)}')
    e(f'v_and_b32 {v(vT[2])}, 7, v0')
    e(f'v_xor_b32 {v(vT[1])}, {v(vT[1])}, {v(vT[2])}')
    e(f's_movk_i32 s{sT1}, 1152')
    e(f'v_mul_lo_u32 {v(vT[0])}, {v(vT[0])}, s{sT1}')
    e(f'v_lshl_add_u32 {v(vXd)}, {v(vT[1])}, 4, {v(vT[0])}')
    e(f's_mul_i32 s{sXb}, s{sB}, 36864'); e(f's_mul_i32 s{sT0}, s{sI4}, 9216'); e(f's_add_u32 s{sXb}, s{sXb}, s{sT0}')
    e(f's_add_u32 s{sXc}, s{sKs}, s{sHH}'); e(f's_cmp_eq_u32 s{sXc}, 9'); e(f's_cselect_b32 s{sXc}, 0, s{sXc}')
    e(f's_lshl_b32 s{sT2}, s{sI4}, 10'); e(f's_add_u32 s{sT2}, s{sT2}, {SCR}')
    e(f's_lshl_b32 s{sW1k}, s{sWave}, 10')
    e.wait_lg(0)
    e(f's_mov_b32 s{sX}, s4'); e(f's_mov_b32 s{sX+1}, s5'); e(f's_mov_b32 s{sX+2}, {256*1152}'); e(f's_mov_b32 s{sX+3}, 0x20000')
    e(f's_mov_b32 s{sWQ}, s10'); e(f's_mov_b32 s{sWQ+1}, s11'); e(f's_mov_b32 s{sWQ+2}, {576*8192}'); e(f's_mov_b32 s{sWQ+3}, 0x20000')

    slot_of = {}
    free = list(range(NSLOT))
    nxt = [0]
    def x_dma(k):
        e(f's_lshl_b32 s{sT1}, s{sXc}, 12'); e(f's_add_u32 m0, s{sT1}, s{sT2}')
        e(f's_lshl_b32 s{sT1}, s{sXc}, 7'); e(f's_add_u32 s{sT1}, s{sT1}, s{sXb}')
        e(f'buffer_load_dwordx4 {v(vXd)}, {srd(sX)}, s{sT1} offen{x_pol} lds', tag=f'X{k}')
        if k < 4:
            e(f's_add_u32 s{sXc}, s{sXc}, 2'); e(f's_cmp_ge_u32 s{sXc}, 9'); e(f's_cselect_b32 s{sT1}, 9, 0'); e(f's_sub_u32 s{sXc}, s{sXc}, s{sT1}')
    def dma_tile(n):
        slot = slot_of[n]
        if n < TK and n % 4 == 0: x_dma(n // 4)
        e(f's_add_u32 m0, s{sW2k}, {slot*SLOT}')
        if n < TK:
            if n % 2 == 0:
                e(f's_lshl_b32 s{sG0}, s{sKs}, 19'); e(f's_add_u32 s{sG0}, s{sG0}, s{sWQb}')
            else:
                e(f's_add_u32 s{sG0}, s{sG0}, {32*8192}')
            for i in range(2):
                e(f'buffer_load_dwordx4 {v(vWd[i])}, {srd(sWQ)}, s{sG0} offen offset:{i*1024}{wq_pol} lds', tag=f'T{n}')
            if n % 2 == 1 and n < TK - 1:
                e(f's_add_u32 s{sKs}, s{sKs}, 1'); e(f's_cmp_eq_u32 s{sKs}, 9'); e(f's_cselect_b32 s{sKs}, 0, s{sKs}')
        elif opts.get('nokv'):
            pass
        elif n < TV:
            e(f's_add_u32 s{sT1}, s{sW2k}, {(n-TK)*SLOT}')
            for i in range(2):
                e(f'buffer_load_dwordx4 {v(vKd[i])}, {srd(sK)}, s{sT1} offen offset:{i*1024} nt lds', tag=f'T{n}')
        else:
            p, u = (n - TV) // 8, (n - TV) % 8
            if n == TV + 8: e(f's_xor_b32 s{sVb}, s{sVb}, 0x80')
            e(f's_add_u32 s{sT1}, s{sVb}, {u*32768}')
            e(f'buffer_load_dwordx4 {v(vVd)}, {srd(sV)}, s{sT1} offen nt lds', tag=f'T{n}')
            e(f's_add_u32 s{sT1}, s{sT1}, 1024')
            e(f'buffer_load_dwordx4 {v(vVd)}, {srd(sV)}, s{sT1} offen offset:1024 nt lds', tag=f'T{n}')
    def issue(maxn):
        k = 0
        while nxt[0] < TEND and k < maxn:
            n = nxt[0]
            if n in slot_of: nxt[0] += 1; continue
            cand = [s for s in free if n < TV or s < 4]
            if not cand: break
            s = cand[0] if n >= TV else max(cand)
            free.remove(s); slot_of[n] = s; nxt[0] += 1; k += 1
            dma_tile(n)
    def release(ns):
        for n in ns: free.append(slot_of[n])
        free.sort()

    def mid_setup():
        e(f's_bfe_u32 s{sSp}, s2, 0x10004')
        e(f's_lshl_b32 s{sT0}, s{sB}, 4'); e(f's_add_u32 s{sT0}, s{sT0}, s{sHkv}'); e(f's_lshl_b32 s{sT0}, s{sT0}, 21')
        e(f's_lshl_b32 s{sT1}, s{sSp}, 18'); e(f's_add_u32 s{sT0}, s{sT0}, s{sT1}'); e(f's_add_u32 s{sT0}, s{sT0}, {6144*256}')
        e(f's_add_u32 s{sK}, s6, s{sT0}'); e(f's_addc_u32 s{sK+1}, s7, 0'); e(f's_mov_b32 s{sK+2}, 0x40000'); e(f's_mov_b32 s{sK+3}, 0x20000')
        e(f's_add_u32 s{sV}, s8, s{sT0}'); e(f's_addc_u32 s{sV+1}, s9, 0'); e(f's_mov_b32 s{sV+2}, 0x40000'); e(f's_mov_b32 s{sV+3}, 0x20000')
        e(f's_and_b32 s{sT1}, s{sWave}, 1'); e(f's_lshl_b32 s{sT1}, s{sT1}, 3')
        e(f'v_xor_b32 {v(vT[0])}, {v(vLr)}, {v(vLc)}')
        e(f'v_xor_b32 {v(vT[0])}, s{sT1}, {v(vT[0])}')
        e(f'v_lshlrev_b32 {v(vT[0])}, 4, {v(vT[0])}')
        e(f'v_lshl_add_u32 {v(vKd[0])}, {v(vLr)}, 8, {v(vT[0])}')
        e(f'v_xor_b32 {v(vKd[1])}, 64, {v(vKd[0])}')
    issue(2)
    e(f'v_and_b32 {v(vLc)}, 15, v0')
    mid_setup()
    def k_early(j):
        n = TK + j
        slot_of[n] = min(free); free.remove(slot_of[n]); dma_tile(n)
    for j in range(opts.get('kearly', 0)): k_early(j)
    if opts.get('tlb'):
        e(f'v_mov_b32 {v(142)}, 0')
        e(f'buffer_load_dword {v(143)}, {v(142)}, {srd(sK)}, s{sW2k} offen nt', tag='TL')
        e(f'buffer_load_dword {v(144)}, {v(142)}, {srd(sV)}, s{sW2k} offen nt', tag='TL')
    issue(opts.get('w1', 1))

    e(f'v_lshlrev_b32 {v(vLin)}, 4, v0')
    e(f'v_lshrrev_b32 {v(vT[0])}, 2, {v(vLc)}')
    e(f'v_xor_b32 {v(vT[1])}, s{sWave}, {v(vT[0])}')
    e(f'v_lshlrev_b32 {v(vT[1])}, 6, {v(vT[1])}')
    e(f'v_lshl_add_u32 {v(vT[1])}, {v(vT[0])}, 9, {v(vT[1])}')
    e(f'v_lshrrev_b32 {v(vT[2])}, 5, v0')
    e(f'v_lshl_add_u32 {v(vT[1])}, {v(vT[2])}, 12, {v(vT[1])}')
    e(f'v_and_b32 {v(vT[3])}, 1, {v(vLr)}')
    e(f'v_lshl_add_u32 {v(vT[1])}, {v(vT[3])}, 5, {v(vT[1])}')
    e(f'v_and_b32 {v(vT[3])}, 3, {v(vLc)}')
    e(f'v_lshl_add_u32 {v(vQr[0])}, {v(vT[3])}, 3, {v(vT[1])}')
    e(f'v_add_u32 {v(vQr[1])}, 0x10000, {v(vQr[0])}')
    e(f'v_and_b32 {v(vT[0])}, 31, v0')
    e(f'v_bfe_u32 {v(vT[1])}, v0, 1, 3')
    e(f'v_xor_b32 {v(vT[1])}, {v(vT[1])}, {v(vT[2])}')
    e(f'v_lshlrev_b32 {v(vT[1])}, 4, {v(vT[1])}')
    e(f'v_lshl_add_u32 {v(vXb[0])}, {v(vT[0])}, 7, {v(vT[1])}')
    for k in range(1, 4): e(f'v_xor_b32 {v(vXb[k])}, {32*k}, {v(vXb[0])}')

    def setup_k():
        e(f'v_lshrrev_b32 {v(vT[0])}, 5, v0')
        e(f'v_xor_b32 {v(vT[0])}, {v(vT[0])}, {v(vLc)}')
        e(f'v_lshlrev_b32 {v(vT[0])}, 4, {v(vT[0])}')
        e(f'v_and_b32 {v(vT[1])}, 31, v0')
        e(f'v_lshl_add_u32 {v(vT[0])}, {v(vT[1])}, 8, {v(vT[0])}')
        e(f's_and_b32 s{sT1}, s{sWave}, 1'); e(f's_lshl_b32 s{sT1}, s{sT1}, 13')
        e(f'v_add_u32 {v(vKr[0])}, s{sT1}, {v(vT[0])}')
        for j in range(1, 8): e(f'v_xor_b32 {v(vKr[j])}, {32*j}, {v(vKr[0])}')
    def setup_w():
        e(f's_mov_b32 s{sWO}, s12'); e(f's_mov_b32 s{sWO+1}, s13'); e(f's_mov_b32 s{sWO+2}, {4096*1152}'); e(f's_mov_b32 s{sWO+3}, 0x20000')
        e(f's_mov_b32 s{sWS}, s18'); e(f's_mov_b32 s{sWS+1}, s19'); e(f's_mov_b32 s{sWS+2}, 0x30000000'); e(f's_mov_b32 s{sWS+3}, 0x20000')
        e(f's_mov_b32 s{sDBG}, s16'); e(f's_mov_b32 s{sDBG+1}, s17'); e(f's_mov_b32 s{sDBG+2}, 256'); e(f's_mov_b32 s{sDBG+3}, 0x20000')
        e(f's_lshl_b32 s{sT1}, s{sHkv}, 2'); e(f's_add_u32 s{sT1}, s{sT1}, s{sSp}')
        e(f's_mul_i32 s{sWOb}, s{sT1}, {64*1152}'); e(f's_add_u32 s{sWOb}, s{sWOb}, s{sW1k}')
        e(f'v_mov_b32 {v(TK0)}, {hex(WS_EPOCH)}'); e(f'v_mov_b32 {v(TK0+2)}, 0')
    def setup_v():
        e(f's_mov_b32 s{sC}, {hex(f32bits(math.log2(math.e) / math.sqrt(128.0)))}'); e(f's_mov_b32 s{sC+1}, s{sC}')
        e(f's_xor_b32 s{sT1}, s{sSp}, 1'); e(f's_lshl_b32 s{sT1}, s{sT1}, 7')
        e(f's_lshl_b32 s{sVb}, s{sWave}, 12'); e(f's_add_u32 s{sVb}, s{sVb}, s{sT1}')
        e(f'v_lshrrev_b32 {v(vT[0])}, 3, v0')
        e(f'v_and_b32 {v(vT[1])}, 1, {v(vLr)}')
        e(f'v_lshlrev_b32 {v(vT[1])}, 2, {v(vT[1])}')
        e(f'v_and_b32 {v(vT[2])}, 7, v0')
        e(f'v_xor_b32 {v(vT[1])}, {v(vT[1])}, {v(vT[2])}')
        e(f'v_lshlrev_b32 {v(vT[1])}, 4, {v(vT[1])}')
        e(f'v_lshl_add_u32 {v(vVd)}, {v(vT[0])}, 8, {v(vT[1])}')
        e(f'v_lshrrev_b32 {v(vT[0])}, 5, v0')
        e(f'v_lshrrev_b32 {v(vT[1])}, 2, {v(vLc)}')
        e(f'v_lshl_add_u32 {v(vT[0])}, {v(vT[0])}, 2, {v(vT[1])}')
        e(f'v_and_b32 {v(vT[1])}, 2, {v(vT[1])}')
        e(f'v_and_b32 {v(vT[2])}, 1, {v(vLr)}')
        e(f'v_or_b32 {v(vT[1])}, {v(vT[1])}, {v(vT[2])}')
        e(f'v_xor_b32 {v(vT[1])}, s{sI4}, {v(vT[1])}')
        e(f'v_lshlrev_b32 {v(vT[1])}, 5, {v(vT[1])}')
        e(f'v_lshl_add_u32 {v(vT[1])}, {v(vT[0])}, 7, {v(vT[1])}')
        e(f'v_and_b32 {v(vT[2])}, 3, {v(vLc)}')
        e(f'v_lshl_add_u32 {v(vT[1])}, {v(vT[2])}, 3, {v(vT[1])}')
        e(f's_lshl_b32 s{sT1}, s{sI4}, 12')
        e(f'v_add_u32 {v(vVr[0])}, s{sT1}, {v(vT[1])}')
        e(f'v_xor_b32 {v(vVr[1])}, 64, {v(vVr[0])}')
        e(f'v_lshrrev_b32 {v(vT[0])}, 5, v0')
        e(f'v_lshlrev_b32 {v(vT[0])}, 3, {v(vT[0])}')
        e(f'v_lshrrev_b32 {v(vT[1])}, 2, v0')
        e(f'v_add_u32 {v(vT[0])}, {v(vT[0])}, {v(vT[1])}')
        e(f's_movk_i32 s{sT1}, 1152')
        e(f'v_mul_lo_u32 {v(vT[0])}, {v(vT[0])}, s{sT1}')
        e(f'v_lshl_add_u32 {v(vT[0])}, {v(vT[2])}, 3, {v(vT[0])}')
        e(f's_lshl_b32 s{sT1}, s{sWave}, 7'); e(f's_add_u32 s{sT1}, s{sT1}, {SCR}')
        e(f'v_add_u32 {v(vWr)}, s{sT1}, {v(vT[0])}')
        e(f's_lshr_b32 s{sT1}, s{sWave}, 1'); e(f's_lshl_b32 s{sT1}, s{sT1}, 5'); e(f's_add_u32 s{sT1}, s{sT1}, {SCR + 1024}')
        e(f'v_add_u32 {v(vWx)}, s{sT1}, {v(vT[0])}')
        e(f'v_and_b32 {v(vT[0])}, 31, v0')
        e(f's_lshl_b32 s{sT1}, s{sHH}, 9'); e(f's_add_u32 s{sT1}, s{sT1}, {MX}')
        e(f'v_lshlrev_b32 {v(vT[0])}, 4, {v(vT[0])}')
        e(f'v_add_u32 {v(vMxA)}, s{sT1}, {v(vT[0])}')
        e(f's_lshl_b32 s{sT1}, s{sI4}, 2')
        e(f'v_add_u32 {v(vMo)}, s{sT1}, {v(vMxA)}')
        e(f's_add_u32 s{sT1}, s{sW2k}, {RS}')
        e(f'v_add_u32 {v(vRr)}, s{sT1}, {v(vLin)}')
        e(f'v_lshlrev_b32 {v(vT[1])}, 9, {v(vLr)}')
        e(f'v_lshl_add_u32 {v(vOr)}, {v(vLc)}, 4, {v(vT[1])}')

    QI = None
    def q_mf(q):
        o = 32 * (q % 2)
        for k in range(4):
            c = '0' if (q == 0 and k == 0) else v(QACC, 16)
            e(f'v_mfma_f32_32x32x16_bf16 {v(QACC,16)}, {v(QA+o+4*k,4)}, {v(QB+o+4*k,4)}, {c}')
    for q in range(9):
        e(f's_lshl_b32 s{sT1}, s{sKc}, 12'); e(f's_add_u32 s{sT1}, s{sT1}, {SCR}')
        for k in range(4): e(f'v_add_u32 {v(vXa[k])}, s{sT1}, {v(vXb[k])}')
        if q < 8:
            e(f's_add_u32 s{sKc}, s{sKc}, 1'); e(f's_cmp_eq_u32 s{sKc}, 9'); e(f's_cselect_b32 s{sKc}, 0, s{sKc}')
        e.wait_vm(f'T{2*q}', f'T{2*q+1}')
        if q == 0: issue(opts.get('w2', 4))
        e.wait_lg(0)
        e('s_barrier')
        if q in opts.get('qst', (0,)): stamp()
        o = 32 * (q % 2)
        if q >= 1:
            release([2*q-2, 2*q-1])
            if q == 8: QI = free.pop(0) * SLOT
            if opts.get('dmafirst') and nxt[0] < TK: issue(min(2, TK - nxt[0]))
        for k in range(4):
            par, s_ = k // 2, k % 2
            off = slot_of[2*q+par] * SLOT + s_ * 8192
            r = vQr[off // 65536]; off %= 65536
            e(f'ds_read_b64_tr_b16 {v(QA+o+4*k,2)}, {v(r)} offset:{off}')
            e(f'ds_read_b64_tr_b16 {v(QA+o+4*k+2,2)}, {v(r)} offset:{off + 2048}')
            e(f'ds_read_b128 {v(QB+o+4*k,4)}, {v(vXa[k])}')
        if q >= 1:
            if not opts.get('dmafirst') and nxt[0] < TK: issue(min(2, TK - nxt[0]))
            if opts.get('kfirst') and nxt[0] >= TK: issue(2)
            q_mf(q - 1)
            if nxt[0] >= TK and q < 8: issue(opts.get('kq', 2))
        if q == 7: setup_k()
    q_mf(8)
    e(f'v_and_b32 {v(vT[0])}, 31, v0')
    e(f'v_lshrrev_b32 {v(vT[1])}, 5, v0')
    e(f'v_lshlrev_b32 {v(vT[0])}, 4, {v(vT[0])}')
    e(f'v_lshl_add_u32 {v(vT[0])}, {v(vT[1])}, 3, {v(vT[0])}')
    e(f's_add_u32 s{sT1}, s{sW2k}, {QI}')
    e(f'v_add_u32 {v(vT[0])}, s{sT1}, {v(vT[0])}')
    e(f's_lshl_b32 s{sT1}, s{sHH}, 13'); e(f's_add_u32 s{sT1}, s{sT1}, {QI}')
    e(f'v_add_u32 {v(vT[2])}, s{sT1}, {v(vLin)}')
    for a_ in range(4):
        e(f'v_cvt_pk_bf16_f32 {v(QA+2*a_)}, {v(QACC+4*a_)}, {v(QACC+4*a_+1)}')
        e(f'v_cvt_pk_bf16_f32 {v(QA+2*a_+1)}, {v(QACC+4*a_+2)}, {v(QACC+4*a_+3)}')
        e(f'ds_write_b64 {v(vT[0])}, {v(QA+2*a_,2)} offset:{a_*512}')
    issue(2)
    stamp()

    def wo_dma(ck, ks):
        if opts.get('nowo'): return
        hh, jb = ck // 2, ck % 2
        for k in ks:
            e(f's_add_u32 m0, s{sW1k}, {SCR + k*8192}')
            e(f's_add_u32 s{sT1}, s{sWOb}, {(128*hh + 32*jb)*1152 + k*8192}')
            e(f'buffer_load_dwordx4 {v(vLin)}, {srd(sWO)}, s{sT1} offen{wo_pol} lds', tag=f'W{ck}')
    def up(k): return S0 + 16 * (k // 2) + 8 + 4 * (k % 2)
    WF = {0: [W0R + 4*j for j in range(5)]}
    for ck in range(1, 4): WF[ck] = [up(5*(ck-1) + j) for j in range(5)]
    def wo_read(ck):
        for j in range(4):
            for hf in range(2):
                e(f'ds_read_b64_tr_b16 {v(WF[ck][j]+2*hf,2)}, {v(vWr)} offset:{hf*9216 + 32*j}')
        for hf in range(2):
            e(f'ds_read_b64_tr_b16 {v(WF[ck][4]+2*hf,2)}, {v(vWx)} offset:{hf*9216}')
    wsched = opts.get('wsched', {0: ({0: (0, 1), 1: (2, 3), 2: (4,)}, 4),
                                 1: ({5: (0, 1), 6: (2, 3), 7: (4,)}, 11),
                                 2: ({12: (0, 1), 13: (2, 3), 14: (4,)}, 17),
                                 3: ({18: (0, 1), 19: (2, 3), 20: (4,)}, 23)})
    wo_dma_at = {}; wo_read_at = {}
    for ck, (d, rd) in wsched.items():
        for st, ks in d.items(): wo_dma_at[st] = (ck, ks)
        wo_read_at[rd] = ck

    def head(step, tiles):
        tags = [f'T{n}' for n in tiles]
        if step in wo_read_at: tags.append(f'W{wo_read_at[step]}')
        if tags: e.wait_vm(*tags)
        e.wait_lg(0)
        e('s_barrier')
    def tail(step):
        if step in wo_dma_at: wo_dma(*wo_dma_at[step])
        need = TK + ((2*step + 4) if step < 8 else (16 + step - 8 + 1))
        la = opts.get('la', 2)
        issue(max(0, min(3, need + la - nxt[0])))
    def xswap(reg, tmp, op):
        e(f'v_mov_b32 {v(tmp)}, {v(reg)}')
        e(f'v_permlane32_swap_b32 {v(reg)}, {v(tmp)}')
        e(f'{op} {v(reg)}, {v(reg)}, {v(tmp)}')

    kcur = [(0, 0)]
    for u in range(8):
        ta, tb = TK + 2*u, TK + 2*u + 1
        sa, sb = slot_of[ta] * SLOT, slot_of[tb] * SLOT
        pa, pb = kcur[0]
        da, db_ = (sa - pa) & 0xffffffff, (sb - pb) & 0xffffffff
        e(f's_cmp_lt_u32 s{sI4}, 2')
        e(f's_mov_b32 s{sT0}, {hex(db_)}')
        e(f's_cmov_b32 s{sT0}, {hex(da)}')
        for j in range(8): e(f'v_add_u32 {v(vKr[j])}, s{sT0}, {v(vKr[j])}')
        kcur[0] = (sa, sb)
        head(u, [ta, tb])
        if u in opts.get('kst', ()): stamp()
        if u == 0:
            release([TK-2, TK-1])
            for j in range(8):
                e(f'ds_read_b128 {v(QF+4*j,4)}, {v(vT[2])} offset:{j*1024}')
        else:
            release([ta-2, tb-2])
            if u == 1: free.append(QI // SLOT); free.sort()
        for j in range(8):
            e(f'ds_read_b128 {v(KF+4*j,4)}, {v(vKr[j])}')
        if u == 0: setup_w()
        tail(u)
        if u in wo_read_at: wo_read(wo_read_at[u])
        if u >= 1:
            Sp = S0 + 16 * (u - 1)
            if u == 1: e(f'v_max3_f32 {v(vM)}, {v(Sp)}, {v(Sp+1)}, {v(Sp+2)}'); st = 3
            else: st = 0
            for i in range(st, 15, 2): e(f'v_max3_f32 {v(vM)}, {v(vM)}, {v(Sp+i)}, {v(Sp+i+1)}')
            if u == 1: e(f'v_max_f32 {v(vM)}, {v(vM)}, {v(Sp+15)}')
        Sb = S0 + 16 * u
        for j in range(8):
            c = '0' if j == 0 else v(Sb, 16)
            e(f'v_mfma_f32_32x32x16_bf16 {v(Sb,16)}, {v(KF+4*j,4)}, {v(QF+4*j,4)}, {c}')
        if u == 0:
            with e.only('C'):
                lw = e.newlabel('Llead')
                saved = list(e.vm['C'])
                e(f's_cmp_lg_u32 s2, 0')
                e(f's_cbranch_scc1 {lw}')
                e(f's_mov_b64 exec, 1')
                e(f'buffer_load_dword {v(TK0+1)}, {v(TK0)}, {srd(sWS)}, 0 offen sc1', tag='EP')
                e.wait_vm_all()
                e(f'v_add_u32 {v(TK0+1)}, 1, {v(TK0+1)}')
                e(f'v_or_b32 {v(TK0+1)}, 0x80000000, {v(TK0+1)}')
                e(f'buffer_store_dword {v(TK0+1)}, {v(TK0+2)}, {srd(sDBG)}, 0 offen sc1', tag='EPS')
                e(f'buffer_store_dword {v(TK0+1)}, {v(TK0)}, {srd(sWS)}, 0 offen sc1', tag='EPS')
                e(f's_mov_b64 exec, -1')
                e.label(lw)
                e.vm['C'] = saved
        if u == 1: setup_v()
        if u == 6:
            e(f'buffer_load_dword {v(TK0+1)}, {v(TK0+2)}, {srd(sDBG)}, 0 offen', tag='TKL')
    Sp = S0 + 16 * 7
    for i in range(0, 16, 2): e(f'v_max3_f32 {v(vM)}, {v(vM)}, {v(Sp+i)}, {v(Sp+i+1)}')
    xswap(vM, vT[0], 'v_max_f32')
    e(f'ds_write_b32 {v(vMo)}, {v(vM)}')
    stamp()

    def softmax(u):
        Sb = S0 + 16 * u
        g = [f'v_pk_fma_f32 {v(Sb+i,2)}, {v(Sb+i,2)}, s[{sC}:{sC+1}], {v(vNm,2)} op_sel_hi:[1,0,0]' for i in range(0, 16, 2)]
        g += [f'v_exp_f32 {v(Sb+i)}, {v(Sb+i)}' for i in range(16)]
        if u == 0:
            g += [f'v_pk_add_f32 {v(vL,2)}, {v(Sb,2)}, {v(Sb+2,2)}'] + [f'v_pk_add_f32 {v(vL,2)}, {v(vL,2)}, {v(Sb+i,2)}' for i in range(4, 16, 2)]
        else:
            g += [f'v_pk_add_f32 {v(vL,2)}, {v(vL,2)}, {v(Sb+i,2)}' for i in range(0, 16, 2)]
        g += [f'v_cvt_pk_bf16_f32 {v(Sb+i)}, {v(Sb+2*i)}, {v(Sb+2*i+1)}' for i in range(8)]
        return g

    head(8, [])
    release([TV-2, TV-1])
    e(f'ds_read_b128 {v(vT[0],4)}, {v(vMxA)}')
    tail(8)
    e(f'v_max3_f32 {v(vM)}, {v(vT[0])}, {v(vT[1])}, {v(vT[2])}')
    e(f'v_max_f32 {v(vM)}, {v(vM)}, {v(vT[3])}')
    e(f'v_mul_f32 {v(vNm)}, s{sC}, {v(vM)}')
    e(f'v_sub_f32 {v(vNm)}, 0, {v(vNm)}')
    for x in softmax(0): e(x)

    O = 96
    VF = 64
    TM = 80
    vTok = TK0 + 1
    vLse, vRl = 36, 37
    RG = [40, up(15)]
    sRX = sKs
    vL32 = 9
    def rx_loads():
        e(f'buffer_load_dwordx4 {v(RG[0],4)}, {v(vLin)}, {srd(sWS)}, s{sRX} offen sc1', tag='RX')
        e(f'buffer_load_dwordx4 {v(RG[1],4)}, {v(vL32)}, {srd(sWS)}, s{sRX} offen offset:1024 sc1', tag='RX')
    def red_write():
        for k in range(1, 4):
            e(f'v_xor_b32 {v(vT[k])}, {k*2048}, {v(vRr)}')
        for k in range(1, 4):
            e(f'ds_write_b128 {v(vT[k])}, {v(O+8*k,4)} offset:{(k-1)*SLOT}')
            e(f'ds_write_b128 {v(vT[k])}, {v(O+8*k+4,4)} offset:{(k-1)*SLOT + 1024}')
    for t in range(16):
        step = 9 + t; n = TV + t; p, u = t // 8, t % 8
        head(step, [n])
        if t in opts.get('vst', ()): stamp()
        if t >= 1: release([n - 1])
        off = slot_of[n] * SLOT
        for k in range(4):
            s_, d2 = k // 2, k % 2
            e(f'ds_read_b64_tr_b16 {v(VF+4*k,2)}, {v(vVr[d2])} offset:{off + s_*2048}')
            e(f'ds_read_b64_tr_b16 {v(VF+4*k+2,2)}, {v(vVr[d2])} offset:{off + s_*2048 + 1024}')
        tail(step)
        if t == 3:
            lp = e.newlabel('Ltk'); ld = e.newlabel('Ltkd')
            e(f's_mov_b32 s{sT3}, 0x20000')
            e.wait_vm('TKL')
            saved = {r: list(e.vm[r]) for r in e.vm}
            e.label(lp)
            e(f'v_readfirstlane_b32 s{sT1}, {v(vTok)}')
            e(f's_cmp_lg_u32 s{sT1}, 0')
            e(f's_cbranch_scc1 {ld}')
            e(f's_sub_u32 s{sT3}, s{sT3}, 1')
            e(f's_cmp_eq_u32 s{sT3}, 0')
            e(f's_cbranch_scc1 {ld}')
            e(f's_sleep 8')
            e(f'buffer_load_dword {v(vTok)}, {v(TK0+2)}, {srd(sDBG)}, 0 offen sc1', tag='TKL')
            e.wait_vm_all()
            e(f's_branch {lp}')
            e.vm = saved
            e.label(ld)
        if t == 7:
            e(f'ds_read_b128 {v(TM,4)}, {v(vMxA)} offset:1024')
            e(f's_xor_b32 s{sRX}, s2, 16'); e(f's_lshl_b32 s{sRX}, s{sRX}, 14'); e(f's_add_u32 s{sRX}, s{sRX}, {hex(WS_OX)}')
            e(f's_add_u32 s{sRX}, s{sRX}, s{sW2k}')
            e(f'v_add_f32 {v(TM)}, {v(TM)}, {v(TM+1)}')
            e(f'v_add_f32 {v(TM+2)}, {v(TM+2)}, {v(TM+3)}')
            e(f'v_add_f32 {v(TM)}, {v(TM)}, {v(TM+2)}')
            e(f'v_log_f32 {v(TM+1)}, {v(TM)}')
            e(f'v_rcp_f32 {v(vRl)}, {v(TM)}')
            e(f'v_sub_f32 {v(vLse)}, {v(TM+1)}, {v(vNm)}')
        if t == 8:
            for k in range(1, 4):
                e(f'ds_read_b128 {v(TM+8,4)}, {v(vRr)} offset:{(k-1)*SLOT}')
                e(f'ds_read_b128 {v(TM+12,4)}, {v(vRr)} offset:{(k-1)*SLOT + 1024}')
                for i in range(0, 8, 2):
                    e(f'v_pk_add_f32 {v(TM+i,2)}, {v(TM+i,2)}, {v(TM+8+i,2)}')
            for i in range(8): e(f'v_mul_f32 {v(TM+i)}, {v(TM+i)}, {v(vRl)}')
            e(f's_xor_b32 s{sT1}, s{sRX}, {hex(16 << 14)}')
            e(f'v_cvt_pk_bf16_f32 {v(TM+12)}, {v(TM+6)}, {v(TM+7)}')
            e(f'v_cvt_pk_bf16_f32 {v(TM+13)}, {v(TM+6)}, {v(TM+7)}')
            for i in range(3): e(f'v_cvt_pk_bf16_f32 {v(TM+8+i)}, {v(TM+2*i)}, {v(TM+2*i+1)}')
            e(f'v_mov_b32 {v(TM+11)}, {v(vTok)}')
            e(f'v_permlane32_swap_b32 {v(TM+12)}, {v(TM+13)}')
            e(f'v_and_b32 {v(vL32)}, 0x1ff, {v(vLin)}')
            e(f'buffer_store_dwordx4 {v(TM+8,4)}, {v(vLin)}, {srd(sWS)}, s{sT1} offen sc1', tag='OX')
            e(f'v_mov_b32 {v(TM+14)}, {v(vLse)}')
            e(f'v_mov_b32 {v(TM+15)}, {v(vTok)}')
            e(f's_mov_b32 exec_hi, 0')
            e(f'buffer_store_dwordx4 {v(TM+12,4)}, {v(vLin)}, {srd(sWS)}, s{sT1} offen offset:1024 sc1', tag='OX')
            e(f's_mov_b64 exec, -1')
        if t == opts.get('rxat', 13) and (not opts.get('noox') or opts.get('keepld')): rx_loads()
        if step in wo_read_at: wo_read(wo_read_at[step])
        sm = softmax(u + 1) if (p == 0 and u < 7) else []
        cuts = [0, 10, 20, 30, len(sm)] if sm else [0]*5
        for k in range(4):
            s_, d2 = k // 2, k % 2
            for x in sm[cuts[k]:cuts[k+1]]: e(x)
            c = '0' if (u == 0 and s_ == 0) else v(O+16*d2, 16)
            e(f'v_mfma_f32_32x32x16_bf16 {v(O+16*d2,16)}, {v(VF+4*k,4)}, {v(S0+16*u+4*s_,4)}, {c}')
        if t == 6:
            e(f'v_add_f32 {v(vL)}, {v(vL)}, {v(vL+1)}')
            xswap(vL, vT[0], 'v_add_f32')
            e(f'ds_write_b32 {v(vMo)}, {v(vL)} offset:1024')
        if t == 7:
            red_write()
            for i in range(8): e(f'v_mov_b32 {v(TM+i)}, {v(O+i)}')
            stamp()
    assert WS_OX % (32 << 14) == 0 and RS % 16384 == 0
    stamp()
    red_write()
    lp = e.newlabel('Lrx'); ld = e.newlabel('Lrxd')
    e(f's_mov_b32 s{sT3}, 0x20000')
    e.label(lp)
    e.wait_vm_all()
    e(f'v_xor_b32 {v(TM)}, {v(RG[0]+3)}, {v(vTok)}')
    e(f'v_xor_b32 {v(TM+1)}, {v(RG[1]+3)}, {v(vTok)}')
    e(f'v_or_b32 {v(TM)}, {v(TM)}, {v(TM+1)}')
    e(f'v_cmp_ne_u32 vcc, 0, {v(TM)}')
    e.nop(4)
    e(f's_cbranch_vccz {ld}')
    if opts.get('noox'): e(f's_branch {ld}')
    e(f's_sub_u32 s{sT3}, s{sT3}, 1')
    e(f's_cmp_eq_u32 s{sT3}, 0')
    e(f's_cbranch_scc1 {ld}')
    if opts.get('ox_pol', ' sc1') != ' sc1': e('buffer_wbl2 sc1')
    e(f's_sleep 8')
    rx_loads()
    e(f's_branch {lp}')
    for r in e.vm: e.vm[r] = []
    e.label(ld)
    e(f's_mov_b32 s{sT3}, 0xffff0000')
    t0, t1 = 38, 39
    e(f'v_sub_f32 {v(t0)}, {v(vLse)}, {v(RG[1]+2)}')
    e(f'v_sub_f32 {v(t1)}, {v(RG[1]+2)}, {v(vLse)}')
    e(f'v_cmp_lt_u32 vcc, 31, v0')
    e(f'v_exp_f32 {v(t0)}, {v(t0)}'); e(f'v_exp_f32 {v(t1)}, {v(t1)}')
    e(f'v_add_f32 {v(t0)}, 1.0, {v(t0)}'); e(f'v_add_f32 {v(t1)}, 1.0, {v(t1)}')
    e(f'v_rcp_f32 {v(t0)}, {v(t0)}'); e(f'v_rcp_f32 {v(t1)}, {v(t1)}')
    e(f'v_cndmask_b32 {v(RG[1])}, {v(RG[1])}, {v(RG[1]+1)}, vcc')
    gsrc = [RG[0], RG[0]+1, RG[0]+2, RG[1]]
    for i in range(4):
        e(f'v_lshlrev_b32 {v(TM+2*i)}, 16, {v(gsrc[i])}'); e(f'v_and_b32 {v(TM+2*i+1)}, s{sT3}, {v(gsrc[i])}')
    e(f'v_mul_f32 {v(t1)}, {v(t1)}, {v(vRl)}')
    for i in range(8): e(f'v_mul_f32 {v(TM+i)}, {v(TM+i)}, {v(t0)}')
    OI = slot_of[TEND-2] * SLOT
    e(f's_add_u32 s{sT1}, s{sW1k}, {OI}')
    e(f'v_add_u32 {v(vT[0])}, s{sT1}, {v(vLin)}')
    e(f's_and_b32 s{sT2}, s{sWave}, 1'); e(f's_lshl_b32 s{sT0}, s{sT2}, 3'); e(f's_lshl_b32 s{sT1}, s{sT2}, 8')
    e(f'v_add_u32 {v(vRw)}, s{sT1}, {v(vOr)}')
    e.wait_lg(0)
    e('s_barrier')
    for k in range(1, 4):
        e(f'ds_read_b128 {v(O+8*k,4)}, {v(vRr)} offset:{(k-1)*SLOT}')
        e(f'ds_read_b128 {v(O+8*k+4,4)}, {v(vRr)} offset:{(k-1)*SLOT + 1024}')
    for k in range(1, 4):
        for i in range(0, 8, 2):
            e(f'v_pk_add_f32 {v(O+i,2)}, {v(O+i,2)}, {v(O+8*k+i,2)}')
    for i in range(8): e(f'v_fma_f32 {v(O+i)}, {v(O+i)}, {v(t1)}, {v(TM+i)}')
    for i in range(4): e(f'v_cvt_pk_bf16_f32 {v(TM+i)}, {v(O+2*i)}, {v(O+2*i+1)}')
    e(f'ds_write_b128 {v(vT[0])}, {v(TM,4)}')
    e.wait_lg(0)
    e('s_barrier')
    lo = lambda k: S0 + 16 * (k // 2) + 4 * (k % 2)
    for ck in range(4):
        for qt in range(2):
            e(f'ds_read_b128 {v(lo(2*ck+qt),4)}, {v(vOr)} offset:{OI + ck*2048 + qt*256}')
    for ck in range(4):
        e(f'ds_read_b128 {v(lo(8+ck),4)}, {v(vRw)} offset:{OI + ck*2048}')
    e(f's_mul_i32 s{sT1}, s2, {PART_BYTES}')
    e(f's_lshr_b32 s{sT3}, s{sWave}, 1'); e(f's_lshl_b32 s{sT3}, s{sT3}, 10'); e(f's_add_u32 s{sT3}, s{sT3}, s{sT0}')
    e(f's_add_u32 s{sT3}, s{sT3}, s{sT1}'); e(f's_add_u32 s{sT3}, s{sT3}, 32768')
    e(f's_lshl_b32 s{sT2}, s{sWave}, 12'); e(f's_add_u32 s{sT1}, s{sT1}, s{sT2}')
    AC = 84
    DD = [120, 124, 64, 68]
    def fin(j):
        D = DD[j]
        for qt in range(2):
            A0 = AC + 8*j + 4*qt
            e(f'v_cvt_pk_bf16_f32 {v(D+2*qt)}, {v(A0)}, {v(A0+1)}')
            e(f'v_cvt_pk_bf16_f32 {v(D+2*qt+1)}, {v(A0+2)}, {v(A0+3)}')
        e(f'buffer_store_dwordx4 {v(D,4)}, {v(vLin)}, {srd(sWS)}, s{sT1} offen offset:{j*1024}{st_pol}', tag='OUT')
    for j in range(4):
        for ck in range(4):
            for qt in range(2):
                A0 = AC + 8*j + 4*qt
                c = '0' if ck == 0 else v(A0, 4)
                e(f'v_mfma_f32_16x16x32_bf16 {v(A0,4)}, {v(WF[ck][j],4)}, {v(lo(2*ck+qt),4)}, {c}')
        c = '0' if j == 0 else v(AC+32, 4)
        e(f'v_mfma_f32_16x16x32_bf16 {v(AC+32,4)}, {v(WF[j][4],4)}, {v(lo(8+j),4)}, {c}')
        if j >= 1: fin(j - 1)
    fin(3)
    e(f'v_cvt_pk_bf16_f32 {v(72)}, {v(AC+32)}, {v(AC+33)}')
    e(f'v_cvt_pk_bf16_f32 {v(73)}, {v(AC+34)}, {v(AC+35)}')
    e(f'buffer_store_dwordx2 {v(72,2)}, {v(vLin)}, {srd(sWS)}, s{sT3} offen{st_pol}', tag='OUT')
    if stamps:
        stamp()
        e.wait_vm_all()
        stamp()
        e(f's_cmp_lg_u32 s{sWave}, 0'); e('s_cbranch_scc1 L_end1')
        e(f's_lshl_b32 s{sT1}, s2, 7'); e(f's_add_u32 s{sT1}, s{sT1}, {hex(WS_STAMP)}')
        e('s_mov_b64 exec, 1')
        e(f'v_mov_b32 {v(vT[2])}, 0')
        for i in range(16):
            if i < nstamp[0]:
                e(f'v_mov_b32 {v(vT[0])}, s{sStamp+2*i}'); e(f'v_mov_b32 {v(vT[1])}, s{sStamp+2*i+1}')
            else:
                e(f'v_mov_b32 {v(vT[0])}, 0'); e(f'v_mov_b32 {v(vT[1])}, 0')
            e(f'buffer_store_dwordx2 {v(vT[0],2)}, {v(vT[2])}, {srd(sWS)}, s{sT1} offen offset:{8*i}')
            e.nop(2)
    e.label('L_end1')
    e('s_endpgm')
    k1_lines = e.lines
    n1 = e.ninst
    k2_lines = gen_k2(k2_pol)

    hdr = open('standalone__sliding_block_cached__sampling.s.ref').read().split('\n')
    hdr = [l for l in hdr if l.startswith(';') and '@launch' not in l and 'Override' not in l and 'grid=ceil' not in l]
    out = hdr + [
        f'; @launch kernel={K1} grid=(256,1,1) block=(512,1,1) lds={LDS_BYTES}',
        f'; @launch kernel={K2} grid=(288,1,1) block=(256,1,1) lds=8192',
        '.amdgcn_target "amdgcn-amd-amdhsa--gfx950"', '.text'] + k1_lines + k2_lines
    def kd(name, nv, ns, acc):
        return ['.section .rodata,"a"', '.p2align 6', f'.amdhsa_kernel {name}',
                f'  .amdhsa_next_free_vgpr {nv}', f'  .amdhsa_next_free_sgpr {ns}', f'  .amdhsa_accum_offset {acc}',
                '  .amdhsa_group_segment_fixed_size 0', '  .amdhsa_kernarg_size 64', '  .amdhsa_user_sgpr_count 2',
                '  .amdhsa_user_sgpr_kernarg_segment_ptr 1', '  .amdhsa_system_sgpr_workgroup_id_x 1', '.end_amdhsa_kernel']
    out += kd(K1, 256, 102, 256) + kd(K2, 56, 32, 56)
    print('K1 instrs', n1, 'QI', QI, 'slots', [slot_of[n] for n in range(TEND)], file=sys.stderr)
    return '\n'.join(out) + '\n'

if __name__ == '__main__':
    E = 'exp/'
    b = dict(dmafirst=True)
    open(E + 'v18.s', 'w').write(gen(dict(b)))
```

```python
import sys, math, struct
from emit import Emitter
from gen6 import f32bits
K1 = 'standalone__sliding_block_cached__sampling_kernel'
WS_FLAG = 0x1800000

SLOT = 16384
NSLOT = 7
SCR = NSLOT * SLOT
MX = SCR + 40960
LS = MX + 1024
TOK = LS + 1024
LDS_BYTES = TOK + 64
RS = 4 * SLOT
WS_EPOCH = 0x1000000
WS_OX = 0x1100000
WS_STAMP = 0x20000000
PART_BYTES = 36864
NW, NK, NV = 18, 16, 16
TK, TV, TEND = NW, NW + NK, NW + NK + NV

def gen(opts):
    stamps = opts.get('stamps', False)
    st_pol = opts.get('st_pol', ' sc1'); k2_pol = opts.get('k2_pol', '')
    wq_pol = opts.get('wq_pol', ''); wo_pol = opts.get('wo_pol', ''); x_pol = opts.get('x_pol', '')
    e = Emitter(roles=('A', 'C'))
    sK, sV, sWQ, sX, sWO, sWS, sDBG = 20, 24, 28, 32, 36, 40, 44
    sWave, sHkv, sB, sSp = 48, 49, 50, 51
    sW2k, sT0, sT1, sT2, sT3 = 52, 53, 54, 55, 56
    sWQb, sWOb, sKc = 57, 58, 59
    sC = 60
    sKs, sG0, sVb, sW1k = 62, 63, 64, 65
    sStamp = 66
    sI4, sHH = 98, 99
    sXc, sXb = 100, 101
    nstamp = [0]
    srd = lambda n: f's[{n}:{n+3}]'
    e.role_cond[frozenset('C')] = (f's_cmp_eq_u32 s{sWave}, 7', 's_cbranch_scc0')
    e.role_cond[frozenset('A')] = (f's_cmp_eq_u32 s{sWave}, 7', 's_cbranch_scc1')
    def stamp():
        if stamps:
            i = nstamp[0]; nstamp[0] += 1
            assert i < 16
            e.wait_lg(0)
            e(f's_memrealtime s[{sStamp+2*i}:{sStamp+2*i+1}]')
            e.wait_lg(0)
    def forget(tag):
        e.vm['C'] = [x for x in e.vm['C'] if x[0] != tag]
    v = lambda n, c=1: f'v{n}' if c == 1 else f'v[{n}:{n+c-1}]'
    vLin, vLc, vLr = 1, 2, 3
    vKd = [4, 5]; vVd = 6; vVr = [7, 8]; vKr = list(range(9, 17))
    vWr = 17; vWx = 18; vMxA = 19; vMo = 20; vOr = 21
    vL = 22
    vNm = 24; vM = 25; vRw = 26; vRr = 27
    vT = [28, 29, 30, 31]
    S0 = 128; QF = 96; KF = 64; W0R = 44
    vWd = [128, 129]; vXd = 130; vQr = [132, 133]; vXb = [134, 135, 136, 137]; vXa = [138, 139, 140, 141]
    QA = 160; QB = 176; QACC = 224
    TK0 = 32

    e.raw(f'.globl {K1}'); e.raw('.p2align 8'); e.raw(f'.type {K1},@function'); e.label(K1)
    e('s_cmp_ge_u32 s2, 256')
    e('s_cbranch_scc1 L_end1')
    e('s_load_dwordx16 s[4:19], s[0:1], 0')
    if stamps:
        e(f's_memrealtime s[{sStamp}:{sStamp+1}]'); nstamp[0] = 1
    e(f'v_lshrrev_b32 {v(vT[0])}, 6, v0')
    e(f'v_and_b32 v0, 63, v0')
    e(f'v_readfirstlane_b32 s{sWave}, {v(vT[0])}')
    e(f's_and_b32 s{sHkv}, s2, 7'); e(f's_lshl_b32 s{sHkv}, s{sHkv}, 1')
    e(f's_bfe_u32 s{sT0}, s2, 0x10003'); e(f's_or_b32 s{sHkv}, s{sHkv}, s{sT0}')
    e(f's_lshr_b32 s{sB}, s2, 5')
    e(f'v_lshrrev_b32 {v(vT[0])}, 5, v0')
    e(f'v_and_b32 {v(vT[1])}, 31, v0')
    e(f'v_lshlrev_b32 {v(vT[2])}, 2, {v(vT[0])}')
    e(f'v_xor_b32 {v(vT[1])}, {v(vT[1])}, {v(vT[2])}')
    e(f'v_lshlrev_b32 {v(vT[1])}, 4, {v(vT[1])}')
    e(f'v_lshl_add_u32 {v(vWd[0])}, {v(vT[0])}, 13, {v(vT[1])}')
    e(f'v_xor_b32 {v(vWd[1])}, 0x80, {v(vWd[0])}')
    e(f'v_add_u32 {v(vWd[1])}, {16384-1024}, {v(vWd[1])}')
    e(f's_lshl_b32 s{sW2k}, s{sWave}, 11')
    e(f's_lshl_b32 s{sWQb}, s{sWave}, 15'); e(f's_lshl_b32 s{sT1}, s{sHkv}, 9'); e(f's_add_u32 s{sWQb}, s{sWQb}, s{sT1}')
    e(f's_bfe_u32 s{sKs}, s2, 0x20003'); e(f's_lshl1_add_u32 s{sKs}, s{sKs}, s{sB}')
    e(f's_cmp_ge_u32 s{sKs}, 9'); e(f's_cselect_b32 s{sT1}, 9, 0'); e(f's_sub_u32 s{sKs}, s{sKs}, s{sT1}')
    if not opts.get('rot', True): e(f's_mov_b32 s{sKs}, 0')
    e(f's_mov_b32 s{sKc}, s{sKs}')
    e(f's_and_b32 s{sI4}, s{sWave}, 3'); e(f's_lshr_b32 s{sHH}, s{sWave}, 2')
    e(f'v_lshrrev_b32 {v(vT[0])}, 3, v0')
    e(f'v_lshrrev_b32 {v(vLr)}, 4, v0')
    e(f's_and_b32 s{sT1}, s{sWave}, 1'); e(f's_lshl_b32 s{sT1}, s{sT1}, 2')
    e(f'v_or_b32 {v(vT[1])}, s{sT1}, {v(vLr)}')
    e(f'v_and_b32 {v(vT[2])}, 7, v0')
    e(f'v_xor_b32 {v(vT[1])}, {v(vT[1])}, {v(vT[2])}')
    e(f's_movk_i32 s{sT1}, 1152')
    e(f'v_mul_lo_u32 {v(vT[0])}, {v(vT[0])}, s{sT1}')
    e(f'v_lshl_add_u32 {v(vXd)}, {v(vT[1])}, 4, {v(vT[0])}')
    e(f's_mul_i32 s{sXb}, s{sB}, 36864'); e(f's_mul_i32 s{sT0}, s{sI4}, 9216'); e(f's_add_u32 s{sXb}, s{sXb}, s{sT0}')
    e(f's_add_u32 s{sXc}, s{sKs}, s{sHH}'); e(f's_cmp_eq_u32 s{sXc}, 9'); e(f's_cselect_b32 s{sXc}, 0, s{sXc}')
    e(f's_lshl_b32 s{sT2}, s{sI4}, 10'); e(f's_add_u32 s{sT2}, s{sT2}, {SCR}')
    e(f's_lshl_b32 s{sW1k}, s{sWave}, 10')
    e.wait_lg(0)
    e(f's_mov_b32 s{sX}, s4'); e(f's_mov_b32 s{sX+1}, s5'); e(f's_mov_b32 s{sX+2}, {256*1152}'); e(f's_mov_b32 s{sX+3}, 0x20000')
    e(f's_mov_b32 s{sWQ}, s10'); e(f's_mov_b32 s{sWQ+1}, s11'); e(f's_mov_b32 s{sWQ+2}, {576*8192}'); e(f's_mov_b32 s{sWQ+3}, 0x20000')

    slot_of = {}
    free = list(range(NSLOT))
    nxt = [0]
    hooks = []
    def x_dma(k):
        e(f's_lshl_b32 s{sT1}, s{sXc}, 12'); e(f's_add_u32 m0, s{sT1}, s{sT2}')
        e(f's_lshl_b32 s{sT1}, s{sXc}, 7'); e(f's_add_u32 s{sT1}, s{sT1}, s{sXb}')
        e(f'buffer_load_dwordx4 {v(vXd)}, {srd(sX)}, s{sT1} offen{opts.get("w0_pol", x_pol) if k == 0 else x_pol} lds', tag=f'X{k}')
        if k < 4:
            e(f's_add_u32 s{sXc}, s{sXc}, 2'); e(f's_cmp_ge_u32 s{sXc}, 9'); e(f's_cselect_b32 s{sT1}, 9, 0'); e(f's_sub_u32 s{sXc}, s{sXc}, s{sT1}')
    def dma_tile(n):
        slot = slot_of[n]
        if n < TK and n % 4 == 0: x_dma(n // 4)
        e(f's_add_u32 m0, s{sW2k}, {slot*SLOT}')
        if n < TK:
            if n % 2 == 0:
                e(f's_lshl_b32 s{sG0}, s{sKs}, 19'); e(f's_add_u32 s{sG0}, s{sG0}, s{sWQb}')
            else:
                e(f's_add_u32 s{sG0}, s{sG0}, {32*8192}')
            for i in range(2):
                for h in hooks: h()
                e(f'buffer_load_dwordx4 {v(vWd[i])}, {srd(sWQ)}, s{sG0} offen offset:{i*1024}{opts.get("w0_pol", wq_pol) if n < 2 else wq_pol} lds', tag=f'T{n}')
            if n % 2 == 1 and n < TK - 1:
                e(f's_add_u32 s{sKs}, s{sKs}, 1'); e(f's_cmp_eq_u32 s{sKs}, 9'); e(f's_cselect_b32 s{sKs}, 0, s{sKs}')
        elif opts.get('nokv'):
            pass
        elif n < TV:
            e(f's_add_u32 s{sT1}, s{sW2k}, {(n-TK)*SLOT}')
            for i in range(2):
                for h in hooks: h()
                e(f'buffer_load_dwordx4 {v(vKd[i])}, {srd(sK)}, s{sT1} offen offset:{i*1024} nt lds', tag=f'T{n}')
        else:
            p, u = (n - TV) // 8, (n - TV) % 8
            if n == TV + 8: e(f's_xor_b32 s{sVb}, s{sVb}, 0x80')
            e(f's_add_u32 s{sT1}, s{sVb}, {u*32768}')
            e(f'buffer_load_dwordx4 {v(vVd)}, {srd(sV)}, s{sT1} offen nt lds', tag=f'T{n}')
            e(f's_add_u32 s{sT1}, s{sT1}, 1024')
            e(f'buffer_load_dwordx4 {v(vVd)}, {srd(sV)}, s{sT1} offen offset:1024 nt lds', tag=f'T{n}')
    def issue(maxn):
        k = 0
        while nxt[0] < TEND and k < maxn:
            n = nxt[0]
            if n in slot_of: nxt[0] += 1; continue
            cand = [s for s in free if n < TV or s < 4]
            if not cand: break
            s = cand[0] if n >= TV else max(cand)
            free.remove(s); slot_of[n] = s; nxt[0] += 1; k += 1
            dma_tile(n)
    def release(ns):
        for n in ns: free.append(slot_of[n])
        free.sort()

    def mid_setup():
        e(f's_bfe_u32 s{sSp}, s2, 0x10004')
        e(f's_lshl_b32 s{sT0}, s{sB}, 4'); e(f's_add_u32 s{sT0}, s{sT0}, s{sHkv}'); e(f's_lshl_b32 s{sT0}, s{sT0}, 21')
        e(f's_lshl_b32 s{sT1}, s{sSp}, 18'); e(f's_add_u32 s{sT0}, s{sT0}, s{sT1}'); e(f's_add_u32 s{sT0}, s{sT0}, {6144*256}')
        e(f's_add_u32 s{sK}, s6, s{sT0}'); e(f's_addc_u32 s{sK+1}, s7, 0'); e(f's_mov_b32 s{sK+2}, 0x40000'); e(f's_mov_b32 s{sK+3}, 0x20000')
        e(f's_add_u32 s{sV}, s8, s{sT0}'); e(f's_addc_u32 s{sV+1}, s9, 0'); e(f's_mov_b32 s{sV+2}, 0x40000'); e(f's_mov_b32 s{sV+3}, 0x20000')
        e(f's_and_b32 s{sT1}, s{sWave}, 1'); e(f's_lshl_b32 s{sT1}, s{sT1}, 3')
        e(f'v_xor_b32 {v(vT[0])}, {v(vLr)}, {v(vLc)}')
        e(f'v_xor_b32 {v(vT[0])}, s{sT1}, {v(vT[0])}')
        e(f'v_lshlrev_b32 {v(vT[0])}, 4, {v(vT[0])}')
        e(f'v_lshl_add_u32 {v(vKd[0])}, {v(vLr)}, 8, {v(vT[0])}')
        e(f'v_xor_b32 {v(vKd[1])}, 64, {v(vKd[0])}')
    issue(2)
    e(f'v_and_b32 {v(vLc)}, 15, v0')
    mid_setup()
    def k_early(j):
        n = TK + j
        slot_of[n] = min(free); free.remove(slot_of[n]); dma_tile(n)
    for j in range(opts.get('kearly', 0)): k_early(j)
    if opts.get('tlb'):
        e(f'v_mov_b32 {v(142)}, 0')
        e(f'buffer_load_dword {v(143)}, {v(142)}, {srd(sK)}, s{sW2k} offen nt', tag='TL')
        e(f'buffer_load_dword {v(144)}, {v(142)}, {srd(sV)}, s{sW2k} offen nt', tag='TL')
    issue(opts.get('w1', 1))

    e(f'v_lshlrev_b32 {v(vLin)}, 4, v0')
    e(f'v_lshrrev_b32 {v(vT[0])}, 2, {v(vLc)}')
    e(f'v_xor_b32 {v(vT[1])}, s{sWave}, {v(vT[0])}')
    e(f'v_lshlrev_b32 {v(vT[1])}, 6, {v(vT[1])}')
    e(f'v_lshl_add_u32 {v(vT[1])}, {v(vT[0])}, 9, {v(vT[1])}')
    e(f'v_lshrrev_b32 {v(vT[2])}, 5, v0')
    e(f'v_lshl_add_u32 {v(vT[1])}, {v(vT[2])}, 12, {v(vT[1])}')
    e(f'v_and_b32 {v(vT[3])}, 1, {v(vLr)}')
    e(f'v_lshl_add_u32 {v(vT[1])}, {v(vT[3])}, 5, {v(vT[1])}')
    e(f'v_and_b32 {v(vT[3])}, 3, {v(vLc)}')
    e(f'v_lshl_add_u32 {v(vQr[0])}, {v(vT[3])}, 3, {v(vT[1])}')
    e(f'v_add_u32 {v(vQr[1])}, 0x10000, {v(vQr[0])}')
    e(f'v_and_b32 {v(vT[0])}, 31, v0')
    e(f'v_bfe_u32 {v(vT[1])}, v0, 1, 3')
    e(f'v_xor_b32 {v(vT[1])}, {v(vT[1])}, {v(vT[2])}')
    e(f'v_lshlrev_b32 {v(vT[1])}, 4, {v(vT[1])}')
    e(f'v_lshl_add_u32 {v(vXb[0])}, {v(vT[0])}, 7, {v(vT[1])}')
    for k in range(1, 4): e(f'v_xor_b32 {v(vXb[k])}, {32*k}, {v(vXb[0])}')

    def setup_k():
        e(f'v_lshrrev_b32 {v(vT[0])}, 5, v0')
        e(f'v_xor_b32 {v(vT[0])}, {v(vT[0])}, {v(vLc)}')
        e(f'v_lshlrev_b32 {v(vT[0])}, 4, {v(vT[0])}')
        e(f'v_and_b32 {v(vT[1])}, 31, v0')
        e(f'v_lshl_add_u32 {v(vT[0])}, {v(vT[1])}, 8, {v(vT[0])}')
        e(f's_and_b32 s{sT1}, s{sWave}, 1'); e(f's_lshl_b32 s{sT1}, s{sT1}, 13')
        e(f'v_add_u32 {v(vKr[0])}, s{sT1}, {v(vT[0])}')
        for j in range(1, 8): e(f'v_xor_b32 {v(vKr[j])}, {32*j}, {v(vKr[0])}')
    def setup_w():
        e(f's_mov_b32 s{sWO}, s12'); e(f's_mov_b32 s{sWO+1}, s13'); e(f's_mov_b32 s{sWO+2}, {4096*1152}'); e(f's_mov_b32 s{sWO+3}, 0x20000')
        e(f's_mov_b32 s{sWS}, s18'); e(f's_mov_b32 s{sWS+1}, s19'); e(f's_mov_b32 s{sWS+2}, 0x30000000'); e(f's_mov_b32 s{sWS+3}, 0x20000')
        e(f's_mov_b32 s{sDBG}, s16'); e(f's_mov_b32 s{sDBG+1}, s17'); e(f's_mov_b32 s{sDBG+2}, 256'); e(f's_mov_b32 s{sDBG+3}, 0x20000')
        e(f's_lshl_b32 s{sT1}, s{sHkv}, 2'); e(f's_add_u32 s{sT1}, s{sT1}, s{sSp}')
        e(f's_mul_i32 s{sWOb}, s{sT1}, {64*1152}'); e(f's_add_u32 s{sWOb}, s{sWOb}, s{sW1k}')
        e(f'v_mov_b32 {v(TK0)}, {hex(WS_EPOCH)}'); e(f'v_mov_b32 {v(TK0+2)}, 0')
    def setup_v():
        e(f's_mov_b32 s{sC}, {hex(f32bits(math.log2(math.e) / math.sqrt(128.0)))}'); e(f's_mov_b32 s{sC+1}, s{sC}')
        e(f's_xor_b32 s{sT1}, s{sSp}, 1'); e(f's_lshl_b32 s{sT1}, s{sT1}, 7')
        e(f's_lshl_b32 s{sVb}, s{sWave}, 12'); e(f's_add_u32 s{sVb}, s{sVb}, s{sT1}')
        e(f'v_lshrrev_b32 {v(vT[0])}, 3, v0')
        e(f'v_and_b32 {v(vT[1])}, 1, {v(vLr)}')
        e(f'v_lshlrev_b32 {v(vT[1])}, 2, {v(vT[1])}')
        e(f'v_and_b32 {v(vT[2])}, 7, v0')
        e(f'v_xor_b32 {v(vT[1])}, {v(vT[1])}, {v(vT[2])}')
        e(f'v_lshlrev_b32 {v(vT[1])}, 4, {v(vT[1])}')
        e(f'v_lshl_add_u32 {v(vVd)}, {v(vT[0])}, 8, {v(vT[1])}')
        e(f'v_lshrrev_b32 {v(vT[0])}, 5, v0')
        e(f'v_lshrrev_b32 {v(vT[1])}, 2, {v(vLc)}')
        e(f'v_lshl_add_u32 {v(vT[0])}, {v(vT[0])}, 2, {v(vT[1])}')
        e(f'v_and_b32 {v(vT[1])}, 2, {v(vT[1])}')
        e(f'v_and_b32 {v(vT[2])}, 1, {v(vLr)}')
        e(f'v_or_b32 {v(vT[1])}, {v(vT[1])}, {v(vT[2])}')
        e(f'v_xor_b32 {v(vT[1])}, s{sI4}, {v(vT[1])}')
        e(f'v_lshlrev_b32 {v(vT[1])}, 5, {v(vT[1])}')
        e(f'v_lshl_add_u32 {v(vT[1])}, {v(vT[0])}, 7, {v(vT[1])}')
        e(f'v_and_b32 {v(vT[2])}, 3, {v(vLc)}')
        e(f'v_lshl_add_u32 {v(vT[1])}, {v(vT[2])}, 3, {v(vT[1])}')
        e(f's_lshl_b32 s{sT1}, s{sI4}, 12')
        e(f'v_add_u32 {v(vVr[0])}, s{sT1}, {v(vT[1])}')
        e(f'v_xor_b32 {v(vVr[1])}, 64, {v(vVr[0])}')
        e(f'v_lshrrev_b32 {v(vT[0])}, 5, v0')
        e(f'v_lshlrev_b32 {v(vT[0])}, 3, {v(vT[0])}')
        e(f'v_lshrrev_b32 {v(vT[1])}, 2, v0')
        e(f'v_add_u32 {v(vT[0])}, {v(vT[0])}, {v(vT[1])}')
        e(f's_movk_i32 s{sT1}, 1152')
        e(f'v_mul_lo_u32 {v(vT[0])}, {v(vT[0])}, s{sT1}')
        e(f'v_lshl_add_u32 {v(vT[0])}, {v(vT[2])}, 3, {v(vT[0])}')
        e(f's_lshl_b32 s{sT1}, s{sWave}, 7'); e(f's_add_u32 s{sT1}, s{sT1}, {SCR}')
        e(f'v_add_u32 {v(vWr)}, s{sT1}, {v(vT[0])}')
        e(f's_lshr_b32 s{sT1}, s{sWave}, 1'); e(f's_lshl_b32 s{sT1}, s{sT1}, 5'); e(f's_add_u32 s{sT1}, s{sT1}, {SCR + 1024}')
        e(f'v_add_u32 {v(vWx)}, s{sT1}, {v(vT[0])}')
        e(f'v_and_b32 {v(vT[0])}, 31, v0')
        e(f's_lshl_b32 s{sT1}, s{sHH}, 9'); e(f's_add_u32 s{sT1}, s{sT1}, {MX}')
        e(f'v_lshlrev_b32 {v(vT[0])}, 4, {v(vT[0])}')
        e(f'v_add_u32 {v(vMxA)}, s{sT1}, {v(vT[0])}')
        e(f's_lshl_b32 s{sT1}, s{sI4}, 2')
        e(f'v_add_u32 {v(vMo)}, s{sT1}, {v(vMxA)}')
        e(f's_add_u32 s{sT1}, s{sW2k}, {RS}')
        e(f'v_add_u32 {v(vRr)}, s{sT1}, {v(vLin)}')
        e(f'v_lshlrev_b32 {v(vT[1])}, 9, {v(vLr)}')
        e(f'v_lshl_add_u32 {v(vOr)}, {v(vLc)}, 4, {v(vT[1])}')

    QI = None
    def q_mf1(q, k):
        o = 32 * (q % 2)
        c = '0' if (q == 0 and k == 0) else v(QACC, 16)
        e(f'v_mfma_f32_32x32x16_bf16 {v(QACC,16)}, {v(QA+o+4*k,4)}, {v(QB+o+4*k,4)}, {c}')
    def q_mf(q):
        o = 32 * (q % 2)
        for k in range(4):
            c = '0' if (q == 0 and k == 0) else v(QACC, 16)
            e(f'v_mfma_f32_32x32x16_bf16 {v(QACC,16)}, {v(QA+o+4*k,4)}, {v(QB+o+4*k,4)}, {c}')
    for q in range(9):
        e(f's_lshl_b32 s{sT1}, s{sKc}, 12'); e(f's_add_u32 s{sT1}, s{sT1}, {SCR}')
        for k in range(4): e(f'v_add_u32 {v(vXa[k])}, s{sT1}, {v(vXb[k])}')
        if q < 8:
            e(f's_add_u32 s{sKc}, s{sKc}, 1'); e(f's_cmp_eq_u32 s{sKc}, 9'); e(f's_cselect_b32 s{sKc}, 0, s{sKc}')
        e.wait_vm(f'T{2*q}', f'T{2*q+1}')
        if q == 0: issue(opts.get('w2', 4))
        e.wait_lg(0)
        e('s_barrier')
        if q in opts.get('qst', (0,)): stamp()
        o = 32 * (q % 2)
        if q >= 1:
            release([2*q-2, 2*q-1])
            if q == 8: QI = free.pop(0) * SLOT
            if opts.get('dmafirst') and nxt[0] < TK: issue(min(2, TK - nxt[0]))
        for k in range(4):
            par, s_ = k // 2, k % 2
            off = slot_of[2*q+par] * SLOT + s_ * 8192
            r = vQr[off // 65536]; off %= 65536
            e(f'ds_read_b64_tr_b16 {v(QA+o+4*k,2)}, {v(r)} offset:{off}')
            e(f'ds_read_b64_tr_b16 {v(QA+o+4*k+2,2)}, {v(r)} offset:{off + 2048}')
            e(f'ds_read_b128 {v(QB+o+4*k,4)}, {v(vXa[k])}')
        if q >= 1:
            if opts.get('ilv'):
                pend = [k for k in range(4)]
                def hook():
                    if pend: q_mf1(q - 1, pend.pop(0))
                hooks.append(hook)
                if nxt[0] < TK: issue(min(2, TK - nxt[0]))
                if nxt[0] >= TK and q < 8: issue(opts.get('kq', 2))
                hooks.clear()
                while pend: q_mf1(q - 1, pend.pop(0))
            else:
                if not opts.get('dmafirst') and nxt[0] < TK: issue(min(2, TK - nxt[0]))
                if opts.get('kfirst') and nxt[0] >= TK: issue(2)
                q_mf(q - 1)
            if nxt[0] >= TK and q < 8: issue(opts.get('kq', 2))
        if q == 7: setup_k()
    q_mf(8)
    e(f'v_and_b32 {v(vT[0])}, 31, v0')
    e(f'v_lshrrev_b32 {v(vT[1])}, 5, v0')
    e(f'v_lshlrev_b32 {v(vT[0])}, 4, {v(vT[0])}')
    e(f'v_lshl_add_u32 {v(vT[0])}, {v(vT[1])}, 3, {v(vT[0])}')
    e(f's_add_u32 s{sT1}, s{sW2k}, {QI}')
    e(f'v_add_u32 {v(vT[0])}, s{sT1}, {v(vT[0])}')
    e(f's_lshl_b32 s{sT1}, s{sHH}, 13'); e(f's_add_u32 s{sT1}, s{sT1}, {QI}')
    e(f'v_add_u32 {v(vT[2])}, s{sT1}, {v(vLin)}')
    for a_ in range(4):
        e(f'v_cvt_pk_bf16_f32 {v(QA+2*a_)}, {v(QACC+4*a_)}, {v(QACC+4*a_+1)}')
        e(f'v_cvt_pk_bf16_f32 {v(QA+2*a_+1)}, {v(QACC+4*a_+2)}, {v(QACC+4*a_+3)}')
        e(f'ds_write_b64 {v(vT[0])}, {v(QA+2*a_,2)} offset:{a_*512}')
    issue(2)
    stamp()

    def wo_dma(ck, ks):
        if opts.get('nowo'): return
        hh, jb = ck // 2, ck % 2
        for k in ks:
            e(f's_add_u32 m0, s{sW1k}, {SCR + k*8192}')
            e(f's_add_u32 s{sT1}, s{sWOb}, {(128*hh + 32*jb)*1152 + k*8192}')
            e(f'buffer_load_dwordx4 {v(vLin)}, {srd(sWO)}, s{sT1} offen{wo_pol} lds', tag=f'W{ck}')
    def up(k): return S0 + 16 * (k // 2) + 8 + 4 * (k % 2)
    WF = {0: [W0R + 4*j for j in range(5)]}
    for ck in range(1, 4): WF[ck] = [up(5*(ck-1) + j) for j in range(5)]
    def wo_read(ck):
        for j in range(4):
            for hf in range(2):
                e(f'ds_read_b64_tr_b16 {v(WF[ck][j]+2*hf,2)}, {v(vWr)} offset:{hf*9216 + 32*j}')
        for hf in range(2):
            e(f'ds_read_b64_tr_b16 {v(WF[ck][4]+2*hf,2)}, {v(vWx)} offset:{hf*9216}')
    wsched = opts.get('wsched', {0: ({0: (0, 1), 1: (2, 3), 2: (4,)}, 4),
                                 1: ({5: (0, 1), 6: (2, 3), 7: (4,)}, 11),
                                 2: ({12: (0, 1), 13: (2, 3), 14: (4,)}, 17),
                                 3: ({18: (0, 1), 19: (2, 3), 20: (4,)}, 23)})
    wo_dma_at = {}; wo_read_at = {}
    for ck, (d, rd) in wsched.items():
        for st, ks in d.items(): wo_dma_at[st] = (ck, ks)
        wo_read_at[rd] = ck

    def head(step, tiles):
        tags = [f'T{n}' for n in tiles]
        if step in wo_read_at: tags.append(f'W{wo_read_at[step]}')
        if tags: e.wait_vm(*tags)
        e.wait_lg(0)
        e('s_barrier')
    def tail(step):
        if step in wo_dma_at: wo_dma(*wo_dma_at[step])
        need = TK + ((2*step + 4) if step < 8 else (16 + step - 8 + 1))
        la = opts.get('la', 2)
        issue(max(0, min(3, need + la - nxt[0])))
    def xswap(reg, tmp, op):
        e(f'v_mov_b32 {v(tmp)}, {v(reg)}')
        e(f'v_permlane32_swap_b32 {v(reg)}, {v(tmp)}')
        e(f'{op} {v(reg)}, {v(reg)}, {v(tmp)}')

    kcur = [(0, 0)]
    for u in range(8):
        ta, tb = TK + 2*u, TK + 2*u + 1
        sa, sb = slot_of[ta] * SLOT, slot_of[tb] * SLOT
        pa, pb = kcur[0]
        da, db_ = (sa - pa) & 0xffffffff, (sb - pb) & 0xffffffff
        e(f's_cmp_lt_u32 s{sI4}, 2')
        e(f's_mov_b32 s{sT0}, {hex(db_)}')
        e(f's_cmov_b32 s{sT0}, {hex(da)}')
        for j in range(8): e(f'v_add_u32 {v(vKr[j])}, s{sT0}, {v(vKr[j])}')
        kcur[0] = (sa, sb)
        head(u, [ta, tb])
        if u in opts.get('kst', ()): stamp()
        if u == 0:
            release([TK-2, TK-1])
            for j in range(8):
                e(f'ds_read_b128 {v(QF+4*j,4)}, {v(vT[2])} offset:{j*1024}')
        else:
            release([ta-2, tb-2])
            if u == 1: free.append(QI // SLOT); free.sort()
        for j in range(8):
            e(f'ds_read_b128 {v(KF+4*j,4)}, {v(vKr[j])}')
        if u == 0: setup_w()
        tail(u)
        if u in wo_read_at: wo_read(wo_read_at[u])
        if u >= 1:
            Sp = S0 + 16 * (u - 1)
            if u == 1: e(f'v_max3_f32 {v(vM)}, {v(Sp)}, {v(Sp+1)}, {v(Sp+2)}'); st = 3
            else: st = 0
            for i in range(st, 15, 2): e(f'v_max3_f32 {v(vM)}, {v(vM)}, {v(Sp+i)}, {v(Sp+i+1)}')
            if u == 1: e(f'v_max_f32 {v(vM)}, {v(vM)}, {v(Sp+15)}')
        Sb = S0 + 16 * u
        for j in range(8):
            c = '0' if j == 0 else v(Sb, 16)
            e(f'v_mfma_f32_32x32x16_bf16 {v(Sb,16)}, {v(KF+4*j,4)}, {v(QF+4*j,4)}, {c}')
        if u == 0:
            with e.only('C'):
                lw = e.newlabel('Llead')
                saved = list(e.vm['C'])
                e(f's_cmp_lg_u32 s2, 0')
                e(f's_cbranch_scc1 {lw}')
                e(f's_mov_b64 exec, 1')
                e(f'buffer_load_dword {v(TK0+1)}, {v(TK0)}, {srd(sWS)}, 0 offen sc1', tag='EP')
                e.wait_vm_all()
                e(f'v_add_u32 {v(TK0+1)}, 1, {v(TK0+1)}')
                e(f'v_or_b32 {v(TK0+1)}, 0x80000000, {v(TK0+1)}')
                e(f'buffer_store_dword {v(TK0+1)}, {v(TK0+2)}, {srd(sDBG)}, 0 offen sc1', tag='EPS')
                e(f'buffer_store_dword {v(TK0+1)}, {v(TK0)}, {srd(sWS)}, 0 offen sc1', tag='EPS')
                e(f's_mov_b64 exec, -1')
                e.label(lw)
                e.vm['C'] = saved
        if u == 1: setup_v()
        if u == 6:
            e(f'buffer_load_dword {v(TK0+1)}, {v(TK0+2)}, {srd(sDBG)}, 0 offen', tag='TKL')
    Sp = S0 + 16 * 7
    for i in range(0, 16, 2): e(f'v_max3_f32 {v(vM)}, {v(vM)}, {v(Sp+i)}, {v(Sp+i+1)}')
    xswap(vM, vT[0], 'v_max_f32')
    e(f'ds_write_b32 {v(vMo)}, {v(vM)}')
    stamp()

    def softmax(u):
        Sb = S0 + 16 * u
        g = [f'v_pk_fma_f32 {v(Sb+i,2)}, {v(Sb+i,2)}, s[{sC}:{sC+1}], {v(vNm,2)} op_sel_hi:[1,0,0]' for i in range(0, 16, 2)]
        g += [f'v_exp_f32 {v(Sb+i)}, {v(Sb+i)}' for i in range(16)]
        if u == 0:
            g += [f'v_pk_add_f32 {v(vL,2)}, {v(Sb,2)}, {v(Sb+2,2)}'] + [f'v_pk_add_f32 {v(vL,2)}, {v(vL,2)}, {v(Sb+i,2)}' for i in range(4, 16, 2)]
        else:
            g += [f'v_pk_add_f32 {v(vL,2)}, {v(vL,2)}, {v(Sb+i,2)}' for i in range(0, 16, 2)]
        g += [f'v_cvt_pk_bf16_f32 {v(Sb+i)}, {v(Sb+2*i)}, {v(Sb+2*i+1)}' for i in range(8)]
        return g

    head(8, [])
    release([TV-2, TV-1])
    e(f'ds_read_b128 {v(vT[0],4)}, {v(vMxA)}')
    tail(8)
    e(f'v_max3_f32 {v(vM)}, {v(vT[0])}, {v(vT[1])}, {v(vT[2])}')
    e(f'v_max_f32 {v(vM)}, {v(vM)}, {v(vT[3])}')
    e(f'v_mul_f32 {v(vNm)}, s{sC}, {v(vM)}')
    e(f'v_sub_f32 {v(vNm)}, 0, {v(vNm)}')
    for x in softmax(0): e(x)

    O = 96
    VF = 64
    TM = 80
    vTok = TK0 + 1
    vLse, vRl = 36, 37
    RG = [40, up(15)]
    sRX = sKs
    sOUT = sWQ
    vOa, vFa, vBo, vFw, vFl = 10, 11, 12, 13, 14
    FA = RS
    def setup_out():
        e(f's_mov_b32 s{sOUT}, s14'); e(f's_mov_b32 s{sOUT+1}, s15'); e(f's_mov_b32 s{sOUT+2}, {256*1152}'); e(f's_mov_b32 s{sOUT+3}, 0x20000')
        a, b_, c_, d_ = 15, 16, vT[0], vT[1]
        e(f's_lshl_b32 s{sT1}, s{sWave}, 6')
        e(f'v_add_u32 {v(a)}, s{sT1}, v0')
        e(f'v_and_b32 {v(b_)}, 0xff, {v(a)}')
        e(f'v_lshrrev_b32 {v(c_)}, 2, {v(b_)}')
        e(f'v_and_b32 {v(d_)}, 3, {v(b_)}')
        e(f'v_lshlrev_b32 {v(d_)}, 8, {v(d_)}')
        e(f'v_lshl_add_u32 {v(d_)}, {v(c_)}, 3, {v(d_)}')
        e(f'v_add_u32 {v(d_)}, 0x800, {v(d_)}')
        e(f'v_lshlrev_b32 {v(vFa)}, 3, {v(b_)}')
        e(f'v_cmp_lt_u32 vcc, 0xff, {v(a)}')
        e(f'v_cndmask_b32 {v(vFa)}, {v(vFa)}, {v(d_)}, vcc')
        e(f'v_add_u32 {v(vFa)}, {hex(FA)}, {v(vFa)}')
        e(f'v_add_u32 {v(c_)}, 0x100, {v(c_)}')
        e(f'v_cndmask_b32 {v(b_)}, {v(b_)}, {v(c_)}, vcc')
        e(f's_and_b32 s{sT1}, s2, 31'); e(f's_mul_i32 s{sT1}, s{sT1}, 288')
        e(f'v_add_u32 {v(b_)}, s{sT1}, {v(b_)}')
        e(f'v_bfe_u32 {v(c_)}, {v(b_)}, 1, 6')
        e(f'v_lshlrev_b32 {v(c_)}, 2, {v(c_)}')
        e(f'v_bfe_u32 {v(d_)}, {v(b_)}, 7, 1')
        e(f'v_lshl_or_b32 {v(c_)}, {v(d_)}, 1, {v(c_)}')
        e(f'v_and_b32 {v(d_)}, 0xff01, {v(b_)}')
        e(f'v_or_b32 {v(c_)}, {v(c_)}, {v(d_)}')
        e(f'v_cmp_lt_u32 vcc, 0x1fff, {v(b_)}')
        e(f'v_cndmask_b32 {v(b_)}, {v(b_)}, {v(c_)}, vcc')
        e(f'v_bfe_u32 {v(c_)}, {v(b_)}, 2, 4')
        e(f'v_bfe_u32 {v(d_)}, {v(b_)}, 1, 1')
        e(f'v_lshl_add_u32 {v(c_)}, {v(d_)}, 4, {v(c_)}')
        e(f'v_mul_u32_u24 {v(c_)}, 1152, {v(c_)}')
        e(f'v_lshrrev_b32 {v(d_)}, 6, {v(b_)}')
        e(f'v_lshl_add_u32 {v(c_)}, {v(d_)}, 3, {v(c_)}')
        e(f'v_and_b32 {v(d_)}, 1, {v(b_)}')
        e(f'v_lshl_add_u32 {v(c_)}, {v(d_)}, 2, {v(c_)}')
        e(f's_mul_i32 s{sT1}, s{sB}, 36864')
        e(f'v_add_u32 {v(c_)}, s{sT1}, {v(c_)}')
        e(f'v_and_b32 {v(d_)}, 0x103, {v(a)}')
        e(f'v_cmp_lt_u32 vcc, 0x100, {v(d_)}')
        e(f'v_mov_b32 {v(d_)}, 0x7fffffff')
        e(f'v_cndmask_b32 {v(vOa)}, {v(c_)}, {v(d_)}, vcc')
        e(f'v_bfe_u32 {v(c_)}, v0, 3, 2')
        e(f'v_mul_u32_u24 {v(c_)}, {PART_BYTES}, {v(c_)}')
        e(f'v_and_b32 {v(d_)}, 7, v0')
        e(f'v_lshl_add_u32 {v(c_)}, {v(d_)}, 4, {v(c_)}')
        e(f'v_add_u32 {v(vBo)}, 0x400, {v(c_)}')
        e(f'v_and_b32 {v(c_)}, 31, v0')
        e(f'v_lshlrev_b32 {v(vFw)}, 7, {v(c_)}')
        e(f'v_and_b32 {v(c_)}, 3, v0')
        e(f'v_lshlrev_b32 {v(vFl)}, 2, {v(c_)}')
    vL32 = 9
    def rx_loads():
        e(f'buffer_load_dwordx4 {v(RG[0],4)}, {v(vLin)}, {srd(sWS)}, s{sRX} offen sc1', tag='RX')
        e(f'buffer_load_dwordx4 {v(RG[1],4)}, {v(vL32)}, {srd(sWS)}, s{sRX} offen offset:1024 sc1', tag='RX')
    def red_write():
        for k in range(1, 4):
            e(f'v_xor_b32 {v(vT[k])}, {k*2048}, {v(vRr)}')
        for k in range(1, 4):
            e(f'ds_write_b128 {v(vT[k])}, {v(O+8*k,4)} offset:{(k-1)*SLOT}')
            e(f'ds_write_b128 {v(vT[k])}, {v(O+8*k+4,4)} offset:{(k-1)*SLOT + 1024}')
    for t in range(16):
        step = 9 + t; n = TV + t; p, u = t // 8, t % 8
        head(step, [n])
        if t in opts.get('vst', ()): stamp()
        if t >= 1: release([n - 1])
        off = slot_of[n] * SLOT
        for k in range(4):
            s_, d2 = k // 2, k % 2
            e(f'ds_read_b64_tr_b16 {v(VF+4*k,2)}, {v(vVr[d2])} offset:{off + s_*2048}')
            e(f'ds_read_b64_tr_b16 {v(VF+4*k+2,2)}, {v(vVr[d2])} offset:{off + s_*2048 + 1024}')
        tail(step)
        if t == 3:
            lp = e.newlabel('Ltk'); ld = e.newlabel('Ltkd')
            e(f's_mov_b32 s{sT3}, 0x20000')
            e.wait_vm('TKL')
            saved = {r: list(e.vm[r]) for r in e.vm}
            e.label(lp)
            e(f'v_readfirstlane_b32 s{sT1}, {v(vTok)}')
            e(f's_cmp_lg_u32 s{sT1}, 0')
            e(f's_cbranch_scc1 {ld}')
            e(f's_sub_u32 s{sT3}, s{sT3}, 1')
            e(f's_cmp_eq_u32 s{sT3}, 0')
            e(f's_cbranch_scc1 {ld}')
            e(f's_sleep 8')
            e(f'buffer_load_dword {v(vTok)}, {v(TK0+2)}, {srd(sDBG)}, 0 offen sc1', tag='TKL')
            e.wait_vm_all()
            e(f's_branch {lp}')
            e.vm = saved
            e.label(ld)
        if t == 7:
            e(f'ds_read_b128 {v(TM,4)}, {v(vMxA)} offset:1024')
            e(f's_xor_b32 s{sRX}, s2, 16'); e(f's_lshl_b32 s{sRX}, s{sRX}, 14'); e(f's_add_u32 s{sRX}, s{sRX}, {hex(WS_OX)}')
            e(f's_add_u32 s{sRX}, s{sRX}, s{sW2k}')
            e(f'v_add_f32 {v(TM)}, {v(TM)}, {v(TM+1)}')
            e(f'v_add_f32 {v(TM+2)}, {v(TM+2)}, {v(TM+3)}')
            e(f'v_add_f32 {v(TM)}, {v(TM)}, {v(TM+2)}')
            e(f'v_log_f32 {v(TM+1)}, {v(TM)}')
            e(f'v_rcp_f32 {v(vRl)}, {v(TM)}')
            e(f'v_sub_f32 {v(vLse)}, {v(TM+1)}, {v(vNm)}')
        if t == 8:
            for k in range(1, 4):
                e(f'ds_read_b128 {v(TM+8,4)}, {v(vRr)} offset:{(k-1)*SLOT}')
                e(f'ds_read_b128 {v(TM+12,4)}, {v(vRr)} offset:{(k-1)*SLOT + 1024}')
                for i in range(0, 8, 2):
                    e(f'v_pk_add_f32 {v(TM+i,2)}, {v(TM+i,2)}, {v(TM+8+i,2)}')
            for i in range(8): e(f'v_mul_f32 {v(TM+i)}, {v(TM+i)}, {v(vRl)}')
            e(f's_xor_b32 s{sT1}, s{sRX}, {hex(16 << 14)}')
            e(f'v_cvt_pk_bf16_f32 {v(TM+12)}, {v(TM+6)}, {v(TM+7)}')
            e(f'v_cvt_pk_bf16_f32 {v(TM+13)}, {v(TM+6)}, {v(TM+7)}')
            for i in range(3): e(f'v_cvt_pk_bf16_f32 {v(TM+8+i)}, {v(TM+2*i)}, {v(TM+2*i+1)}')
            e(f'v_mov_b32 {v(TM+11)}, {v(vTok)}')
            e(f'v_permlane32_swap_b32 {v(TM+12)}, {v(TM+13)}')
            e(f'v_and_b32 {v(vL32)}, 0x1ff, {v(vLin)}')
            e(f'buffer_store_dwordx4 {v(TM+8,4)}, {v(vLin)}, {srd(sWS)}, s{sT1} offen sc1', tag='OX')
            e(f'v_mov_b32 {v(TM+14)}, {v(vLse)}')
            e(f'v_mov_b32 {v(TM+15)}, {v(vTok)}')
            e(f's_mov_b32 exec_hi, 0')
            e(f'buffer_store_dwordx4 {v(TM+12,4)}, {v(vLin)}, {srd(sWS)}, s{sT1} offen offset:1024 sc1', tag='OX')
            e(f's_mov_b64 exec, -1')
        if t == 10: setup_out()
        if t == opts.get('rxat', 13) and (not opts.get('noox') or opts.get('keepld')): rx_loads()
        if step in wo_read_at: wo_read(wo_read_at[step])
        sm = softmax(u + 1) if (p == 0 and u < 7) else []
        cuts = [0, 10, 20, 30, len(sm)] if sm else [0]*5
        for k in range(4):
            s_, d2 = k // 2, k % 2
            for x in sm[cuts[k]:cuts[k+1]]: e(x)
            c = '0' if (u == 0 and s_ == 0) else v(O+16*d2, 16)
            e(f'v_mfma_f32_32x32x16_bf16 {v(O+16*d2,16)}, {v(VF+4*k,4)}, {v(S0+16*u+4*s_,4)}, {c}')
        if t == 6:
            e(f'v_add_f32 {v(vL)}, {v(vL)}, {v(vL+1)}')
            xswap(vL, vT[0], 'v_add_f32')
            e(f'ds_write_b32 {v(vMo)}, {v(vL)} offset:1024')
        if t == 7:
            red_write()
            for i in range(8): e(f'v_mov_b32 {v(TM+i)}, {v(O+i)}')
            stamp()
    assert WS_OX % (32 << 14) == 0 and RS % 16384 == 0
    stamp()
    red_write()
    lp = e.newlabel('Lrx'); ld = e.newlabel('Lrxd')
    e(f's_mov_b32 s{sT3}, 0x20000')
    e.label(lp)
    e.wait_vm_all()
    e(f'v_xor_b32 {v(TM)}, {v(RG[0]+3)}, {v(vTok)}')
    e(f'v_xor_b32 {v(TM+1)}, {v(RG[1]+3)}, {v(vTok)}')
    e(f'v_or_b32 {v(TM)}, {v(TM)}, {v(TM+1)}')
    e(f'v_cmp_ne_u32 vcc, 0, {v(TM)}')
    e.nop(4)
    e(f's_cbranch_vccz {ld}')
    if opts.get('noox'): e(f's_branch {ld}')
    e(f's_sub_u32 s{sT3}, s{sT3}, 1')
    e(f's_cmp_eq_u32 s{sT3}, 0')
    e(f's_cbranch_scc1 {ld}')
    if opts.get('ox_pol', ' sc1') != ' sc1': e('buffer_wbl2 sc1')
    e(f's_sleep 8')
    rx_loads()
    e(f's_branch {lp}')
    for r in e.vm: e.vm[r] = []
    e.label(ld)
    e(f's_mov_b32 s{sT3}, 0xffff0000')
    t0, t1 = 38, 39
    e(f'v_sub_f32 {v(t0)}, {v(vLse)}, {v(RG[1]+2)}')
    e(f'v_sub_f32 {v(t1)}, {v(RG[1]+2)}, {v(vLse)}')
    e(f'v_cmp_lt_u32 vcc, 31, v0')
    e(f'v_exp_f32 {v(t0)}, {v(t0)}'); e(f'v_exp_f32 {v(t1)}, {v(t1)}')
    e(f'v_add_f32 {v(t0)}, 1.0, {v(t0)}'); e(f'v_add_f32 {v(t1)}, 1.0, {v(t1)}')
    e(f'v_rcp_f32 {v(t0)}, {v(t0)}'); e(f'v_rcp_f32 {v(t1)}, {v(t1)}')
    e(f'v_cndmask_b32 {v(RG[1])}, {v(RG[1])}, {v(RG[1]+1)}, vcc')
    gsrc = [RG[0], RG[0]+1, RG[0]+2, RG[1]]
    for i in range(4):
        e(f'v_lshlrev_b32 {v(TM+2*i)}, 16, {v(gsrc[i])}'); e(f'v_and_b32 {v(TM+2*i+1)}, s{sT3}, {v(gsrc[i])}')
    e(f'v_mul_f32 {v(t1)}, {v(t1)}, {v(vRl)}')
    for i in range(8): e(f'v_mul_f32 {v(TM+i)}, {v(TM+i)}, {v(t0)}')
    OI = slot_of[TEND-2] * SLOT
    e(f's_add_u32 s{sT1}, s{sW1k}, {OI}')
    e(f'v_add_u32 {v(vT[0])}, s{sT1}, {v(vLin)}')
    e(f's_and_b32 s{sT2}, s{sWave}, 1'); e(f's_lshl_b32 s{sT0}, s{sT2}, 3'); e(f's_lshl_b32 s{sT1}, s{sT2}, 8')
    e(f'v_add_u32 {v(vRw)}, s{sT1}, {v(vOr)}')
    e.wait_lg(0)
    e('s_barrier')
    for k in range(1, 4):
        e(f'ds_read_b128 {v(O+8*k,4)}, {v(vRr)} offset:{(k-1)*SLOT}')
        e(f'ds_read_b128 {v(O+8*k+4,4)}, {v(vRr)} offset:{(k-1)*SLOT + 1024}')
    for k in range(1, 4):
        for i in range(0, 8, 2):
            e(f'v_pk_add_f32 {v(O+i,2)}, {v(O+i,2)}, {v(O+8*k+i,2)}')
    for i in range(8): e(f'v_fma_f32 {v(O+i)}, {v(O+i)}, {v(t1)}, {v(TM+i)}')
    for i in range(4): e(f'v_cvt_pk_bf16_f32 {v(TM+i)}, {v(O+2*i)}, {v(O+2*i+1)}')
    e(f'ds_write_b128 {v(vT[0])}, {v(TM,4)}')
    e.wait_lg(0)
    e('s_barrier')
    lo = lambda k: S0 + 16 * (k // 2) + 4 * (k % 2)
    for ck in range(4):
        for qt in range(2):
            e(f'ds_read_b128 {v(lo(2*ck+qt),4)}, {v(vOr)} offset:{OI + ck*2048 + qt*256}')
    for ck in range(4):
        e(f'ds_read_b128 {v(lo(8+ck),4)}, {v(vRw)} offset:{OI + ck*2048}')
    e(f's_mul_i32 s{sT1}, s2, {PART_BYTES}')
    e(f's_lshl_b32 s{sT3}, s{sWave}, 9')
    e(f'v_lshlrev_b32 {v(vT[1])}, 3, v0')
    e(f's_add_u32 s{sT3}, s{sT3}, s{sT1}'); e(f's_add_u32 s{sT3}, s{sT3}, 32768')
    e(f's_lshl_b32 s{sT2}, s{sWave}, 12'); e(f's_add_u32 s{sT1}, s{sT1}, s{sT2}')
    AC = 84
    DD = [120, 124, 64, 68]
    def fin(j):
        D = DD[j]
        for qt in range(2):
            A0 = AC + 8*j + 4*qt
            e(f'v_cvt_pk_bf16_f32 {v(D+2*qt)}, {v(A0)}, {v(A0+1)}')
            e(f'v_cvt_pk_bf16_f32 {v(D+2*qt+1)}, {v(A0+2)}, {v(A0+3)}')
        e(f'buffer_store_dwordx4 {v(D,4)}, {v(vLin)}, {srd(sWS)}, s{sT1} offen offset:{j*1024}{st_pol}', tag='OUT')
    for j in range(4):
        for ck in range(4):
            for qt in range(2):
                A0 = AC + 8*j + 4*qt
                c = '0' if ck == 0 else v(A0, 4)
                e(f'v_mfma_f32_16x16x32_bf16 {v(A0,4)}, {v(WF[ck][j],4)}, {v(lo(2*ck+qt),4)}, {c}')
        c = '0' if j == 0 else v(AC+32, 4)
        e(f'v_mfma_f32_16x16x32_bf16 {v(AC+32,4)}, {v(WF[j][4],4)}, {v(lo(8+j),4)}, {c}')
        if j >= 1: fin(j - 1)
    fin(3)
    e(f'v_cvt_pk_bf16_f32 {v(72)}, {v(AC+32)}, {v(AC+33)}')
    e(f'v_cvt_pk_bf16_f32 {v(73)}, {v(AC+34)}, {v(AC+35)}')
    e(f'buffer_store_dwordx2 {v(72,2)}, {v(vT[1])}, {srd(sWS)}, s{sT3} offen{st_pol}', tag='OUT')
    stamp()
    e(f's_lshl_b32 s{sT1}, s{sB}, 5'); e(f's_lshl_b32 s{sT2}, s{sWave}, 2'); e(f's_add_u32 s{sT1}, s{sT1}, s{sT2}')
    e(f's_mul_i32 s{sT0}, s{sT1}, {PART_BYTES}')
    e(f's_and_b32 s{sT3}, s2, 31'); e(f's_mul_i32 s{sT1}, s{sT3}, 1152'); e(f's_add_u32 s{sT0}, s{sT0}, s{sT1}')
    e(f's_add_u32 s{sT1}, s{sT0}, {PART_BYTES}'); e(f's_add_u32 s{sT2}, s{sT0}, {2*PART_BYTES}'); e(f's_add_u32 s{sG0}, s{sT0}, {3*PART_BYTES}')
    e(f's_lshl_b32 s{sVb}, s{sB}, 12'); e(f's_lshl_b32 s{sT3}, s{sT3}, 2'); e(f's_add_u32 s{sVb}, s{sVb}, s{sT3}'); e(f's_add_u32 s{sVb}, s{sVb}, {hex(WS_FLAG)}')
    e(f's_lshl_b32 s{sKc}, s2, 7'); e(f's_lshl_b32 s{sT3}, s{sWave}, 4'); e(f's_add_u32 s{sKc}, s{sKc}, s{sT3}'); e(f's_add_u32 s{sKc}, s{sKc}, {hex(WS_FLAG)}')
    e(f's_mul_i32 s{sXc}, s{sWave}, 3072'); e(f's_add_u32 s{sXc}, s{sXc}, {FA}')
    e(f'v_lshlrev_b32 {v(vT[3])}, 5, v0')
    e(f'v_add_u32 {v(vT[3])}, s{sXc}, {v(vT[3])}')
    e.wait_vm_all()
    e('s_barrier')
    lf = e.newlabel('Lfl')
    e(f's_cmp_lg_u32 s{sWave}, 0'); e(f's_cbranch_scc1 {lf}')
    e(f's_mov_b32 exec_hi, 0')
    e(f'buffer_store_dword {v(vTok)}, {v(vFw)}, {srd(sWS)}, s{sVb} offen sc1', tag='FLG')
    e(f's_mov_b64 exec, -1')
    e.label(lf)
    stamp()
    sp_ = e.newlabel('Lsm'); sd_ = e.newlabel('Lsmd')
    e(f's_mov_b32 s{sT3}, 0x20000')
    e.label(sp_)
    e(f'buffer_load_dword {v(vT[0])}, {v(vFl)}, {srd(sWS)}, s{sKc} offen sc1', tag='SM')
    e.wait_vm_all()
    e(f'v_cmp_ne_u32 vcc, {v(vT[0])}, {v(vTok)}')
    e.nop(4)
    e(f's_cbranch_vccz {sd_}')
    e(f's_sub_u32 s{sT3}, s{sT3}, 1')
    e(f's_cmp_eq_u32 s{sT3}, 0')
    e(f's_cbranch_scc1 {sd_}')
    e(f's_sleep {opts.get("ssleep", 1)}')
    e(f's_branch {sp_}')
    e.label(sd_)
    stamp()
    LD = 128
    for l, (va, so) in enumerate([(vLin, sT0), (vLin, sT1), (vLin, sT2), (vLin, sG0), (vBo, sT0)]):
        e(f'buffer_load_dwordx4 {v(LD+4*l,4)}, {v(va)}, {srd(sWS)}, s{so} offen sc1', tag=f'RD{l}')
    e(f's_mov_b32 s{sT3}, 0xffff0000')
    ACCR = 160; U = 176
    for l in range(5):
        e.wait_vm(f'RD{l}')
        base = ACCR if l < 4 else ACCR + 8
        first = l in (0, 4)
        for k in range(4):
            d0 = base + 2*k if first else U + 2*k
            e(f'v_lshlrev_b32 {v(d0)}, 16, {v(LD+4*l+k)}'); e(f'v_and_b32 {v(d0+1)}, s{sT3}, {v(LD+4*l+k)}')
        if not first:
            for k in range(4):
                e(f'v_pk_add_f32 {v(base+2*k,2)}, {v(base+2*k,2)}, {v(U+2*k,2)}')
        if l == 3:
            e(f'ds_write_b128 {v(vT[3])}, {v(ACCR,4)}')
            e(f'ds_write_b128 {v(vT[3])}, {v(ACCR+4,4)} offset:16')
    e(f's_mov_b32 exec_hi, 0')
    e(f'ds_write_b128 {v(vT[3])}, {v(ACCR+8,4)} offset:2048')
    e(f'ds_write_b128 {v(vT[3])}, {v(ACCR+12,4)} offset:2064')
    e(f's_mov_b64 exec, -1')
    e.wait_lg(0)
    e('s_barrier')
    e(f's_cmp_ge_u32 s{sWave}, 6'); e('s_cbranch_scc1 L_end1')
    for w in range(8):
        e(f'ds_read_b64 {v(LD+2*w,2)}, {v(vFa)} offset:{w*3072}')
    for w in range(1, 8): e(f'v_pk_add_f32 {v(LD,2)}, {v(LD,2)}, {v(LD+2*w,2)}')
    lq = e.newlabel('Lq')
    e(f's_cmp_lt_u32 s{sWave}, 4'); e(f's_cbranch_scc1 {lq}')
    for perm in ('[1,0,3,2]', '[2,3,0,1]'):
        for k in range(2):
            e(f'v_add_f32_dpp {v(LD+k)}, {v(LD+k)}, {v(LD+k)} quad_perm:{perm} row_mask:0xf bank_mask:0xf')
    e.label(lq)
    e(f'v_cvt_pk_bf16_f32 {v(LD)}, {v(LD)}, {v(LD+1)}')
    e(f'buffer_store_dword {v(LD)}, {v(vOa)}, {srd(sOUT)}, 0 offen', tag='FIN')
    if stamps:
        e.wait_vm_all()
        stamp()
        e(f's_cmp_lg_u32 s{sWave}, 0'); e('s_cbranch_scc1 L_end1')
        e(f's_lshl_b32 s{sT1}, s2, 7'); e(f's_add_u32 s{sT1}, s{sT1}, {hex(WS_STAMP)}')
        e('s_mov_b64 exec, 1')
        e(f'v_mov_b32 {v(vT[2])}, 0')
        for i in range(16):
            if i < nstamp[0]:
                e(f'v_mov_b32 {v(vT[0])}, s{sStamp+2*i}'); e(f'v_mov_b32 {v(vT[1])}, s{sStamp+2*i+1}')
            else:
                e(f'v_mov_b32 {v(vT[0])}, 0'); e(f'v_mov_b32 {v(vT[1])}, 0')
            e(f'buffer_store_dwordx2 {v(vT[0],2)}, {v(vT[2])}, {srd(sWS)}, s{sT1} offen offset:{8*i}')
            e.nop(2)
    e.label('L_end1')
    e('s_endpgm')
    k1_lines = e.lines
    n1 = e.ninst

    hdr = open('standalone__sliding_block_cached__sampling.s.ref').read().split('\n')
    hdr = [l for l in hdr if l.startswith(';') and '@launch' not in l and 'Override' not in l and 'grid=ceil' not in l]
    out = hdr + [
        f'; @launch grid=(256,1,1) block=(512,1,1) lds={LDS_BYTES}',
        '.amdgcn_target "amdgcn-amd-amdhsa--gfx950"', '.text'] + k1_lines
    def kd(name, nv, ns, acc):
        return ['.section .rodata,"a"', '.p2align 6', f'.amdhsa_kernel {name}',
                f'  .amdhsa_next_free_vgpr {nv}', f'  .amdhsa_next_free_sgpr {ns}', f'  .amdhsa_accum_offset {acc}',
                '  .amdhsa_group_segment_fixed_size 0', '  .amdhsa_kernarg_size 64', '  .amdhsa_user_sgpr_count 2',
                '  .amdhsa_user_sgpr_kernarg_segment_ptr 1', '  .amdhsa_system_sgpr_workgroup_id_x 1', '.end_amdhsa_kernel']
    out += kd(K1, 256, 102, 256)
    print('K1 instrs', n1, 'QI', QI, 'slots', [slot_of[n] for n in range(TEND)], file=sys.stderr)
    return '\n'.join(out) + '\n'

if __name__ == '__main__':
    E = 'exp/'
    b = dict(dmafirst=True)
    st = dict(stamps=True, vst=(0, 12), kst=(0, 4), qst=(0, 4))
    open(E + 'v19b.s', 'w').write(gen(dict(b)))
    open(E + 'v19bs.s', 'w').write(gen(dict(b, **st)))
    open(E + 'v19c.s', 'w').write(gen(dict(b, st_pol=' sc0 sc1')))
```

```python
import sys, math, struct
from emit import Emitter
from gen6 import f32bits
K1 = 'standalone__sliding_block_cached__sampling_kernel'
WS_FLAG = 0x1800000

SLOT = 16384
NSLOT = 7
SCR = NSLOT * SLOT
MX = SCR + 40960
LS = MX + 1024
TOK = LS + 1024
LDS_BYTES = TOK + 64
RS = 4 * SLOT
WS_EPOCH = 0x1000000
WS_OX = 0x1100000
WS_STAMP = 0x20000000
PART_BYTES = 36864
NW, NK, NV = 18, 16, 16
TK, TV, TEND = NW, NW + NK, NW + NK + NV

def gen(opts):
    stamps = opts.get('stamps', False)
    st_pol = opts.get('st_pol', ' sc1'); k2_pol = opts.get('k2_pol', '')
    wq_pol = opts.get('wq_pol', ''); wo_pol = opts.get('wo_pol', ''); x_pol = opts.get('x_pol', '')
    e = Emitter(roles=('A', 'B'))
    NR = opts.get('nr', 8)
    NB = opts.get('nb', NR)
    sK, sV, sWQ, sX, sWO, sWS, sDBG = 20, 24, 28, 32, 36, 40, 44
    sWave, sHkv, sB, sSp = 48, 49, 50, 51
    sW2k, sT0, sT1, sT2, sT3 = 52, 53, 54, 55, 56
    sWQb, sWOb, sKc = 57, 58, 59
    sC = 60
    sKs, sG0, sVb, sW1k = 62, 63, 64, 65
    sStamp = 66
    sI4, sHH = 98, 99
    sXc, sXb = 100, 101
    nstamp = [0]
    srd = lambda n: f's[{n}:{n+3}]'
    e.role_cond[frozenset('B')] = (f's_bitcmp1_b32 s2, {opts.get("gbit", 4)}', 's_cbranch_scc0')
    e.role_cond[frozenset('A')] = (f's_bitcmp1_b32 s2, {opts.get("gbit", 4)}', 's_cbranch_scc1')
    def stamp():
        if stamps:
            i = nstamp[0]; nstamp[0] += 1
            assert i < 16
            e.wait_lg(0)
            e(f's_memrealtime s[{sStamp+2*i}:{sStamp+2*i+1}]')
            e.wait_lg(0)
    v = lambda n, c=1: f'v{n}' if c == 1 else f'v[{n}:{n+c-1}]'
    vLin, vLc, vLr = 1, 2, 3
    vKd = [4, 5]; vVd = 6; vVr = [7, 8]; vKr = list(range(9, 17))
    vWr = 17; vWx = 18; vMxA = 19; vMo = 20; vOr = 21
    vL = 22
    vNm = 24; vM = 25; vRw = 26; vRr = 27
    vT = [28, 29, 30, 31]
    S0 = 128; QF = 96; KF = 64; W0R = 44
    vWd = [32, 33]; vXd = 34; vQr = [36, 37]; vXb = [38, 39, 40, 41]; vXa = [42, 43, 44, 45]
    QA = 48; QB = 64; QACC = 112
    vKw = 35
    TK0 = 32

    e.raw(f'.globl {K1}'); e.raw('.p2align 8'); e.raw(f'.type {K1},@function'); e.label(K1)
    e('s_cmp_ge_u32 s2, 256')
    e('s_cbranch_scc1 L_end1')
    e('s_load_dwordx16 s[4:19], s[0:1], 0')
    if stamps:
        e(f's_memrealtime s[{sStamp}:{sStamp+1}]'); nstamp[0] = 1
    e(f'v_lshrrev_b32 {v(vT[0])}, 6, v0')
    e(f'v_and_b32 v0, 63, v0')
    e(f'v_readfirstlane_b32 s{sWave}, {v(vT[0])}')
    e(f's_and_b32 s{sHkv}, s2, 7'); e(f's_lshl_b32 s{sHkv}, s{sHkv}, 1')
    e(f's_bfe_u32 s{sT0}, s2, 0x10003'); e(f's_or_b32 s{sHkv}, s{sHkv}, s{sT0}')
    e(f's_lshr_b32 s{sB}, s2, 5')
    e(f'v_lshrrev_b32 {v(vT[0])}, 5, v0')
    e(f'v_and_b32 {v(vT[1])}, 31, v0')
    e(f'v_lshlrev_b32 {v(vT[2])}, 2, {v(vT[0])}')
    e(f'v_xor_b32 {v(vT[1])}, {v(vT[1])}, {v(vT[2])}')
    e(f'v_lshlrev_b32 {v(vT[1])}, 4, {v(vT[1])}')
    e(f'v_lshl_add_u32 {v(vWd[0])}, {v(vT[0])}, 13, {v(vT[1])}')
    e(f'v_xor_b32 {v(vWd[1])}, 0x80, {v(vWd[0])}')
    e(f'v_add_u32 {v(vWd[1])}, {16384-1024}, {v(vWd[1])}')
    e(f's_lshl_b32 s{sW2k}, s{sWave}, 11')
    e(f's_lshl_b32 s{sWQb}, s{sWave}, 15'); e(f's_lshl_b32 s{sT1}, s{sHkv}, 9'); e(f's_add_u32 s{sWQb}, s{sWQb}, s{sT1}')
    e(f's_bfe_u32 s{sKs}, s2, 0x20003'); e(f's_lshl1_add_u32 s{sKs}, s{sKs}, s{sB}')
    e(f's_cmp_ge_u32 s{sKs}, 9'); e(f's_cselect_b32 s{sT1}, 9, 0'); e(f's_sub_u32 s{sKs}, s{sKs}, s{sT1}')
    if not opts.get('rot', True): e(f's_mov_b32 s{sKs}, 0')
    e(f's_mov_b32 s{sKc}, s{sKs}')
    e(f's_and_b32 s{sI4}, s{sWave}, 3'); e(f's_lshr_b32 s{sHH}, s{sWave}, 2')
    e(f'v_lshrrev_b32 {v(vT[0])}, 3, v0')
    e(f'v_lshrrev_b32 {v(vLr)}, 4, v0')
    e(f's_and_b32 s{sT1}, s{sWave}, 1'); e(f's_lshl_b32 s{sT1}, s{sT1}, 2')
    e(f'v_or_b32 {v(vT[1])}, s{sT1}, {v(vLr)}')
    e(f'v_and_b32 {v(vT[2])}, 7, v0')
    e(f'v_xor_b32 {v(vT[1])}, {v(vT[1])}, {v(vT[2])}')
    e(f's_movk_i32 s{sT1}, 1152')
    e(f'v_mul_lo_u32 {v(vT[0])}, {v(vT[0])}, s{sT1}')
    e(f'v_lshl_add_u32 {v(vXd)}, {v(vT[1])}, 4, {v(vT[0])}')
    e(f's_mul_i32 s{sXb}, s{sB}, 36864'); e(f's_mul_i32 s{sT0}, s{sI4}, 9216'); e(f's_add_u32 s{sXb}, s{sXb}, s{sT0}')
    e(f's_add_u32 s{sXc}, s{sKs}, s{sHH}'); e(f's_cmp_eq_u32 s{sXc}, 9'); e(f's_cselect_b32 s{sXc}, 0, s{sXc}')
    e(f's_lshl_b32 s{sT2}, s{sI4}, 10'); e(f's_add_u32 s{sT2}, s{sT2}, {SCR}')
    e(f's_lshl_b32 s{sW1k}, s{sWave}, 10')
    e.wait_lg(0)
    e(f's_mov_b32 s{sX}, s4'); e(f's_mov_b32 s{sX+1}, s5'); e(f's_mov_b32 s{sX+2}, {256*1152}'); e(f's_mov_b32 s{sX+3}, 0x20000')
    e(f's_mov_b32 s{sWQ}, s10'); e(f's_mov_b32 s{sWQ+1}, s11'); e(f's_mov_b32 s{sWQ+2}, {576*8192}'); e(f's_mov_b32 s{sWQ+3}, 0x20000')

    slot_of = {}
    free = list(range(NSLOT))
    nxt = [0]
    hooks = []
    def x_dma(k):
        e(f's_lshl_b32 s{sT1}, s{sXc}, 12'); e(f's_add_u32 m0, s{sT1}, s{sT2}')
        e(f's_lshl_b32 s{sT1}, s{sXc}, 7'); e(f's_add_u32 s{sT1}, s{sT1}, s{sXb}')
        e(f'buffer_load_dwordx4 {v(vXd)}, {srd(sX)}, s{sT1} offen{opts.get("w0_pol", x_pol) if k == 0 else x_pol} lds', tag=f'X{k}')
        if k < 4:
            e(f's_add_u32 s{sXc}, s{sXc}, 2'); e(f's_cmp_ge_u32 s{sXc}, 9'); e(f's_cselect_b32 s{sT1}, 9, 0'); e(f's_sub_u32 s{sXc}, s{sXc}, s{sT1}')
    def dma_tile(n):
        slot = slot_of[n]
        if n < TK and n % 4 == 0: x_dma(n // 4)
        e(f's_add_u32 m0, s{sW2k}, {slot*SLOT}')
        if n < TK:
            if n % 2 == 0:
                e(f's_lshl_b32 s{sG0}, s{sKs}, 19'); e(f's_add_u32 s{sG0}, s{sG0}, s{sWQb}')
            else:
                e(f's_add_u32 s{sG0}, s{sG0}, {32*8192}')
            for i in range(2):
                for h in hooks: h()
                e(f'buffer_load_dwordx4 {v(vWd[i])}, {srd(sWQ)}, s{sG0} offen offset:{i*1024}{opts.get("w0_pol", wq_pol) if n < 2 else wq_pol} lds', tag=f'T{n}')
            if n % 2 == 1 and n < TK - 1:
                e(f's_add_u32 s{sKs}, s{sKs}, 1'); e(f's_cmp_eq_u32 s{sKs}, 9'); e(f's_cselect_b32 s{sKs}, 0, s{sKs}')
        elif opts.get('nokv'):
            pass
        elif n < TV:
            e(f's_add_u32 s{sT1}, s{sW2k}, {(n-TK)*SLOT}')
            for i in range(2):
                for h in hooks: h()
                e(f'buffer_load_dwordx4 {v(vKd[i])}, {srd(sK)}, s{sT1} offen offset:{i*1024} nt lds', tag=f'T{n}')
        else:
            p, u = (n - TV) // 8, (n - TV) % 8
            if p: e(f's_xor_b32 s{sT1}, s{sVb}, 0x80'); e(f's_add_u32 s{sT1}, s{sT1}, {u*32768}')
            else: e(f's_add_u32 s{sT1}, s{sVb}, {u*32768}')
            e(f'buffer_load_dwordx4 {v(vVd)}, {srd(sV)}, s{sT1} offen nt lds', tag=f'T{n}')
            e(f's_add_u32 s{sT1}, s{sT1}, 1024')
            e(f'buffer_load_dwordx4 {v(vVd)}, {srd(sV)}, s{sT1} offen offset:1024 nt lds', tag=f'T{n}')
    def kreg_load(j):
        if opts.get('nokv'): return
        e(f's_add_u32 s{sT1}, s{sW2k}, {j*SLOT}')
        for i in range(2):
            e(f'buffer_load_dwordx4 {v(S0+8*j+4*i,4)}, {v(vKd[i])}, {srd(sK)}, s{sT1} offen offset:{i*1024} nt', tag=f'T{TK+j}')
    reserve = [0]
    rn = {'A': 0, 'B': 0}
    def kv_issue(cnt, limit=None):
        todo = {}
        for r in 'BA':
            l = []
            while len(l) < cnt.get(r, 0) and rn[r] < 32 and (limit is None or rn[r] < limit):
                j = rn[r]
                if j >= NR and (TK + j) not in slot_of:
                    cand = [x for x in free if j < 16 or x < 4]
                    if not cand or len(free) <= reserve[0]: break
                    sl = cand[0] if j >= 16 else max(cand)
                    slot_of[TK + j] = sl; free.remove(sl)
                l.append(j); rn[r] += 1
            todo[r] = l
        def body(l):
            for j in l:
                if j < NR: kreg_load(j)
                else: dma_tile(TK + j)
        if todo['A'] == todo['B']: body(todo['A'])
        else:
            for r in 'AB':
                if todo[r]:
                    with e.only(r): body(todo[r])
    def kreg_write(u):
        assert min(rn.values()) > 2*u + 1, ('reg tile not issued', u, rn)
        for par in range(2):
            n = TK + 2*u + par
            slot_of[n] = min(free); free.remove(slot_of[n])
        e.wait_vm(f'T{TK+2*u}', f'T{TK+2*u+1}')
        for par in range(2):
            off = slot_of[TK+2*u+par] * SLOT
            if off >= 65536:
                e(f'v_add_u32 {v(vT[3])}, 0x10000, {v(vKw)}'); r = vT[3]; off -= 65536
            else: r = vKw
            for i in range(2):
                e(f'ds_write_b128 {v(r)}, {v(S0+16*u+8*par+4*i,4)} offset:{off + i*1024}')
    def issue(maxn):
        k = 0
        while nxt[0] < TK and k < maxn and free:
            n = nxt[0]
            s = max(free)
            free.remove(s); slot_of[n] = s; nxt[0] += 1; k += 1
            dma_tile(n)
    def release(ns):
        for n in ns: free.append(slot_of[n])
        free.sort()

    def mid_setup():
        e(f's_bfe_u32 s{sSp}, s2, 0x10004')
        e(f's_lshl_b32 s{sT0}, s{sB}, 4'); e(f's_add_u32 s{sT0}, s{sT0}, s{sHkv}'); e(f's_lshl_b32 s{sT0}, s{sT0}, 21')
        e(f's_lshl_b32 s{sT1}, s{sSp}, 18'); e(f's_add_u32 s{sT0}, s{sT0}, s{sT1}'); e(f's_add_u32 s{sT0}, s{sT0}, {6144*256}')
        e(f's_add_u32 s{sK}, s6, s{sT0}'); e(f's_addc_u32 s{sK+1}, s7, 0'); e(f's_mov_b32 s{sK+2}, 0x40000'); e(f's_mov_b32 s{sK+3}, 0x20000')
        e(f's_add_u32 s{sV}, s8, s{sT0}'); e(f's_addc_u32 s{sV+1}, s9, 0'); e(f's_mov_b32 s{sV+2}, 0x40000'); e(f's_mov_b32 s{sV+3}, 0x20000')
        e(f's_and_b32 s{sT1}, s{sWave}, 1'); e(f's_lshl_b32 s{sT1}, s{sT1}, 3')
        e(f'v_xor_b32 {v(vT[0])}, {v(vLr)}, {v(vLc)}')
        e(f'v_xor_b32 {v(vT[0])}, s{sT1}, {v(vT[0])}')
        e(f'v_lshlrev_b32 {v(vT[0])}, 4, {v(vT[0])}')
        e(f'v_lshl_add_u32 {v(vKd[0])}, {v(vLr)}, 8, {v(vT[0])}')
        e(f'v_xor_b32 {v(vKd[1])}, 64, {v(vKd[0])}')
    issue(2)
    e(f'v_and_b32 {v(vLc)}, 15, v0')
    mid_setup()
    with e.only('B'):
        e('s_barrier')
        for j in range(NB): kreg_load(j)
        rn['B'] = NB
        e('s_barrier')
    issue(opts.get('w1', 1))

    e(f'v_lshlrev_b32 {v(vLin)}, 4, v0')
    e(f'v_add_u32 {v(vKw)}, s{sW2k}, {v(vLin)}')
    e(f'v_lshrrev_b32 {v(vT[0])}, 2, {v(vLc)}')
    e(f'v_xor_b32 {v(vT[1])}, s{sWave}, {v(vT[0])}')
    e(f'v_lshlrev_b32 {v(vT[1])}, 6, {v(vT[1])}')
    e(f'v_lshl_add_u32 {v(vT[1])}, {v(vT[0])}, 9, {v(vT[1])}')
    e(f'v_lshrrev_b32 {v(vT[2])}, 5, v0')
    e(f'v_lshl_add_u32 {v(vT[1])}, {v(vT[2])}, 12, {v(vT[1])}')
    e(f'v_and_b32 {v(vT[3])}, 1, {v(vLr)}')
    e(f'v_lshl_add_u32 {v(vT[1])}, {v(vT[3])}, 5, {v(vT[1])}')
    e(f'v_and_b32 {v(vT[3])}, 3, {v(vLc)}')
    e(f'v_lshl_add_u32 {v(vQr[0])}, {v(vT[3])}, 3, {v(vT[1])}')
    e(f'v_add_u32 {v(vQr[1])}, 0x10000, {v(vQr[0])}')
    e(f'v_and_b32 {v(vT[0])}, 31, v0')
    e(f'v_bfe_u32 {v(vT[1])}, v0, 1, 3')
    e(f'v_xor_b32 {v(vT[1])}, {v(vT[1])}, {v(vT[2])}')
    e(f'v_lshlrev_b32 {v(vT[1])}, 4, {v(vT[1])}')
    e(f'v_lshl_add_u32 {v(vXb[0])}, {v(vT[0])}, 7, {v(vT[1])}')
    for k in range(1, 4): e(f'v_xor_b32 {v(vXb[k])}, {32*k}, {v(vXb[0])}')

    def setup_k():
        e(f'v_lshrrev_b32 {v(vT[0])}, 5, v0')
        e(f'v_xor_b32 {v(vT[0])}, {v(vT[0])}, {v(vLc)}')
        e(f'v_lshlrev_b32 {v(vT[0])}, 4, {v(vT[0])}')
        e(f'v_and_b32 {v(vT[1])}, 31, v0')
        e(f'v_lshl_add_u32 {v(vT[0])}, {v(vT[1])}, 8, {v(vT[0])}')
        e(f's_and_b32 s{sT1}, s{sWave}, 1'); e(f's_lshl_b32 s{sT1}, s{sT1}, 13')
        e(f'v_add_u32 {v(vKr[0])}, s{sT1}, {v(vT[0])}')
        for j in range(1, 8): e(f'v_xor_b32 {v(vKr[j])}, {32*j}, {v(vKr[0])}')
    def setup_w():
        e(f's_mov_b32 s{sWO}, s12'); e(f's_mov_b32 s{sWO+1}, s13'); e(f's_mov_b32 s{sWO+2}, {4096*1152}'); e(f's_mov_b32 s{sWO+3}, 0x20000')
        e(f's_mov_b32 s{sWS}, s18'); e(f's_mov_b32 s{sWS+1}, s19'); e(f's_mov_b32 s{sWS+2}, 0x30000000'); e(f's_mov_b32 s{sWS+3}, 0x20000')
        e(f's_mov_b32 s{sDBG}, s16'); e(f's_mov_b32 s{sDBG+1}, s17'); e(f's_mov_b32 s{sDBG+2}, 256'); e(f's_mov_b32 s{sDBG+3}, 0x20000')
        e(f's_lshl_b32 s{sT1}, s{sHkv}, 2'); e(f's_add_u32 s{sT1}, s{sT1}, s{sSp}')
        e(f's_mul_i32 s{sWOb}, s{sT1}, {64*1152}'); e(f's_add_u32 s{sWOb}, s{sWOb}, s{sW1k}')
        e(f'v_mov_b32 {v(TK0)}, {hex(WS_EPOCH)}'); e(f'v_mov_b32 {v(TK0+2)}, 0')
    def setup_v():
        e(f's_mov_b32 s{sC}, {hex(f32bits(math.log2(math.e) / math.sqrt(128.0)))}'); e(f's_mov_b32 s{sC+1}, s{sC}')
        e(f's_xor_b32 s{sT1}, s{sSp}, 1'); e(f's_lshl_b32 s{sT1}, s{sT1}, 7')
        e(f's_lshl_b32 s{sVb}, s{sWave}, 12'); e(f's_add_u32 s{sVb}, s{sVb}, s{sT1}')
        e(f'v_lshrrev_b32 {v(vT[0])}, 3, v0')
        e(f'v_and_b32 {v(vT[1])}, 1, {v(vLr)}')
        e(f'v_lshlrev_b32 {v(vT[1])}, 2, {v(vT[1])}')
        e(f'v_and_b32 {v(vT[2])}, 7, v0')
        e(f'v_xor_b32 {v(vT[1])}, {v(vT[1])}, {v(vT[2])}')
        e(f'v_lshlrev_b32 {v(vT[1])}, 4, {v(vT[1])}')
        e(f'v_lshl_add_u32 {v(vVd)}, {v(vT[0])}, 8, {v(vT[1])}')
        e(f'v_lshrrev_b32 {v(vT[0])}, 5, v0')
        e(f'v_lshrrev_b32 {v(vT[1])}, 2, {v(vLc)}')
        e(f'v_lshl_add_u32 {v(vT[0])}, {v(vT[0])}, 2, {v(vT[1])}')
        e(f'v_and_b32 {v(vT[1])}, 2, {v(vT[1])}')
        e(f'v_and_b32 {v(vT[2])}, 1, {v(vLr)}')
        e(f'v_or_b32 {v(vT[1])}, {v(vT[1])}, {v(vT[2])}')
        e(f'v_xor_b32 {v(vT[1])}, s{sI4}, {v(vT[1])}')
        e(f'v_lshlrev_b32 {v(vT[1])}, 5, {v(vT[1])}')
        e(f'v_lshl_add_u32 {v(vT[1])}, {v(vT[0])}, 7, {v(vT[1])}')
        e(f'v_and_b32 {v(vT[2])}, 3, {v(vLc)}')
        e(f'v_lshl_add_u32 {v(vT[1])}, {v(vT[2])}, 3, {v(vT[1])}')
        e(f's_lshl_b32 s{sT1}, s{sI4}, 12')
        e(f'v_add_u32 {v(vVr[0])}, s{sT1}, {v(vT[1])}')
        e(f'v_xor_b32 {v(vVr[1])}, 64, {v(vVr[0])}')
        e(f'v_lshrrev_b32 {v(vT[0])}, 5, v0')
        e(f'v_lshlrev_b32 {v(vT[0])}, 3, {v(vT[0])}')
        e(f'v_lshrrev_b32 {v(vT[1])}, 2, v0')
        e(f'v_add_u32 {v(vT[0])}, {v(vT[0])}, {v(vT[1])}')
        e(f's_movk_i32 s{sT1}, 1152')
        e(f'v_mul_lo_u32 {v(vT[0])}, {v(vT[0])}, s{sT1}')
        e(f'v_lshl_add_u32 {v(vT[0])}, {v(vT[2])}, 3, {v(vT[0])}')
        e(f's_lshl_b32 s{sT1}, s{sWave}, 7'); e(f's_add_u32 s{sT1}, s{sT1}, {SCR}')
        e(f'v_add_u32 {v(vWr)}, s{sT1}, {v(vT[0])}')
        e(f's_lshr_b32 s{sT1}, s{sWave}, 1'); e(f's_lshl_b32 s{sT1}, s{sT1}, 5'); e(f's_add_u32 s{sT1}, s{sT1}, {SCR + 1024}')
        e(f'v_add_u32 {v(vWx)}, s{sT1}, {v(vT[0])}')
        e(f'v_and_b32 {v(vT[0])}, 31, v0')
        e(f's_lshl_b32 s{sT1}, s{sHH}, 9'); e(f's_add_u32 s{sT1}, s{sT1}, {MX}')
        e(f'v_lshlrev_b32 {v(vT[0])}, 4, {v(vT[0])}')
        e(f'v_add_u32 {v(vMxA)}, s{sT1}, {v(vT[0])}')
        e(f's_lshl_b32 s{sT1}, s{sI4}, 2')
        e(f'v_add_u32 {v(vMo)}, s{sT1}, {v(vMxA)}')
        e(f's_add_u32 s{sT1}, s{sW2k}, {RS}')
        e(f'v_add_u32 {v(vRr)}, s{sT1}, {v(vLin)}')
        e(f'v_lshlrev_b32 {v(vT[1])}, 9, {v(vLr)}')
        e(f'v_lshl_add_u32 {v(vOr)}, {v(vLc)}, 4, {v(vT[1])}')

    QI = None
    def q_mf1(q, k):
        o = 32 * (q % 2)
        c = '0' if (q == 0 and k == 0) else v(QACC, 16)
        e(f'v_mfma_f32_32x32x16_bf16 {v(QACC,16)}, {v(QA+o+4*k,4)}, {v(QB+o+4*k,4)}, {c}')
    def q_mf(q):
        o = 32 * (q % 2)
        for k in range(4):
            c = '0' if (q == 0 and k == 0) else v(QACC, 16)
            e(f'v_mfma_f32_32x32x16_bf16 {v(QACC,16)}, {v(QA+o+4*k,4)}, {v(QB+o+4*k,4)}, {c}')
    for q in range(9):
        e(f's_lshl_b32 s{sT1}, s{sKc}, 12'); e(f's_add_u32 s{sT1}, s{sT1}, {SCR}')
        for k in range(4): e(f'v_add_u32 {v(vXa[k])}, s{sT1}, {v(vXb[k])}')
        if q < 8:
            e(f's_add_u32 s{sKc}, s{sKc}, 1'); e(f's_cmp_eq_u32 s{sKc}, 9'); e(f's_cselect_b32 s{sKc}, 0, s{sKc}')
        e.wait_vm(f'T{2*q}', f'T{2*q+1}')
        if q == 0: issue(opts.get('w2', 4))
        e.wait_lg(0)
        e('s_barrier')
        if q in opts.get('qst', (0,)): stamp()
        o = 32 * (q % 2)
        if q >= 1:
            release([2*q-2, 2*q-1])
            if q == 8: QI = free.pop(0) * SLOT
            if opts.get('dmafirst') and nxt[0] < TK: issue(min(2, TK - nxt[0]))
        for k in range(4):
            par, s_ = k // 2, k % 2
            off = slot_of[2*q+par] * SLOT + s_ * 8192
            r = vQr[off // 65536]; off %= 65536
            e(f'ds_read_b64_tr_b16 {v(QA+o+4*k,2)}, {v(r)} offset:{off}')
            e(f'ds_read_b64_tr_b16 {v(QA+o+4*k+2,2)}, {v(r)} offset:{off + 2048}')
            e(f'ds_read_b128 {v(QB+o+4*k,4)}, {v(vXa[k])}')
        if q >= 1:
            q_mf(q - 1)
            if nxt[0] >= TK and q < 8:
                reserve[0] = {6: 0, 7: 1}[q]
                kv_issue({'A': 2, 'B': opts.get('bq', 2)}, 16)
        if q == 7: setup_k()
    q_mf(8)
    e(f'v_and_b32 {v(vT[0])}, 31, v0')
    e(f'v_lshrrev_b32 {v(vT[1])}, 5, v0')
    e(f'v_lshlrev_b32 {v(vT[0])}, 4, {v(vT[0])}')
    e(f'v_lshl_add_u32 {v(vT[0])}, {v(vT[1])}, 3, {v(vT[0])}')
    e(f's_add_u32 s{sT1}, s{sW2k}, {QI}')
    e(f'v_add_u32 {v(vT[0])}, s{sT1}, {v(vT[0])}')
    e(f's_lshl_b32 s{sT1}, s{sHH}, 13'); e(f's_add_u32 s{sT1}, s{sT1}, {QI}')
    e(f'v_add_u32 {v(vT[2])}, s{sT1}, {v(vLin)}')
    for a_ in range(4):
        e(f'v_cvt_pk_bf16_f32 {v(QA+2*a_)}, {v(QACC+4*a_)}, {v(QACC+4*a_+1)}')
        e(f'v_cvt_pk_bf16_f32 {v(QA+2*a_+1)}, {v(QACC+4*a_+2)}, {v(QACC+4*a_+3)}')
        e(f'ds_write_b64 {v(vT[0])}, {v(QA+2*a_,2)} offset:{a_*512}')
    kv_issue({'A': opts.get('ka', 16), 'B': opts.get('kb', 0)}, NR)
    if opts.get('qbar'):
        e.wait_lg(0)
        e('s_barrier')
        release([TK-2, TK-1])
        for j in range(8):
            e(f'ds_read_b128 {v(QF+4*j,4)}, {v(vT[2])} offset:{j*1024}')
        issue(opts['qbar'])
    stamp()

    def wo_dma(ck, ks):
        if opts.get('nowo'): return
        hh, jb = ck // 2, ck % 2
        for k in ks:
            e(f's_add_u32 m0, s{sW1k}, {SCR + k*8192}')
            e(f's_add_u32 s{sT1}, s{sWOb}, {(128*hh + 32*jb)*1152 + k*8192}')
            e(f'buffer_load_dwordx4 {v(vLin)}, {srd(sWO)}, s{sT1} offen{wo_pol} lds', tag=f'W{ck}')
    def up(k): return S0 + 16 * (k // 2) + 8 + 4 * (k % 2)
    WF = {0: [W0R + 4*j for j in range(5)]}
    for ck in range(1, 4): WF[ck] = [up(5*(ck-1) + j) for j in range(5)]
    def wo_read(ck):
        for j in range(4):
            for hf in range(2):
                e(f'ds_read_b64_tr_b16 {v(WF[ck][j]+2*hf,2)}, {v(vWr)} offset:{hf*9216 + 32*j}')
        for hf in range(2):
            e(f'ds_read_b64_tr_b16 {v(WF[ck][4]+2*hf,2)}, {v(vWx)} offset:{hf*9216}')
    wsched = opts.get('wsched', {0: ({0: (0, 1), 1: (2, 3), 2: (4,)}, 4),
                                 1: ({5: (0, 1), 6: (2, 3), 7: (4,)}, 11),
                                 2: ({12: (0, 1), 13: (2, 3), 14: (4,)}, 17),
                                 3: ({18: (0, 1), 19: (2, 3), 20: (4,)}, 23)})
    wo_dma_at = {}; wo_read_at = {}
    for ck, (d, rd) in wsched.items():
        for st, ks in d.items(): wo_dma_at[st] = (ck, ks)
        wo_read_at[rd] = ck

    def head(step, tiles):
        for n in tiles: assert min(rn.values()) > n - TK, ('tile not issued', n, rn)
        tags = [f'T{n}' for n in tiles]
        if step in wo_read_at: tags.append(f'W{wo_read_at[step]}')
        if tags: e.wait_vm(*tags)
        e.wait_lg(0)
        e('s_barrier')
    def tail(step):
        if step in wo_dma_at: wo_dma(*wo_dma_at[step])
        reserve[0] = 2 if 2*(step+1) < NR else 0
        need = (2*step + 4) if step < 8 else (16 + step - 8 + 1)
        lim = max(need + opts.get('la', 2), NR + 3 if step < 8 else 0)
        if step < 2: lim = min(lim, 16)
        kv_issue({'A': opts.get('ta', 3), 'B': opts.get('tb', 3)} if step < 8 else {'A': 3, 'B': 3}, lim)
    def xswap(reg, tmp, op):
        e(f'v_mov_b32 {v(tmp)}, {v(reg)}')
        e(f'v_permlane32_swap_b32 {v(reg)}, {v(tmp)}')
        e(f'{op} {v(reg)}, {v(reg)}, {v(tmp)}')

    kcur = [(0, 0)]
    for u in range(8):
        ta, tb = TK + 2*u, TK + 2*u + 1
        if 2*u < NR: kreg_write(u)
        sa, sb = slot_of[ta] * SLOT, slot_of[tb] * SLOT
        pa, pb = kcur[0]
        da, db_ = (sa - pa) & 0xffffffff, (sb - pb) & 0xffffffff
        e(f's_cmp_lt_u32 s{sI4}, 2')
        e(f's_mov_b32 s{sT0}, {hex(db_)}')
        e(f's_cmov_b32 s{sT0}, {hex(da)}')
        for j in range(8): e(f'v_add_u32 {v(vKr[j])}, s{sT0}, {v(vKr[j])}')
        kcur[0] = (sa, sb)
        head(u, [ta, tb])
        if u in opts.get('kst', ()): stamp()
        if u == 0:
            if opts.get('qbar'):
                free.append(QI // SLOT); free.sort()
            else:
                release([TK-2, TK-1])
                for j in range(8):
                    e(f'ds_read_b128 {v(QF+4*j,4)}, {v(vT[2])} offset:{j*1024}')
        else:
            release([ta-2, tb-2])
            if u == 1 and not opts.get('qbar'): free.append(QI // SLOT); free.sort()
        for j in range(8):
            e(f'ds_read_b128 {v(KF+4*j,4)}, {v(vKr[j])}')
        if u == 0: setup_w()
        if u >= opts.get('ltk', 0): tail(u)
        if u in wo_read_at: wo_read(wo_read_at[u])
        if u >= 1:
            Sp = S0 + 16 * (u - 1)
            if u == 1: e(f'v_max3_f32 {v(vM)}, {v(Sp)}, {v(Sp+1)}, {v(Sp+2)}'); st = 3
            else: st = 0
            for i in range(st, 15, 2): e(f'v_max3_f32 {v(vM)}, {v(vM)}, {v(Sp+i)}, {v(Sp+i+1)}')
            if u == 1: e(f'v_max_f32 {v(vM)}, {v(vM)}, {v(Sp+15)}')
        Sb = S0 + 16 * u
        for j in range(8):
            c = '0' if j == 0 else v(Sb, 16)
            e(f'v_mfma_f32_32x32x16_bf16 {v(Sb,16)}, {v(KF+4*j,4)}, {v(QF+4*j,4)}, {c}')
        if u < opts.get('ltk', 0): tail(u)
        if u == 0:
            lw = e.newlabel('Llead')
            saved = {r: list(e.vm[r]) for r in e.vm}
            e(f's_xor_b32 s{sT1}, s{sWave}, 7'); e(f's_or_b32 s{sT1}, s{sT1}, s2')
            e(f's_cmp_lg_u32 s{sT1}, 0')
            e(f's_cbranch_scc1 {lw}')
            p0 = e.pos
            e(f's_mov_b64 exec, 1')
            e(f'buffer_load_dword {v(TK0+1)}, {v(TK0)}, {srd(sWS)}, 0 offen sc1', tag='EP')
            e.wait_vm_all()
            e(f'v_add_u32 {v(TK0+1)}, 1, {v(TK0+1)}')
            e(f'v_or_b32 {v(TK0+1)}, 0x80000000, {v(TK0+1)}')
            e(f'buffer_store_dword {v(TK0+1)}, {v(TK0+2)}, {srd(sDBG)}, 0 offen sc1', tag='EPS')
            e(f'buffer_store_dword {v(TK0+1)}, {v(TK0)}, {srd(sWS)}, 0 offen sc1', tag='EPS')
            e(f's_mov_b64 exec, -1')
            e.label(lw)
            for P in e.hist:
                if P.pos < p0: P.pos += e.pos - p0
            e.vm = saved
        if u == 1: setup_v()
        if u == 6:
            e(f'buffer_load_dword {v(TK0+1)}, {v(TK0+2)}, {srd(sDBG)}, 0 offen', tag='TKL')
    Sp = S0 + 16 * 7
    for i in range(0, 16, 2): e(f'v_max3_f32 {v(vM)}, {v(vM)}, {v(Sp+i)}, {v(Sp+i+1)}')
    xswap(vM, vT[0], 'v_max_f32')
    e(f'ds_write_b32 {v(vMo)}, {v(vM)}')
    stamp()

    def softmax(u):
        Sb = S0 + 16 * u
        g = [f'v_pk_fma_f32 {v(Sb+i,2)}, {v(Sb+i,2)}, s[{sC}:{sC+1}], {v(vNm,2)} op_sel_hi:[1,0,0]' for i in range(0, 16, 2)]
        g += [f'v_exp_f32 {v(Sb+i)}, {v(Sb+i)}' for i in range(16)]
        if u == 0:
            g += [f'v_pk_add_f32 {v(vL,2)}, {v(Sb,2)}, {v(Sb+2,2)}'] + [f'v_pk_add_f32 {v(vL,2)}, {v(vL,2)}, {v(Sb+i,2)}' for i in range(4, 16, 2)]
        else:
            g += [f'v_pk_add_f32 {v(vL,2)}, {v(vL,2)}, {v(Sb+i,2)}' for i in range(0, 16, 2)]
        g += [f'v_cvt_pk_bf16_f32 {v(Sb+i)}, {v(Sb+2*i)}, {v(Sb+2*i+1)}' for i in range(8)]
        return g

    head(8, [])
    release([TV-2, TV-1])
    e(f'ds_read_b128 {v(vT[0],4)}, {v(vMxA)}')
    tail(8)
    e(f'v_max3_f32 {v(vM)}, {v(vT[0])}, {v(vT[1])}, {v(vT[2])}')
    e(f'v_max_f32 {v(vM)}, {v(vM)}, {v(vT[3])}')
    e(f'v_mul_f32 {v(vNm)}, s{sC}, {v(vM)}')
    e(f'v_sub_f32 {v(vNm)}, 0, {v(vNm)}')
    for x in softmax(0): e(x)

    O = 96
    VF = 64
    TM = 80
    vTok = TK0 + 1
    vLse, vRl = 36, 37
    RG = [40, up(15)]
    sRX = sKs
    sOUT = sWQ
    vOa, vFa, vBo, vFw, vFl = 10, 11, 12, 13, 14
    FA = RS
    def setup_out():
        e(f's_mov_b32 s{sOUT}, s14'); e(f's_mov_b32 s{sOUT+1}, s15'); e(f's_mov_b32 s{sOUT+2}, {256*1152}'); e(f's_mov_b32 s{sOUT+3}, 0x20000')
        a, b_, c_, d_ = 15, 16, vT[0], vT[1]
        e(f's_lshl_b32 s{sT1}, s{sWave}, 6')
        e(f'v_add_u32 {v(a)}, s{sT1}, v0')
        e(f'v_and_b32 {v(b_)}, 0xff, {v(a)}')
        e(f'v_lshrrev_b32 {v(c_)}, 2, {v(b_)}')
        e(f'v_and_b32 {v(d_)}, 3, {v(b_)}')
        e(f'v_lshlrev_b32 {v(d_)}, 8, {v(d_)}')
        e(f'v_lshl_add_u32 {v(d_)}, {v(c_)}, 3, {v(d_)}')
        e(f'v_add_u32 {v(d_)}, 0x800, {v(d_)}')
        e(f'v_lshlrev_b32 {v(vFa)}, 3, {v(b_)}')
        e(f'v_cmp_lt_u32 vcc, 0xff, {v(a)}')
        e(f'v_cndmask_b32 {v(vFa)}, {v(vFa)}, {v(d_)}, vcc')
        e(f'v_add_u32 {v(vFa)}, {hex(FA)}, {v(vFa)}')
        e(f'v_add_u32 {v(c_)}, 0x100, {v(c_)}')
        e(f'v_cndmask_b32 {v(b_)}, {v(b_)}, {v(c_)}, vcc')
        e(f's_and_b32 s{sT1}, s2, 31'); e(f's_mul_i32 s{sT1}, s{sT1}, 288')
        e(f'v_add_u32 {v(b_)}, s{sT1}, {v(b_)}')
        e(f'v_bfe_u32 {v(c_)}, {v(b_)}, 1, 6')
        e(f'v_lshlrev_b32 {v(c_)}, 2, {v(c_)}')
        e(f'v_bfe_u32 {v(d_)}, {v(b_)}, 7, 1')
        e(f'v_lshl_or_b32 {v(c_)}, {v(d_)}, 1, {v(c_)}')
        e(f'v_and_b32 {v(d_)}, 0xff01, {v(b_)}')
        e(f'v_or_b32 {v(c_)}, {v(c_)}, {v(d_)}')
        e(f'v_cmp_lt_u32 vcc, 0x1fff, {v(b_)}')
        e(f'v_cndmask_b32 {v(b_)}, {v(b_)}, {v(c_)}, vcc')
        e(f'v_bfe_u32 {v(c_)}, {v(b_)}, 2, 4')
        e(f'v_bfe_u32 {v(d_)}, {v(b_)}, 1, 1')
        e(f'v_lshl_add_u32 {v(c_)}, {v(d_)}, 4, {v(c_)}')
        e(f'v_mul_u32_u24 {v(c_)}, 1152, {v(c_)}')
        e(f'v_lshrrev_b32 {v(d_)}, 6, {v(b_)}')
        e(f'v_lshl_add_u32 {v(c_)}, {v(d_)}, 3, {v(c_)}')
        e(f'v_and_b32 {v(d_)}, 1, {v(b_)}')
        e(f'v_lshl_add_u32 {v(c_)}, {v(d_)}, 2, {v(c_)}')
        e(f's_mul_i32 s{sT1}, s{sB}, 36864')
        e(f'v_add_u32 {v(c_)}, s{sT1}, {v(c_)}')
        e(f'v_and_b32 {v(d_)}, 0x103, {v(a)}')
        e(f'v_cmp_lt_u32 vcc, 0x100, {v(d_)}')
        e(f'v_mov_b32 {v(d_)}, 0x7fffffff')
        e(f'v_cndmask_b32 {v(vOa)}, {v(c_)}, {v(d_)}, vcc')
        e(f'v_bfe_u32 {v(c_)}, v0, 3, 2')
        e(f'v_mul_u32_u24 {v(c_)}, {PART_BYTES}, {v(c_)}')
        e(f'v_and_b32 {v(d_)}, 7, v0')
        e(f'v_lshl_add_u32 {v(c_)}, {v(d_)}, 4, {v(c_)}')
        e(f'v_add_u32 {v(vBo)}, 0x400, {v(c_)}')
        e(f'v_and_b32 {v(c_)}, 31, v0')
        e(f'v_lshlrev_b32 {v(vFw)}, 7, {v(c_)}')
        e(f'v_and_b32 {v(c_)}, 3, v0')
        e(f'v_lshlrev_b32 {v(vFl)}, 2, {v(c_)}')
    vL32 = 9
    def rx_loads():
        e(f'buffer_load_dwordx4 {v(RG[0],4)}, {v(vLin)}, {srd(sWS)}, s{sRX} offen sc1', tag='RX')
        e(f'buffer_load_dwordx4 {v(RG[1],4)}, {v(vL32)}, {srd(sWS)}, s{sRX} offen offset:1024 sc1', tag='RX')
    def red_write():
        for k in range(1, 4):
            e(f'v_xor_b32 {v(vT[k])}, {k*2048}, {v(vRr)}')
        for k in range(1, 4):
            e(f'ds_write_b128 {v(vT[k])}, {v(O+8*k,4)} offset:{(k-1)*SLOT}')
            e(f'ds_write_b128 {v(vT[k])}, {v(O+8*k+4,4)} offset:{(k-1)*SLOT + 1024}')
    for t in range(16):
        step = 9 + t; n = TV + t; p, u = t // 8, t % 8
        head(step, [n])
        if t in opts.get('vst', ()): stamp()
        if t >= 1: release([n - 1])
        off = slot_of[n] * SLOT
        for k in range(4):
            s_, d2 = k // 2, k % 2
            e(f'ds_read_b64_tr_b16 {v(VF+4*k,2)}, {v(vVr[d2])} offset:{off + s_*2048}')
            e(f'ds_read_b64_tr_b16 {v(VF+4*k+2,2)}, {v(vVr[d2])} offset:{off + s_*2048 + 1024}')
        tail(step)
        if t == 3:
            lp = e.newlabel('Ltk'); ld = e.newlabel('Ltkd')
            e(f's_mov_b32 s{sT3}, 0x20000')
            e.wait_vm('TKL')
            saved = {r: list(e.vm[r]) for r in e.vm}
            e.label(lp)
            e(f'v_readfirstlane_b32 s{sT1}, {v(vTok)}')
            e(f's_cmp_lg_u32 s{sT1}, 0')
            e(f's_cbranch_scc1 {ld}')
            e(f's_sub_u32 s{sT3}, s{sT3}, 1')
            e(f's_cmp_eq_u32 s{sT3}, 0')
            e(f's_cbranch_scc1 {ld}')
            e(f's_sleep 8')
            e(f'buffer_load_dword {v(vTok)}, {v(TK0+2)}, {srd(sDBG)}, 0 offen sc1', tag='TKL')
            e.wait_vm_all()
            e(f's_branch {lp}')
            e.vm = saved
            e.label(ld)
        if t == 7:
            e(f'ds_read_b128 {v(TM,4)}, {v(vMxA)} offset:1024')
            e(f's_xor_b32 s{sRX}, s2, 16'); e(f's_lshl_b32 s{sRX}, s{sRX}, 14'); e(f's_add_u32 s{sRX}, s{sRX}, {hex(WS_OX)}')
            e(f's_add_u32 s{sRX}, s{sRX}, s{sW2k}')
            e(f'v_add_f32 {v(TM)}, {v(TM)}, {v(TM+1)}')
            e(f'v_add_f32 {v(TM+2)}, {v(TM+2)}, {v(TM+3)}')
            e(f'v_add_f32 {v(TM)}, {v(TM)}, {v(TM+2)}')
            e(f'v_log_f32 {v(TM+1)}, {v(TM)}')
            e(f'v_rcp_f32 {v(vRl)}, {v(TM)}')
            e(f'v_sub_f32 {v(vLse)}, {v(TM+1)}, {v(vNm)}')
        if t == 8:
            for k in range(1, 4):
                e(f'ds_read_b128 {v(TM+8,4)}, {v(vRr)} offset:{(k-1)*SLOT}')
                e(f'ds_read_b128 {v(TM+12,4)}, {v(vRr)} offset:{(k-1)*SLOT + 1024}')
                for i in range(0, 8, 2):
                    e(f'v_pk_add_f32 {v(TM+i,2)}, {v(TM+i,2)}, {v(TM+8+i,2)}')
            for i in range(8): e(f'v_mul_f32 {v(TM+i)}, {v(TM+i)}, {v(vRl)}')
            e(f's_xor_b32 s{sT1}, s{sRX}, {hex(16 << 14)}')
            e(f'v_cvt_pk_bf16_f32 {v(TM+12)}, {v(TM+6)}, {v(TM+7)}')
            e(f'v_cvt_pk_bf16_f32 {v(TM+13)}, {v(TM+6)}, {v(TM+7)}')
            for i in range(3): e(f'v_cvt_pk_bf16_f32 {v(TM+8+i)}, {v(TM+2*i)}, {v(TM+2*i+1)}')
            e(f'v_mov_b32 {v(TM+11)}, {v(vTok)}')
            e(f'v_permlane32_swap_b32 {v(TM+12)}, {v(TM+13)}')
            e(f'v_and_b32 {v(vL32)}, 0x1ff, {v(vLin)}')
            e(f'buffer_store_dwordx4 {v(TM+8,4)}, {v(vLin)}, {srd(sWS)}, s{sT1} offen sc1', tag='OX')
            e(f'v_mov_b32 {v(TM+14)}, {v(vLse)}')
            e(f'v_mov_b32 {v(TM+15)}, {v(vTok)}')
            e(f's_mov_b32 exec_hi, 0')
            e(f'buffer_store_dwordx4 {v(TM+12,4)}, {v(vLin)}, {srd(sWS)}, s{sT1} offen offset:1024 sc1', tag='OX')
            e(f's_mov_b64 exec, -1')
        if t == 10: setup_out()
        if t == opts.get('rxat', 13) and (not opts.get('noox') or opts.get('keepld')): rx_loads()
        if step in wo_read_at: wo_read(wo_read_at[step])
        sm = softmax(u + 1) if (p == 0 and u < 7) else []
        cuts = [0, 10, 20, 30, len(sm)] if sm else [0]*5
        for k in range(4):
            s_, d2 = k // 2, k % 2
            for x in sm[cuts[k]:cuts[k+1]]: e(x)
            c = '0' if (u == 0 and s_ == 0) else v(O+16*d2, 16)
            e(f'v_mfma_f32_32x32x16_bf16 {v(O+16*d2,16)}, {v(VF+4*k,4)}, {v(S0+16*u+4*s_,4)}, {c}')
        if t == 6:
            e(f'v_add_f32 {v(vL)}, {v(vL)}, {v(vL+1)}')
            xswap(vL, vT[0], 'v_add_f32')
            e(f'ds_write_b32 {v(vMo)}, {v(vL)} offset:1024')
        if t == 7:
            red_write()
            for i in range(8): e(f'v_mov_b32 {v(TM+i)}, {v(O+i)}')
            stamp()
    assert WS_OX % (32 << 14) == 0 and RS % 16384 == 0
    stamp()
    red_write()
    lp = e.newlabel('Lrx'); ld = e.newlabel('Lrxd')
    e(f's_mov_b32 s{sT3}, 0x20000')
    e.label(lp)
    e.wait_vm_all()
    e(f'v_xor_b32 {v(TM)}, {v(RG[0]+3)}, {v(vTok)}')
    e(f'v_xor_b32 {v(TM+1)}, {v(RG[1]+3)}, {v(vTok)}')
    e(f'v_or_b32 {v(TM)}, {v(TM)}, {v(TM+1)}')
    e(f'v_cmp_ne_u32 vcc, 0, {v(TM)}')
    e.nop(4)
    e(f's_cbranch_vccz {ld}')
    if opts.get('noox'): e(f's_branch {ld}')
    e(f's_sub_u32 s{sT3}, s{sT3}, 1')
    e(f's_cmp_eq_u32 s{sT3}, 0')
    e(f's_cbranch_scc1 {ld}')
    if opts.get('ox_pol', ' sc1') != ' sc1': e('buffer_wbl2 sc1')
    e(f's_sleep 8')
    rx_loads()
    e(f's_branch {lp}')
    for r in e.vm: e.vm[r] = []
    e.label(ld)
    e(f's_mov_b32 s{sT3}, 0xffff0000')
    t0, t1 = 38, 39
    e(f'v_sub_f32 {v(t0)}, {v(vLse)}, {v(RG[1]+2)}')
    e(f'v_sub_f32 {v(t1)}, {v(RG[1]+2)}, {v(vLse)}')
    e(f'v_cmp_lt_u32 vcc, 31, v0')
    e(f'v_exp_f32 {v(t0)}, {v(t0)}'); e(f'v_exp_f32 {v(t1)}, {v(t1)}')
    e(f'v_add_f32 {v(t0)}, 1.0, {v(t0)}'); e(f'v_add_f32 {v(t1)}, 1.0, {v(t1)}')
    e(f'v_rcp_f32 {v(t0)}, {v(t0)}'); e(f'v_rcp_f32 {v(t1)}, {v(t1)}')
    e(f'v_cndmask_b32 {v(RG[1])}, {v(RG[1])}, {v(RG[1]+1)}, vcc')
    gsrc = [RG[0], RG[0]+1, RG[0]+2, RG[1]]
    for i in range(4):
        e(f'v_lshlrev_b32 {v(TM+2*i)}, 16, {v(gsrc[i])}'); e(f'v_and_b32 {v(TM+2*i+1)}, s{sT3}, {v(gsrc[i])}')
    e(f'v_mul_f32 {v(t1)}, {v(t1)}, {v(vRl)}')
    for i in range(8): e(f'v_mul_f32 {v(TM+i)}, {v(TM+i)}, {v(t0)}')
    OI = slot_of[TEND-2] * SLOT
    e(f's_add_u32 s{sT1}, s{sW1k}, {OI}')
    e(f'v_add_u32 {v(vT[0])}, s{sT1}, {v(vLin)}')
    e(f's_and_b32 s{sT2}, s{sWave}, 1'); e(f's_lshl_b32 s{sT0}, s{sT2}, 3'); e(f's_lshl_b32 s{sT1}, s{sT2}, 8')
    e(f'v_add_u32 {v(vRw)}, s{sT1}, {v(vOr)}')
    e.wait_lg(0)
    e('s_barrier')
    for k in range(1, 4):
        e(f'ds_read_b128 {v(O+8*k,4)}, {v(vRr)} offset:{(k-1)*SLOT}')
        e(f'ds_read_b128 {v(O+8*k+4,4)}, {v(vRr)} offset:{(k-1)*SLOT + 1024}')
    for k in range(1, 4):
        for i in range(0, 8, 2):
            e(f'v_pk_add_f32 {v(O+i,2)}, {v(O+i,2)}, {v(O+8*k+i,2)}')
    for i in range(8): e(f'v_fma_f32 {v(O+i)}, {v(O+i)}, {v(t1)}, {v(TM+i)}')
    for i in range(4): e(f'v_cvt_pk_bf16_f32 {v(TM+i)}, {v(O+2*i)}, {v(O+2*i+1)}')
    e(f'ds_write_b128 {v(vT[0])}, {v(TM,4)}')
    e.wait_lg(0)
    e('s_barrier')
    lo = lambda k: S0 + 16 * (k // 2) + 4 * (k % 2)
    for ck in range(4):
        for qt in range(2):
            e(f'ds_read_b128 {v(lo(2*ck+qt),4)}, {v(vOr)} offset:{OI + ck*2048 + qt*256}')
    for ck in range(4):
        e(f'ds_read_b128 {v(lo(8+ck),4)}, {v(vRw)} offset:{OI + ck*2048}')
    e(f's_mul_i32 s{sT1}, s2, {PART_BYTES}')
    e(f's_lshl_b32 s{sT3}, s{sWave}, 9')
    e(f'v_lshlrev_b32 {v(vT[1])}, 3, v0')
    e(f's_add_u32 s{sT3}, s{sT3}, s{sT1}'); e(f's_add_u32 s{sT3}, s{sT3}, 32768')
    e(f's_lshl_b32 s{sT2}, s{sWave}, 12'); e(f's_add_u32 s{sT1}, s{sT1}, s{sT2}')
    AC = 84
    DD = [120, 124, 64, 68]
    def fin(j):
        D = DD[j]
        for qt in range(2):
            A0 = AC + 8*j + 4*qt
            e(f'v_cvt_pk_bf16_f32 {v(D+2*qt)}, {v(A0)}, {v(A0+1)}')
            e(f'v_cvt_pk_bf16_f32 {v(D+2*qt+1)}, {v(A0+2)}, {v(A0+3)}')
        e(f'buffer_store_dwordx4 {v(D,4)}, {v(vLin)}, {srd(sWS)}, s{sT1} offen offset:{j*1024}{st_pol}', tag='OUT')
    for j in range(4):
        for ck in range(4):
            for qt in range(2):
                A0 = AC + 8*j + 4*qt
                c = '0' if ck == 0 else v(A0, 4)
                e(f'v_mfma_f32_16x16x32_bf16 {v(A0,4)}, {v(WF[ck][j],4)}, {v(lo(2*ck+qt),4)}, {c}')
        c = '0' if j == 0 else v(AC+32, 4)
        e(f'v_mfma_f32_16x16x32_bf16 {v(AC+32,4)}, {v(WF[j][4],4)}, {v(lo(8+j),4)}, {c}')
        if j >= 1: fin(j - 1)
    fin(3)
    e(f'v_cvt_pk_bf16_f32 {v(72)}, {v(AC+32)}, {v(AC+33)}')
    e(f'v_cvt_pk_bf16_f32 {v(73)}, {v(AC+34)}, {v(AC+35)}')
    e(f'buffer_store_dwordx2 {v(72,2)}, {v(vT[1])}, {srd(sWS)}, s{sT3} offen{st_pol}', tag='OUT')
    stamp()
    e(f's_lshl_b32 s{sT1}, s{sB}, 5'); e(f's_lshl_b32 s{sT2}, s{sWave}, 2'); e(f's_add_u32 s{sT1}, s{sT1}, s{sT2}')
    e(f's_mul_i32 s{sT0}, s{sT1}, {PART_BYTES}')
    e(f's_and_b32 s{sT3}, s2, 31'); e(f's_mul_i32 s{sT1}, s{sT3}, 1152'); e(f's_add_u32 s{sT0}, s{sT0}, s{sT1}')
    e(f's_add_u32 s{sT1}, s{sT0}, {PART_BYTES}'); e(f's_add_u32 s{sT2}, s{sT0}, {2*PART_BYTES}'); e(f's_add_u32 s{sG0}, s{sT0}, {3*PART_BYTES}')
    e(f's_lshl_b32 s{sVb}, s{sB}, 12'); e(f's_lshl_b32 s{sT3}, s{sT3}, 2'); e(f's_add_u32 s{sVb}, s{sVb}, s{sT3}'); e(f's_add_u32 s{sVb}, s{sVb}, {hex(WS_FLAG)}')
    e(f's_lshl_b32 s{sKc}, s2, 7'); e(f's_lshl_b32 s{sT3}, s{sWave}, 4'); e(f's_add_u32 s{sKc}, s{sKc}, s{sT3}'); e(f's_add_u32 s{sKc}, s{sKc}, {hex(WS_FLAG)}')
    e(f's_mul_i32 s{sXc}, s{sWave}, 3072'); e(f's_add_u32 s{sXc}, s{sXc}, {FA}')
    e(f'v_lshlrev_b32 {v(vT[3])}, 5, v0')
    e(f'v_add_u32 {v(vT[3])}, s{sXc}, {v(vT[3])}')
    e.wait_vm_all()
    e('s_barrier')
    lf = e.newlabel('Lfl')
    e(f's_cmp_lg_u32 s{sWave}, 0'); e(f's_cbranch_scc1 {lf}')
    e(f's_mov_b32 exec_hi, 0')
    e(f'buffer_store_dword {v(vTok)}, {v(vFw)}, {srd(sWS)}, s{sVb} offen sc1', tag='FLG')
    e(f's_mov_b64 exec, -1')
    e.label(lf)
    stamp()
    sp_ = e.newlabel('Lsm'); sd_ = e.newlabel('Lsmd')
    e(f's_mov_b32 s{sT3}, 0x20000')
    if opts.get('poll2'):
        NP = opts['poll2']
        pr = [vT[0], vT[1], vT[2]][:NP]
        for i in range(NP - 1):
            e(f'buffer_load_dword {v(pr[i])}, {v(vFl)}, {srd(sWS)}, s{sKc} offen sc1', tag=f'SM{i}')
            e(f's_sleep {opts.get("pgap", 6)}')
        e.label(sp_)
        for i in range(NP):
            j = (i + NP - 1) % NP
            e.raw(f'  buffer_load_dword {v(pr[j])}, {v(vFl)}, {srd(sWS)}, s{sKc} offen sc1')
            e.raw(f'  s_waitcnt vmcnt({NP-1})')
            e.raw(f'  v_cmp_ne_u32 vcc, {v(pr[i])}, {v(vTok)}')
            e.raw(f'  s_nop 4')
            e.raw(f'  s_cbranch_vccz {sd_}')
        e(f's_sub_u32 s{sT3}, s{sT3}, 1')
        e(f's_cmp_lg_u32 s{sT3}, 0')
        e(f's_cbranch_scc1 {sp_}')
        for r in e.vm: e.vm[r] = []
    else:
        e.label(sp_)
        e(f'buffer_load_dword {v(vT[0])}, {v(vFl)}, {srd(sWS)}, s{sKc} offen sc1', tag='SM')
        e.wait_vm_all()
        e(f'v_cmp_ne_u32 vcc, {v(vT[0])}, {v(vTok)}')
        e.nop(4)
        e(f's_cbranch_vccz {sd_}')
        e(f's_sub_u32 s{sT3}, s{sT3}, 1')
        e(f's_cmp_eq_u32 s{sT3}, 0')
        e(f's_cbranch_scc1 {sd_}')
        e(f's_sleep {opts.get("ssleep", 1)}')
        e(f's_branch {sp_}')
    e.label(sd_)
    stamp()
    LD = 128
    for l, (va, so) in enumerate([(vLin, sT0), (vLin, sT1), (vLin, sT2), (vLin, sG0), (vBo, sT0)]):
        e(f'buffer_load_dwordx4 {v(LD+4*l,4)}, {v(va)}, {srd(sWS)}, s{so} offen sc1', tag=f'RD{l}')
    e(f's_mov_b32 s{sT3}, 0xffff0000')
    ACCR = 160; U = 176
    for l in range(5):
        e.wait_vm(f'RD{l}')
        base = ACCR if l < 4 else ACCR + 8
        first = l in (0, 4)
        for k in range(4):
            d0 = base + 2*k if first else U + 2*k
            e(f'v_lshlrev_b32 {v(d0)}, 16, {v(LD+4*l+k)}'); e(f'v_and_b32 {v(d0+1)}, s{sT3}, {v(LD+4*l+k)}')
        if not first:
            for k in range(4):
                e(f'v_pk_add_f32 {v(base+2*k,2)}, {v(base+2*k,2)}, {v(U+2*k,2)}')
        if l == 3:
            e(f'ds_write_b128 {v(vT[3])}, {v(ACCR,4)}')
            e(f'ds_write_b128 {v(vT[3])}, {v(ACCR+4,4)} offset:16')
    e(f's_mov_b32 exec_hi, 0')
    e(f'ds_write_b128 {v(vT[3])}, {v(ACCR+8,4)} offset:2048')
    e(f'ds_write_b128 {v(vT[3])}, {v(ACCR+12,4)} offset:2064')
    e(f's_mov_b64 exec, -1')
    e.wait_lg(0)
    e('s_barrier')
    e(f's_cmp_ge_u32 s{sWave}, 6'); e('s_cbranch_scc1 L_end1')
    for w in range(8):
        e(f'ds_read_b64 {v(LD+2*w,2)}, {v(vFa)} offset:{w*3072}')
    for w in range(1, 8): e(f'v_pk_add_f32 {v(LD,2)}, {v(LD,2)}, {v(LD+2*w,2)}')
    lq = e.newlabel('Lq')
    e(f's_cmp_lt_u32 s{sWave}, 4'); e(f's_cbranch_scc1 {lq}')
    for perm in ('[1,0,3,2]', '[2,3,0,1]'):
        for k in range(2):
            e(f'v_add_f32_dpp {v(LD+k)}, {v(LD+k)}, {v(LD+k)} quad_perm:{perm} row_mask:0xf bank_mask:0xf')
    e.label(lq)
    e(f'v_cvt_pk_bf16_f32 {v(LD)}, {v(LD)}, {v(LD+1)}')
    e(f'buffer_store_dword {v(LD)}, {v(vOa)}, {srd(sOUT)}, 0 offen', tag='FIN')
    if stamps:
        e.wait_vm_all()
        stamp()
        e(f's_cmp_lg_u32 s{sWave}, 0'); e('s_cbranch_scc1 L_end1')
        e(f's_lshl_b32 s{sT1}, s2, 7'); e(f's_add_u32 s{sT1}, s{sT1}, {hex(WS_STAMP)}')
        e('s_mov_b64 exec, 1')
        e(f'v_mov_b32 {v(vT[2])}, 0')
        for i in range(16):
            if i < nstamp[0]:
                e(f'v_mov_b32 {v(vT[0])}, s{sStamp+2*i}'); e(f'v_mov_b32 {v(vT[1])}, s{sStamp+2*i+1}')
            else:
                e(f'v_mov_b32 {v(vT[0])}, 0'); e(f'v_mov_b32 {v(vT[1])}, 0')
            e(f'buffer_store_dwordx2 {v(vT[0],2)}, {v(vT[2])}, {srd(sWS)}, s{sT1} offen offset:{8*i}')
            e.nop(2)
    e.label('L_end1')
    e('s_endpgm')
    k1_lines = e.lines
    n1 = e.ninst

    hdr = open('standalone__sliding_block_cached__sampling.s.ref').read().split('\n')
    hdr = [l for l in hdr if l.startswith(';') and '@launch' not in l and 'Override' not in l and 'grid=ceil' not in l]
    out = hdr + [
        f'; @launch grid=(256,1,1) block=(512,1,1) lds={LDS_BYTES}',
        '.amdgcn_target "amdgcn-amd-amdhsa--gfx950"', '.text'] + k1_lines
    def kd(name, nv, ns, acc):
        return ['.section .rodata,"a"', '.p2align 6', f'.amdhsa_kernel {name}',
                f'  .amdhsa_next_free_vgpr {nv}', f'  .amdhsa_next_free_sgpr {ns}', f'  .amdhsa_accum_offset {acc}',
                '  .amdhsa_group_segment_fixed_size 0', '  .amdhsa_kernarg_size 64', '  .amdhsa_user_sgpr_count 2',
                '  .amdhsa_user_sgpr_kernarg_segment_ptr 1', '  .amdhsa_system_sgpr_workgroup_id_x 1', '.end_amdhsa_kernel']
    out += kd(K1, 256, 102, 256)
    print('K1 instrs', n1, 'QI', QI, 'slots', [slot_of[n] for n in range(TEND)], file=sys.stderr)
    return '\n'.join(out) + '\n'

if __name__ == '__main__':
    E = 'exp/'
    b = dict(dmafirst=True)
    st = dict(stamps=True, vst=(0, 12), kst=(0, 2, 4), qst=(0, 4))
    open(E + 'v22.s', 'w').write(gen(dict(b)))
    open(E + 'v22s.s', 'w').write(gen(dict(b, **st)))
    open(E + 'v22a.s', 'w').write(gen(dict(b, nr=6)))
    open(E + 'v22b.s', 'w').write(gen(dict(b, nr=10)))
    open(E + 'v22c.s', 'w').write(gen(dict(b, nr=8, ka=2)))
```

```python
from gen22 import gen
E = 'exp/'
b = dict(dmafirst=True, nr=8)
open(E + 'v22o.s', 'w').write(gen(dict(b, gbit=5)))
open(E + 'v22p.s', 'w').write(gen(dict(b, ka=2, gbit=6)))
open(E + 'v22q.s', 'w').write(gen(dict(b, ka=2, gbit=7)))
open(E + 'v22r.s', 'w').write(gen(dict(b, ka=2, gbit=5, nr=10, nb=10)))
open(E + 'v22t.s', 'w').write(gen(dict(b, ka=2, gbit=5, nb=7, bq=2)))
open(E + 'v22u.s', 'w').write(gen(dict(b, ka=2, gbit=5, qbar=0, la=3)))
```

```python
import sys, math, struct
from emit import Emitter
from gen6 import f32bits
K1 = 'standalone__sliding_block_cached__sampling_kernel'
WS_FLAG = 0x1800000

SLOT = 16384
NSLOT = 7
SCR = NSLOT * SLOT
MX = SCR + 40960
LS = MX + 1024
TOK = LS + 1024
LDS_BYTES = TOK + 64
RS = 4 * SLOT
WS_EPOCH = 0x1000000
WS_OX = 0x1100000
WS_STAMP = 0x20000000
PART_BYTES = 36864
NW, NK, NV = 18, 16, 16
TK, TV, TEND = NW, NW + NK, NW + NK + NV

def gen(opts):
    stamps = opts.get('stamps', False)
    st_pol = opts.get('st_pol', ' sc1'); k2_pol = opts.get('k2_pol', '')
    wq_pol = opts.get('wq_pol', ''); wo_pol = opts.get('wo_pol', ''); x_pol = opts.get('x_pol', '')
    e = Emitter(roles=('A', 'B'))
    NR = opts.get('nr', 8)
    NB = opts.get('nb', NR)
    sK, sV, sWQ, sX, sWO, sWS, sDBG = 20, 24, 28, 32, 36, 40, 44
    sWave, sHkv, sB, sSp = 48, 49, 50, 51
    sW2k, sT0, sT1, sT2, sT3 = 52, 53, 54, 55, 56
    sWQb, sWOb, sKc = 57, 58, 59
    sC = 60
    sKs, sG0, sVb, sW1k = 62, 63, 64, 65
    sStamp = 66
    sI4, sHH = 98, 99
    sXc, sXb = 100, 101
    nstamp = [0]
    srd = lambda n: f's[{n}:{n+3}]'
    e.role_cond[frozenset('B')] = (f's_bitcmp1_b32 s2, {opts.get("gbit", 4)}', 's_cbranch_scc0')
    e.role_cond[frozenset('A')] = (f's_bitcmp1_b32 s2, {opts.get("gbit", 4)}', 's_cbranch_scc1')
    def stamp():
        if stamps:
            i = nstamp[0]; nstamp[0] += 1
            assert i < 16
            e.wait_lg(0)
            e(f's_memrealtime s[{sStamp+2*i}:{sStamp+2*i+1}]')
            e.wait_lg(0)
    v = lambda n, c=1: f'v{n}' if c == 1 else f'v[{n}:{n+c-1}]'
    vLin, vLc, vLr = 1, 2, 3
    vKd = [4, 5]; vVd = 6; vVr = [7, 8]; vKr = list(range(9, 17))
    vWr = 17; vWx = 18; vMxA = 19; vMo = 20; vOr = 21
    vL = 22
    vNm = 24; vM = 25; vRw = 26; vRr = 27
    vT = [28, 29, 30, 31]
    S0 = 128; QF = 96; KF = 64; W0R = 44
    vWd = [32, 33]; vXd = 34; vQr = [36, 37]; vXb = [38, 39, 40, 41]; vXa = [42, 43, 44, 45]
    QA = 48; QB = 64; QACC = 112
    vKw = 35
    TK0 = 32

    e.raw(f'.globl {K1}'); e.raw('.p2align 8'); e.raw(f'.type {K1},@function'); e.label(K1)
    e('s_cmp_ge_u32 s2, 256')
    e('s_cbranch_scc1 L_end1')
    e('s_load_dwordx16 s[4:19], s[0:1], 0')
    if stamps:
        e(f's_memrealtime s[{sStamp}:{sStamp+1}]'); nstamp[0] = 1
    e(f'v_lshrrev_b32 {v(vT[0])}, 6, v0')
    e(f'v_and_b32 v0, 63, v0')
    e(f'v_readfirstlane_b32 s{sWave}, {v(vT[0])}')
    e(f's_and_b32 s{sHkv}, s2, 7'); e(f's_lshl_b32 s{sHkv}, s{sHkv}, 1')
    e(f's_bfe_u32 s{sT0}, s2, 0x10003'); e(f's_or_b32 s{sHkv}, s{sHkv}, s{sT0}')
    e(f's_lshr_b32 s{sB}, s2, 5')
    e(f'v_lshrrev_b32 {v(vT[0])}, 5, v0')
    e(f'v_and_b32 {v(vT[1])}, 31, v0')
    e(f'v_lshlrev_b32 {v(vT[2])}, 2, {v(vT[0])}')
    e(f'v_xor_b32 {v(vT[1])}, {v(vT[1])}, {v(vT[2])}')
    e(f'v_lshlrev_b32 {v(vT[1])}, 4, {v(vT[1])}')
    e(f'v_lshl_add_u32 {v(vWd[0])}, {v(vT[0])}, 13, {v(vT[1])}')
    e(f'v_xor_b32 {v(vWd[1])}, 0x80, {v(vWd[0])}')
    e(f'v_add_u32 {v(vWd[1])}, {16384-1024}, {v(vWd[1])}')
    e(f's_lshl_b32 s{sW2k}, s{sWave}, 11')
    e(f's_lshl_b32 s{sWQb}, s{sWave}, 15'); e(f's_lshl_b32 s{sT1}, s{sHkv}, 9'); e(f's_add_u32 s{sWQb}, s{sWQb}, s{sT1}')
    e(f's_bfe_u32 s{sKs}, s2, 0x20003'); e(f's_lshl1_add_u32 s{sKs}, s{sKs}, s{sB}')
    e(f's_cmp_ge_u32 s{sKs}, 9'); e(f's_cselect_b32 s{sT1}, 9, 0'); e(f's_sub_u32 s{sKs}, s{sKs}, s{sT1}')
    if not opts.get('rot', True): e(f's_mov_b32 s{sKs}, 0')
    e(f's_mov_b32 s{sKc}, s{sKs}')
    e(f's_and_b32 s{sI4}, s{sWave}, 3'); e(f's_lshr_b32 s{sHH}, s{sWave}, 2')
    e(f'v_lshrrev_b32 {v(vT[0])}, 3, v0')
    e(f'v_lshrrev_b32 {v(vLr)}, 4, v0')
    e(f's_and_b32 s{sT1}, s{sWave}, 1'); e(f's_lshl_b32 s{sT1}, s{sT1}, 2')
    e(f'v_or_b32 {v(vT[1])}, s{sT1}, {v(vLr)}')
    e(f'v_and_b32 {v(vT[2])}, 7, v0')
    e(f'v_xor_b32 {v(vT[1])}, {v(vT[1])}, {v(vT[2])}')
    e(f's_movk_i32 s{sT1}, 1152')
    e(f'v_mul_lo_u32 {v(vT[0])}, {v(vT[0])}, s{sT1}')
    e(f'v_lshl_add_u32 {v(vXd)}, {v(vT[1])}, 4, {v(vT[0])}')
    e(f's_mul_i32 s{sXb}, s{sB}, 36864'); e(f's_mul_i32 s{sT0}, s{sI4}, 9216'); e(f's_add_u32 s{sXb}, s{sXb}, s{sT0}')
    e(f's_add_u32 s{sXc}, s{sKs}, s{sHH}'); e(f's_cmp_eq_u32 s{sXc}, 9'); e(f's_cselect_b32 s{sXc}, 0, s{sXc}')
    e(f's_lshl_b32 s{sT2}, s{sI4}, 10'); e(f's_add_u32 s{sT2}, s{sT2}, {SCR}')
    e(f's_lshl_b32 s{sW1k}, s{sWave}, 10')
    e.wait_lg(0)
    e(f's_mov_b32 s{sX}, s4'); e(f's_mov_b32 s{sX+1}, s5'); e(f's_mov_b32 s{sX+2}, {256*1152}'); e(f's_mov_b32 s{sX+3}, 0x20000')
    e(f's_mov_b32 s{sWQ}, s10'); e(f's_mov_b32 s{sWQ+1}, s11'); e(f's_mov_b32 s{sWQ+2}, {576*8192}'); e(f's_mov_b32 s{sWQ+3}, 0x20000')

    slot_of = {}
    free = list(range(NSLOT))
    nxt = [0]
    hooks = []
    def x_dma(k):
        e(f's_lshl_b32 s{sT1}, s{sXc}, 12'); e(f's_add_u32 m0, s{sT1}, s{sT2}')
        e(f's_lshl_b32 s{sT1}, s{sXc}, 7'); e(f's_add_u32 s{sT1}, s{sT1}, s{sXb}')
        e(f'buffer_load_dwordx4 {v(vXd)}, {srd(sX)}, s{sT1} offen{opts.get("w0_pol", x_pol) if k == 0 else x_pol} lds', tag=f'X{k}')
        if k < 4:
            e(f's_add_u32 s{sXc}, s{sXc}, 2'); e(f's_cmp_ge_u32 s{sXc}, 9'); e(f's_cselect_b32 s{sT1}, 9, 0'); e(f's_sub_u32 s{sXc}, s{sXc}, s{sT1}')
    def dma_tile(n):
        slot = slot_of[n]
        if n < TK and n % 4 == 0: x_dma(n // 4)
        e(f's_add_u32 m0, s{sW2k}, {slot*SLOT}')
        if n < TK:
            if n % 2 == 0:
                e(f's_lshl_b32 s{sG0}, s{sKs}, 19'); e(f's_add_u32 s{sG0}, s{sG0}, s{sWQb}')
            else:
                e(f's_add_u32 s{sG0}, s{sG0}, {32*8192}')
            for i in range(2):
                for h in hooks: h()
                e(f'buffer_load_dwordx4 {v(vWd[i])}, {srd(sWQ)}, s{sG0} offen offset:{i*1024}{opts.get("w0_pol", wq_pol) if n < 2 else wq_pol} lds', tag=f'T{n}')
            if n % 2 == 1 and n < TK - 1:
                e(f's_add_u32 s{sKs}, s{sKs}, 1'); e(f's_cmp_eq_u32 s{sKs}, 9'); e(f's_cselect_b32 s{sKs}, 0, s{sKs}')
        elif opts.get('nokv'):
            pass
        elif n < TV:
            e(f's_add_u32 s{sT1}, s{sW2k}, {(n-TK)*SLOT}')
            for i in range(2):
                for h in hooks: h()
                e(f'buffer_load_dwordx4 {v(vKd[i])}, {srd(sK)}, s{sT1} offen offset:{i*1024} nt lds', tag=f'T{n}')
        else:
            p, u = (n - TV) // 8, (n - TV) % 8
            if p: e(f's_xor_b32 s{sT1}, s{sVb}, 0x80'); e(f's_add_u32 s{sT1}, s{sT1}, {u*32768}')
            else: e(f's_add_u32 s{sT1}, s{sVb}, {u*32768}')
            e(f'buffer_load_dwordx4 {v(vVd)}, {srd(sV)}, s{sT1} offen nt lds', tag=f'T{n}')
            e(f's_add_u32 s{sT1}, s{sT1}, 1024')
            e(f'buffer_load_dwordx4 {v(vVd)}, {srd(sV)}, s{sT1} offen offset:1024 nt lds', tag=f'T{n}')
    def kreg_load(j):
        if opts.get('nokv'): return
        e(f's_add_u32 s{sT1}, s{sW2k}, {j*SLOT}')
        for i in range(2):
            e(f'buffer_load_dwordx4 {v(S0+8*j+4*i,4)}, {v(vKd[i])}, {srd(sK)}, s{sT1} offen offset:{i*1024} nt', tag=f'T{TK+j}')
    reserve = [0]
    rn = {'A': 0, 'B': 0}
    def kv_issue(cnt, limit=None):
        todo = {}
        for r in 'BA':
            l = []
            while len(l) < cnt.get(r, 0) and rn[r] < 32 and (limit is None or rn[r] < limit):
                j = rn[r]
                if j >= NR and (TK + j) not in slot_of:
                    cand = [x for x in free if j < 16 or x < 4]
                    if not cand or len(free) <= reserve[0]: break
                    sl = cand[0] if j >= 16 else max(cand)
                    slot_of[TK + j] = sl; free.remove(sl)
                l.append(j); rn[r] += 1
            todo[r] = l
        def body(l):
            for j in l:
                if j < NR: kreg_load(j)
                else: dma_tile(TK + j)
        if todo['A'] == todo['B']: body(todo['A'])
        else:
            for r in 'AB':
                if todo[r]:
                    with e.only(r): body(todo[r])
    def kreg_write(u):
        assert min(rn.values()) > 2*u + 1, ('reg tile not issued', u, rn)
        for par in range(2):
            n = TK + 2*u + par
            if u % 2 == 1: slot_of[n] = 7 + par
            else:
                slot_of[n] = min(free); free.remove(slot_of[n])
        e.wait_vm(f'T{TK+2*u}', f'T{TK+2*u+1}')
        for par in range(2):
            off = slot_of[TK+2*u+par] * SLOT
            if off >= 65536:
                e(f'v_add_u32 {v(vT[3])}, {hex(off & ~0xffff)}, {v(vKw)}'); r = vT[3]; off &= 0xffff
            else: r = vKw
            for i in range(2):
                e(f'ds_write_b128 {v(r)}, {v(S0+16*u+8*par+4*i,4)} offset:{off + i*1024}')
    def issue(maxn):
        k = 0
        while nxt[0] < TK and k < maxn and free:
            n = nxt[0]
            s = max(free)
            free.remove(s); slot_of[n] = s; nxt[0] += 1; k += 1
            dma_tile(n)
    def release(ns):
        for n in ns:
            if slot_of[n] < 7: free.append(slot_of[n])
        free.sort()

    def mid_setup():
        e(f's_bfe_u32 s{sSp}, s2, 0x10004')
        e(f's_lshl_b32 s{sT0}, s{sB}, 4'); e(f's_add_u32 s{sT0}, s{sT0}, s{sHkv}'); e(f's_lshl_b32 s{sT0}, s{sT0}, 21')
        e(f's_lshl_b32 s{sT1}, s{sSp}, 18'); e(f's_add_u32 s{sT0}, s{sT0}, s{sT1}'); e(f's_add_u32 s{sT0}, s{sT0}, {6144*256}')
        e(f's_add_u32 s{sK}, s6, s{sT0}'); e(f's_addc_u32 s{sK+1}, s7, 0'); e(f's_mov_b32 s{sK+2}, 0x40000'); e(f's_mov_b32 s{sK+3}, 0x20000')
        e(f's_add_u32 s{sV}, s8, s{sT0}'); e(f's_addc_u32 s{sV+1}, s9, 0'); e(f's_mov_b32 s{sV+2}, 0x40000'); e(f's_mov_b32 s{sV+3}, 0x20000')
        e(f's_and_b32 s{sT1}, s{sWave}, 1'); e(f's_lshl_b32 s{sT1}, s{sT1}, 3')
        e(f'v_xor_b32 {v(vT[0])}, {v(vLr)}, {v(vLc)}')
        e(f'v_xor_b32 {v(vT[0])}, s{sT1}, {v(vT[0])}')
        e(f'v_lshlrev_b32 {v(vT[0])}, 4, {v(vT[0])}')
        e(f'v_lshl_add_u32 {v(vKd[0])}, {v(vLr)}, 8, {v(vT[0])}')
        e(f'v_xor_b32 {v(vKd[1])}, 64, {v(vKd[0])}')
    e(f'v_and_b32 {v(vLc)}, 15, v0')
    BP = opts.get('bpre', 0)
    if BP:
        with e.only('B'):
            mid_setup()
            for j in range(BP): kreg_load(j)
    issue(2)
    mid_setup()
    with e.only('B'):
        if opts.get('bar1', True): e('s_barrier')
        for j in range(BP, NB): kreg_load(j)
        rn['B'] = NB
        if opts.get('bar2', True): e('s_barrier')
    issue(opts.get('w1', 1))

    e(f'v_lshlrev_b32 {v(vLin)}, 4, v0')
    e(f'v_add_u32 {v(vKw)}, s{sW2k}, {v(vLin)}')
    e(f'v_lshrrev_b32 {v(vT[0])}, 2, {v(vLc)}')
    e(f'v_xor_b32 {v(vT[1])}, s{sWave}, {v(vT[0])}')
    e(f'v_lshlrev_b32 {v(vT[1])}, 6, {v(vT[1])}')
    e(f'v_lshl_add_u32 {v(vT[1])}, {v(vT[0])}, 9, {v(vT[1])}')
    e(f'v_lshrrev_b32 {v(vT[2])}, 5, v0')
    e(f'v_lshl_add_u32 {v(vT[1])}, {v(vT[2])}, 12, {v(vT[1])}')
    e(f'v_and_b32 {v(vT[3])}, 1, {v(vLr)}')
    e(f'v_lshl_add_u32 {v(vT[1])}, {v(vT[3])}, 5, {v(vT[1])}')
    e(f'v_and_b32 {v(vT[3])}, 3, {v(vLc)}')
    e(f'v_lshl_add_u32 {v(vQr[0])}, {v(vT[3])}, 3, {v(vT[1])}')
    e(f'v_add_u32 {v(vQr[1])}, 0x10000, {v(vQr[0])}')
    e(f'v_and_b32 {v(vT[0])}, 31, v0')
    e(f'v_bfe_u32 {v(vT[1])}, v0, 1, 3')
    e(f'v_xor_b32 {v(vT[1])}, {v(vT[1])}, {v(vT[2])}')
    e(f'v_lshlrev_b32 {v(vT[1])}, 4, {v(vT[1])}')
    e(f'v_lshl_add_u32 {v(vXb[0])}, {v(vT[0])}, 7, {v(vT[1])}')
    for k in range(1, 4): e(f'v_xor_b32 {v(vXb[k])}, {32*k}, {v(vXb[0])}')

    def setup_k():
        e(f'v_lshrrev_b32 {v(vT[0])}, 5, v0')
        e(f'v_xor_b32 {v(vT[0])}, {v(vT[0])}, {v(vLc)}')
        e(f'v_lshlrev_b32 {v(vT[0])}, 4, {v(vT[0])}')
        e(f'v_and_b32 {v(vT[1])}, 31, v0')
        e(f'v_lshl_add_u32 {v(vT[0])}, {v(vT[1])}, 8, {v(vT[0])}')
        e(f's_and_b32 s{sT1}, s{sWave}, 1'); e(f's_lshl_b32 s{sT1}, s{sT1}, 13')
        e(f'v_add_u32 {v(vKr[0])}, s{sT1}, {v(vT[0])}')
        for j in range(1, 8): e(f'v_xor_b32 {v(vKr[j])}, {32*j}, {v(vKr[0])}')
    def setup_w():
        e(f's_mov_b32 s{sWO}, s12'); e(f's_mov_b32 s{sWO+1}, s13'); e(f's_mov_b32 s{sWO+2}, {4096*1152}'); e(f's_mov_b32 s{sWO+3}, 0x20000')
        e(f's_mov_b32 s{sWS}, s18'); e(f's_mov_b32 s{sWS+1}, s19'); e(f's_mov_b32 s{sWS+2}, 0x30000000'); e(f's_mov_b32 s{sWS+3}, 0x20000')
        e(f's_mov_b32 s{sDBG}, s16'); e(f's_mov_b32 s{sDBG+1}, s17'); e(f's_mov_b32 s{sDBG+2}, 256'); e(f's_mov_b32 s{sDBG+3}, 0x20000')
        e(f's_lshl_b32 s{sT1}, s{sHkv}, 2'); e(f's_add_u32 s{sT1}, s{sT1}, s{sSp}')
        e(f's_mul_i32 s{sWOb}, s{sT1}, {64*1152}'); e(f's_add_u32 s{sWOb}, s{sWOb}, s{sW1k}')
        e(f'v_mov_b32 {v(TK0)}, {hex(WS_EPOCH)}'); e(f'v_mov_b32 {v(TK0+2)}, 0')
    def setup_v():
        e(f's_mov_b32 s{sC}, {hex(f32bits(math.log2(math.e) / math.sqrt(128.0)))}'); e(f's_mov_b32 s{sC+1}, s{sC}')
        e(f's_xor_b32 s{sT1}, s{sSp}, 1'); e(f's_lshl_b32 s{sT1}, s{sT1}, 7')
        e(f's_lshl_b32 s{sVb}, s{sWave}, 12'); e(f's_add_u32 s{sVb}, s{sVb}, s{sT1}')
        e(f'v_lshrrev_b32 {v(vT[0])}, 3, v0')
        e(f'v_and_b32 {v(vT[1])}, 1, {v(vLr)}')
        e(f'v_lshlrev_b32 {v(vT[1])}, 2, {v(vT[1])}')
        e(f'v_and_b32 {v(vT[2])}, 7, v0')
        e(f'v_xor_b32 {v(vT[1])}, {v(vT[1])}, {v(vT[2])}')
        e(f'v_lshlrev_b32 {v(vT[1])}, 4, {v(vT[1])}')
        e(f'v_lshl_add_u32 {v(vVd)}, {v(vT[0])}, 8, {v(vT[1])}')
        e(f'v_lshrrev_b32 {v(vT[0])}, 5, v0')
        e(f'v_lshrrev_b32 {v(vT[1])}, 2, {v(vLc)}')
        e(f'v_lshl_add_u32 {v(vT[0])}, {v(vT[0])}, 2, {v(vT[1])}')
        e(f'v_and_b32 {v(vT[1])}, 2, {v(vT[1])}')
        e(f'v_and_b32 {v(vT[2])}, 1, {v(vLr)}')
        e(f'v_or_b32 {v(vT[1])}, {v(vT[1])}, {v(vT[2])}')
        e(f'v_xor_b32 {v(vT[1])}, s{sI4}, {v(vT[1])}')
        e(f'v_lshlrev_b32 {v(vT[1])}, 5, {v(vT[1])}')
        e(f'v_lshl_add_u32 {v(vT[1])}, {v(vT[0])}, 7, {v(vT[1])}')
        e(f'v_and_b32 {v(vT[2])}, 3, {v(vLc)}')
        e(f'v_lshl_add_u32 {v(vT[1])}, {v(vT[2])}, 3, {v(vT[1])}')
        e(f's_lshl_b32 s{sT1}, s{sI4}, 12')
        e(f'v_add_u32 {v(vVr[0])}, s{sT1}, {v(vT[1])}')
        e(f'v_xor_b32 {v(vVr[1])}, 64, {v(vVr[0])}')
        e(f'v_lshrrev_b32 {v(vT[0])}, 5, v0')
        e(f'v_lshlrev_b32 {v(vT[0])}, 3, {v(vT[0])}')
        e(f'v_lshrrev_b32 {v(vT[1])}, 2, v0')
        e(f'v_add_u32 {v(vT[0])}, {v(vT[0])}, {v(vT[1])}')
        e(f's_movk_i32 s{sT1}, 1152')
        e(f'v_mul_lo_u32 {v(vT[0])}, {v(vT[0])}, s{sT1}')
        e(f'v_lshl_add_u32 {v(vT[0])}, {v(vT[2])}, 3, {v(vT[0])}')
        e(f's_lshl_b32 s{sT1}, s{sWave}, 7'); e(f's_add_u32 s{sT1}, s{sT1}, {SCR}')
        e(f'v_add_u32 {v(vWr)}, s{sT1}, {v(vT[0])}')
        e(f's_lshr_b32 s{sT1}, s{sWave}, 1'); e(f's_lshl_b32 s{sT1}, s{sT1}, 5'); e(f's_add_u32 s{sT1}, s{sT1}, {SCR + 1024}')
        e(f'v_add_u32 {v(vWx)}, s{sT1}, {v(vT[0])}')
        e(f'v_and_b32 {v(vT[0])}, 31, v0')
        e(f's_lshl_b32 s{sT1}, s{sHH}, 9'); e(f's_add_u32 s{sT1}, s{sT1}, {MX}')
        e(f'v_lshlrev_b32 {v(vT[0])}, 4, {v(vT[0])}')
        e(f'v_add_u32 {v(vMxA)}, s{sT1}, {v(vT[0])}')
        e(f's_lshl_b32 s{sT1}, s{sI4}, 2')
        e(f'v_add_u32 {v(vMo)}, s{sT1}, {v(vMxA)}')
        e(f's_add_u32 s{sT1}, s{sW2k}, {RS}')
        e(f'v_add_u32 {v(vRr)}, s{sT1}, {v(vLin)}')
        e(f'v_lshlrev_b32 {v(vT[1])}, 9, {v(vLr)}')
        e(f'v_lshl_add_u32 {v(vOr)}, {v(vLc)}, 4, {v(vT[1])}')

    QI = None
    def q_mf1(q, k):
        o = 32 * (q % 2)
        c = '0' if (q == 0 and k == 0) else v(QACC, 16)
        e(f'v_mfma_f32_32x32x16_bf16 {v(QACC,16)}, {v(QA+o+4*k,4)}, {v(QB+o+4*k,4)}, {c}')
    def q_mf(q):
        o = 32 * (q % 2)
        for k in range(4):
            c = '0' if (q == 0 and k == 0) else v(QACC, 16)
            e(f'v_mfma_f32_32x32x16_bf16 {v(QACC,16)}, {v(QA+o+4*k,4)}, {v(QB+o+4*k,4)}, {c}')
    for q in range(9):
        e(f's_lshl_b32 s{sT1}, s{sKc}, 12'); e(f's_add_u32 s{sT1}, s{sT1}, {SCR}')
        for k in range(4): e(f'v_add_u32 {v(vXa[k])}, s{sT1}, {v(vXb[k])}')
        if q < 8:
            e(f's_add_u32 s{sKc}, s{sKc}, 1'); e(f's_cmp_eq_u32 s{sKc}, 9'); e(f's_cselect_b32 s{sKc}, 0, s{sKc}')
        e.wait_vm(f'T{2*q}', f'T{2*q+1}')
        if q == 0: issue(opts.get('w2', 4))
        e.wait_lg(0)
        e('s_barrier')
        if q in opts.get('qst', (0,)): stamp()
        o = 32 * (q % 2)
        if q >= 1:
            release([2*q-2, 2*q-1])
            if q == 8: QI = free.pop(0) * SLOT
            if opts.get('dmafirst') and nxt[0] < TK: issue(min(2, TK - nxt[0]))
        for k in range(4):
            par, s_ = k // 2, k % 2
            off = slot_of[2*q+par] * SLOT + s_ * 8192
            r = vQr[off // 65536]; off %= 65536
            e(f'ds_read_b64_tr_b16 {v(QA+o+4*k,2)}, {v(r)} offset:{off}')
            e(f'ds_read_b64_tr_b16 {v(QA+o+4*k+2,2)}, {v(r)} offset:{off + 2048}')
            e(f'ds_read_b128 {v(QB+o+4*k,4)}, {v(vXa[k])}')
        if q >= 1:
            q_mf(q - 1)
            if nxt[0] >= TK and q < 8:
                reserve[0] = {6: 0, 7: 1}[q]
                kv_issue({'A': 2, 'B': opts.get('bq', 2)}, 16)
        if q == 7: setup_k()
    q_mf(8)
    e(f'v_and_b32 {v(vT[0])}, 31, v0')
    e(f'v_lshrrev_b32 {v(vT[1])}, 5, v0')
    e(f'v_lshlrev_b32 {v(vT[0])}, 4, {v(vT[0])}')
    e(f'v_lshl_add_u32 {v(vT[0])}, {v(vT[1])}, 3, {v(vT[0])}')
    e(f's_add_u32 s{sT1}, s{sW2k}, {QI}')
    e(f'v_add_u32 {v(vT[0])}, s{sT1}, {v(vT[0])}')
    e(f's_lshl_b32 s{sT1}, s{sHH}, 13'); e(f's_add_u32 s{sT1}, s{sT1}, {QI}')
    e(f'v_add_u32 {v(vT[2])}, s{sT1}, {v(vLin)}')
    for a_ in range(4):
        e(f'v_cvt_pk_bf16_f32 {v(QA+2*a_)}, {v(QACC+4*a_)}, {v(QACC+4*a_+1)}')
        e(f'v_cvt_pk_bf16_f32 {v(QA+2*a_+1)}, {v(QACC+4*a_+2)}, {v(QACC+4*a_+3)}')
        e(f'ds_write_b64 {v(vT[0])}, {v(QA+2*a_,2)} offset:{a_*512}')
    kv_issue({'A': opts.get('ka', 16), 'B': opts.get('kb', 0)}, NR)
    if opts.get('qbar'):
        e.wait_lg(0)
        e('s_barrier')
        release([TK-2, TK-1])
        for j in range(8):
            e(f'ds_read_b128 {v(QF+4*j,4)}, {v(vT[2])} offset:{j*1024}')
        issue(opts['qbar'])
    stamp()

    def wo_dma(ck, ks):
        if opts.get('nowo'): return
        hh, jb = ck // 2, ck % 2
        for k in ks:
            e(f's_add_u32 m0, s{sW1k}, {SCR + k*8192}')
            e(f's_add_u32 s{sT1}, s{sWOb}, {(128*hh + 32*jb)*1152 + k*8192}')
            e(f'buffer_load_dwordx4 {v(vLin)}, {srd(sWO)}, s{sT1} offen{wo_pol} lds', tag=f'W{ck}')
    def up(k): return S0 + 16 * (k // 2) + 8 + 4 * (k % 2)
    WF = {0: [W0R + 4*j for j in range(5)]}
    for ck in range(1, 4): WF[ck] = [up(5*(ck-1) + j) for j in range(5)]
    def wo_read(ck):
        for j in range(4):
            for hf in range(2):
                e(f'ds_read_b64_tr_b16 {v(WF[ck][j]+2*hf,2)}, {v(vWr)} offset:{hf*9216 + 32*j}')
        for hf in range(2):
            e(f'ds_read_b64_tr_b16 {v(WF[ck][4]+2*hf,2)}, {v(vWx)} offset:{hf*9216}')
    wsched = opts.get('wsched', {0: ({4: (0, 1, 2), 5: (3, 4)}, 7),
                                 1: ({8: (0, 1), 9: (2, 3), 10: (4,)}, 13),
                                 2: ({14: (0, 1, 2), 15: (3, 4)}, 17),
                                 3: ({18: (0, 1), 19: (2, 3), 20: (4,)}, 23)})
    wo_dma_at = {}; wo_read_at = {}
    for ck, (d, rd) in wsched.items():
        for st, ks in d.items(): wo_dma_at[st] = (ck, ks)
        wo_read_at[rd] = ck

    def head(step, tiles):
        for n in tiles: assert min(rn.values()) > n - TK, ('tile not issued', n, rn)
        tags = [f'T{n}' for n in tiles]
        if step in wo_read_at: tags.append(f'W{wo_read_at[step]}')
        if tags: e.wait_vm(*tags)
        e.wait_lg(0)
        e('s_barrier')
    def tail(step):
        if step in wo_dma_at: wo_dma(*wo_dma_at[step])
        reserve[0] = 2 if (2*(step+1) < NR and (step+1) % 2 == 0) else 0
        need = (2*step + 4) if step < 8 else (16 + step - 8 + 1)
        lim = max(need + opts.get('la', 2), NR + opts.get('xl', 5) if step < 8 else 0)
        if step < 2: lim = min(lim, 16)
        kv_issue({'A': opts.get('ta', 3), 'B': opts.get('tb', 3)} if step < 8 else {'A': 3, 'B': 3}, lim)
    def xswap(reg, tmp, op):
        e(f'v_mov_b32 {v(tmp)}, {v(reg)}')
        e(f'v_permlane32_swap_b32 {v(reg)}, {v(tmp)}')
        e(f'{op} {v(reg)}, {v(reg)}, {v(tmp)}')

    kcur = [(0, 0)]
    for u in range(8):
        ta, tb = TK + 2*u, TK + 2*u + 1
        if 2*u < NR: kreg_write(u)
        sa, sb = slot_of[ta] * SLOT, slot_of[tb] * SLOT
        pa, pb = kcur[0]
        da, db_ = (sa - pa) & 0xffffffff, (sb - pb) & 0xffffffff
        e(f's_cmp_lt_u32 s{sI4}, 2')
        e(f's_mov_b32 s{sT0}, {hex(db_)}')
        e(f's_cmov_b32 s{sT0}, {hex(da)}')
        for j in range(8): e(f'v_add_u32 {v(vKr[j])}, s{sT0}, {v(vKr[j])}')
        kcur[0] = (sa, sb)
        head(u, [ta, tb])
        if u in opts.get('kst', ()): stamp()
        if u == 0:
            if opts.get('qbar'):
                free.append(QI // SLOT); free.sort()
            else:
                release([TK-2, TK-1])
                for j in range(8):
                    e(f'ds_read_b128 {v(QF+4*j,4)}, {v(vT[2])} offset:{j*1024}')
        else:
            release([ta-2, tb-2])
            if u == 1 and not opts.get('qbar'): free.append(QI // SLOT); free.sort()
        for j in range(8):
            e(f'ds_read_b128 {v(KF+4*j,4)}, {v(vKr[j])}')
        if u == 0: setup_w()
        if u >= opts.get('ltk', 0): tail(u)
        if u in wo_read_at: wo_read(wo_read_at[u])
        if u >= 1:
            Sp = S0 + 16 * (u - 1)
            if u == 1: e(f'v_max3_f32 {v(vM)}, {v(Sp)}, {v(Sp+1)}, {v(Sp+2)}'); st = 3
            else: st = 0
            for i in range(st, 15, 2): e(f'v_max3_f32 {v(vM)}, {v(vM)}, {v(Sp+i)}, {v(Sp+i+1)}')
            if u == 1: e(f'v_max_f32 {v(vM)}, {v(vM)}, {v(Sp+15)}')
        Sb = S0 + 16 * u
        for j in range(8):
            c = '0' if j == 0 else v(Sb, 16)
            e(f'v_mfma_f32_32x32x16_bf16 {v(Sb,16)}, {v(KF+4*j,4)}, {v(QF+4*j,4)}, {c}')
        if u < opts.get('ltk', 0): tail(u)
        if u == 0:
            lw = e.newlabel('Llead')
            saved = {r: list(e.vm[r]) for r in e.vm}
            e(f's_xor_b32 s{sT1}, s{sWave}, 7'); e(f's_or_b32 s{sT1}, s{sT1}, s2')
            e(f's_cmp_lg_u32 s{sT1}, 0')
            e(f's_cbranch_scc1 {lw}')
            p0 = e.pos
            e(f's_mov_b64 exec, 1')
            e(f'buffer_load_dword {v(TK0+1)}, {v(TK0)}, {srd(sWS)}, 0 offen sc1', tag='EP')
            e.wait_vm_all()
            e(f'v_add_u32 {v(TK0+1)}, 1, {v(TK0+1)}')
            e(f'v_or_b32 {v(TK0+1)}, 0x80000000, {v(TK0+1)}')
            e(f'buffer_store_dword {v(TK0+1)}, {v(TK0+2)}, {srd(sDBG)}, 0 offen sc1', tag='EPS')
            e(f'buffer_store_dword {v(TK0+1)}, {v(TK0)}, {srd(sWS)}, 0 offen sc1', tag='EPS')
            e(f's_mov_b64 exec, -1')
            e.label(lw)
            for P in e.hist:
                if P.pos < p0: P.pos += e.pos - p0
            e.vm = saved
        if u == 1: setup_v()
        if u == 6:
            e(f'buffer_load_dword {v(TK0+1)}, {v(TK0+2)}, {srd(sDBG)}, 0 offen', tag='TKL')
    Sp = S0 + 16 * 7
    for i in range(0, 16, 2): e(f'v_max3_f32 {v(vM)}, {v(vM)}, {v(Sp+i)}, {v(Sp+i+1)}')
    xswap(vM, vT[0], 'v_max_f32')
    e(f'ds_write_b32 {v(vMo)}, {v(vM)}')
    stamp()

    def softmax(u):
        Sb = S0 + 16 * u
        g = [f'v_pk_fma_f32 {v(Sb+i,2)}, {v(Sb+i,2)}, s[{sC}:{sC+1}], {v(vNm,2)} op_sel_hi:[1,0,0]' for i in range(0, 16, 2)]
        g += [f'v_exp_f32 {v(Sb+i)}, {v(Sb+i)}' for i in range(16)]
        if u == 0:
            g += [f'v_pk_add_f32 {v(vL,2)}, {v(Sb,2)}, {v(Sb+2,2)}'] + [f'v_pk_add_f32 {v(vL,2)}, {v(vL,2)}, {v(Sb+i,2)}' for i in range(4, 16, 2)]
        else:
            g += [f'v_pk_add_f32 {v(vL,2)}, {v(vL,2)}, {v(Sb+i,2)}' for i in range(0, 16, 2)]
        g += [f'v_cvt_pk_bf16_f32 {v(Sb+i)}, {v(Sb+2*i)}, {v(Sb+2*i+1)}' for i in range(8)]
        return g

    head(8, [])
    release([TV-2, TV-1])
    e(f'ds_read_b128 {v(vT[0],4)}, {v(vMxA)}')
    tail(8)
    e(f'v_max3_f32 {v(vM)}, {v(vT[0])}, {v(vT[1])}, {v(vT[2])}')
    e(f'v_max_f32 {v(vM)}, {v(vM)}, {v(vT[3])}')
    e(f'v_mul_f32 {v(vNm)}, s{sC}, {v(vM)}')
    e(f'v_sub_f32 {v(vNm)}, 0, {v(vNm)}')
    for x in softmax(0): e(x)

    O = 96
    VF = 64
    TM = 80
    vTok = TK0 + 1
    vLse, vRl = 36, 37
    RG = [40, up(15)]
    sRX = sKs
    sOUT = sWQ
    vOa, vFa, vBo, vFw, vFl = 10, 11, 12, 13, 14
    FA = RS
    def setup_out():
        e(f's_mov_b32 s{sOUT}, s14'); e(f's_mov_b32 s{sOUT+1}, s15'); e(f's_mov_b32 s{sOUT+2}, {256*1152}'); e(f's_mov_b32 s{sOUT+3}, 0x20000')
        a, b_, c_, d_ = 15, 16, vT[0], vT[1]
        e(f's_lshl_b32 s{sT1}, s{sWave}, 6')
        e(f'v_add_u32 {v(a)}, s{sT1}, v0')
        e(f'v_and_b32 {v(b_)}, 0xff, {v(a)}')
        e(f'v_lshrrev_b32 {v(c_)}, 2, {v(b_)}')
        e(f'v_and_b32 {v(d_)}, 3, {v(b_)}')
        e(f'v_lshlrev_b32 {v(d_)}, 8, {v(d_)}')
        e(f'v_lshl_add_u32 {v(d_)}, {v(c_)}, 3, {v(d_)}')
        e(f'v_add_u32 {v(d_)}, 0x800, {v(d_)}')
        e(f'v_lshlrev_b32 {v(vFa)}, 3, {v(b_)}')
        e(f'v_cmp_lt_u32 vcc, 0xff, {v(a)}')
        e(f'v_cndmask_b32 {v(vFa)}, {v(vFa)}, {v(d_)}, vcc')
        e(f'v_add_u32 {v(vFa)}, {hex(FA)}, {v(vFa)}')
        e(f'v_add_u32 {v(c_)}, 0x100, {v(c_)}')
        e(f'v_cndmask_b32 {v(b_)}, {v(b_)}, {v(c_)}, vcc')
        e(f's_and_b32 s{sT1}, s2, 31'); e(f's_mul_i32 s{sT1}, s{sT1}, 288')
        e(f'v_add_u32 {v(b_)}, s{sT1}, {v(b_)}')
        e(f'v_bfe_u32 {v(c_)}, {v(b_)}, 1, 6')
        e(f'v_lshlrev_b32 {v(c_)}, 2, {v(c_)}')
        e(f'v_bfe_u32 {v(d_)}, {v(b_)}, 7, 1')
        e(f'v_lshl_or_b32 {v(c_)}, {v(d_)}, 1, {v(c_)}')
        e(f'v_and_b32 {v(d_)}, 0xff01, {v(b_)}')
        e(f'v_or_b32 {v(c_)}, {v(c_)}, {v(d_)}')
        e(f'v_cmp_lt_u32 vcc, 0x1fff, {v(b_)}')
        e(f'v_cndmask_b32 {v(b_)}, {v(b_)}, {v(c_)}, vcc')
        e(f'v_bfe_u32 {v(c_)}, {v(b_)}, 2, 4')
        e(f'v_bfe_u32 {v(d_)}, {v(b_)}, 1, 1')
        e(f'v_lshl_add_u32 {v(c_)}, {v(d_)}, 4, {v(c_)}')
        e(f'v_mul_u32_u24 {v(c_)}, 1152, {v(c_)}')
        e(f'v_lshrrev_b32 {v(d_)}, 6, {v(b_)}')
        e(f'v_lshl_add_u32 {v(c_)}, {v(d_)}, 3, {v(c_)}')
        e(f'v_and_b32 {v(d_)}, 1, {v(b_)}')
        e(f'v_lshl_add_u32 {v(c_)}, {v(d_)}, 2, {v(c_)}')
        e(f's_mul_i32 s{sT1}, s{sB}, 36864')
        e(f'v_add_u32 {v(c_)}, s{sT1}, {v(c_)}')
        e(f'v_and_b32 {v(d_)}, 0x103, {v(a)}')
        e(f'v_cmp_lt_u32 vcc, 0x100, {v(d_)}')
        e(f'v_mov_b32 {v(d_)}, 0x7fffffff')
        e(f'v_cndmask_b32 {v(vOa)}, {v(c_)}, {v(d_)}, vcc')
        e(f'v_bfe_u32 {v(c_)}, v0, 3, 2')
        e(f'v_mul_u32_u24 {v(c_)}, {PART_BYTES}, {v(c_)}')
        e(f'v_and_b32 {v(d_)}, 7, v0')
        e(f'v_lshl_add_u32 {v(c_)}, {v(d_)}, 4, {v(c_)}')
        e(f'v_add_u32 {v(vBo)}, 0x400, {v(c_)}')
        e(f'v_and_b32 {v(c_)}, 31, v0')
        e(f'v_lshlrev_b32 {v(vFw)}, 7, {v(c_)}')
        e(f'v_and_b32 {v(c_)}, 3, v0')
        e(f'v_lshlrev_b32 {v(vFl)}, 2, {v(c_)}')
    vL32 = 9
    def rx_loads():
        e(f'buffer_load_dwordx4 {v(RG[0],4)}, {v(vLin)}, {srd(sWS)}, s{sRX} offen sc1', tag='RX')
        e(f'buffer_load_dwordx4 {v(RG[1],4)}, {v(vL32)}, {srd(sWS)}, s{sRX} offen offset:1024 sc1', tag='RX')
    def red_write():
        for k in range(1, 4):
            e(f'v_xor_b32 {v(vT[k])}, {k*2048}, {v(vRr)}')
        for k in range(1, 4):
            e(f'ds_write_b128 {v(vT[k])}, {v(O+8*k,4)} offset:{(k-1)*SLOT}')
            e(f'ds_write_b128 {v(vT[k])}, {v(O+8*k+4,4)} offset:{(k-1)*SLOT + 1024}')
    for t in range(16):
        step = 9 + t; n = TV + t; p, u = t // 8, t % 8
        head(step, [n])
        if t in opts.get('vst', ()): stamp()
        if t >= 1: release([n - 1])
        off = slot_of[n] * SLOT
        for k in range(4):
            s_, d2 = k // 2, k % 2
            e(f'ds_read_b64_tr_b16 {v(VF+4*k,2)}, {v(vVr[d2])} offset:{off + s_*2048}')
            e(f'ds_read_b64_tr_b16 {v(VF+4*k+2,2)}, {v(vVr[d2])} offset:{off + s_*2048 + 1024}')
        tail(step)
        if t == 3:
            lp = e.newlabel('Ltk'); ld = e.newlabel('Ltkd')
            e(f's_mov_b32 s{sT3}, 0x20000')
            e.wait_vm('TKL')
            saved = {r: list(e.vm[r]) for r in e.vm}
            e.label(lp)
            e(f'v_readfirstlane_b32 s{sT1}, {v(vTok)}')
            e(f's_cmp_lg_u32 s{sT1}, 0')
            e(f's_cbranch_scc1 {ld}')
            e(f's_sub_u32 s{sT3}, s{sT3}, 1')
            e(f's_cmp_eq_u32 s{sT3}, 0')
            e(f's_cbranch_scc1 {ld}')
            e(f's_sleep 8')
            e(f'buffer_load_dword {v(vTok)}, {v(TK0+2)}, {srd(sDBG)}, 0 offen sc1', tag='TKL')
            e.wait_vm_all()
            e(f's_branch {lp}')
            e.vm = saved
            e.label(ld)
        if t == 7:
            e(f'ds_read_b128 {v(TM,4)}, {v(vMxA)} offset:1024')
            e(f's_xor_b32 s{sRX}, s2, 16'); e(f's_lshl_b32 s{sRX}, s{sRX}, 14'); e(f's_add_u32 s{sRX}, s{sRX}, {hex(WS_OX)}')
            e(f's_add_u32 s{sRX}, s{sRX}, s{sW2k}')
            e(f'v_add_f32 {v(TM)}, {v(TM)}, {v(TM+1)}')
            e(f'v_add_f32 {v(TM+2)}, {v(TM+2)}, {v(TM+3)}')
            e(f'v_add_f32 {v(TM)}, {v(TM)}, {v(TM+2)}')
            e(f'v_log_f32 {v(TM+1)}, {v(TM)}')
            e(f'v_rcp_f32 {v(vRl)}, {v(TM)}')
            e(f'v_sub_f32 {v(vLse)}, {v(TM+1)}, {v(vNm)}')
        if t == 8:
            for k in range(1, 4):
                e(f'ds_read_b128 {v(TM+8,4)}, {v(vRr)} offset:{(k-1)*SLOT}')
                e(f'ds_read_b128 {v(TM+12,4)}, {v(vRr)} offset:{(k-1)*SLOT + 1024}')
                for i in range(0, 8, 2):
                    e(f'v_pk_add_f32 {v(TM+i,2)}, {v(TM+i,2)}, {v(TM+8+i,2)}')
            for i in range(8): e(f'v_mul_f32 {v(TM+i)}, {v(TM+i)}, {v(vRl)}')
            e(f's_xor_b32 s{sT1}, s{sRX}, {hex(16 << 14)}')
            e(f'v_cvt_pk_bf16_f32 {v(TM+12)}, {v(TM+6)}, {v(TM+7)}')
            e(f'v_cvt_pk_bf16_f32 {v(TM+13)}, {v(TM+6)}, {v(TM+7)}')
            for i in range(3): e(f'v_cvt_pk_bf16_f32 {v(TM+8+i)}, {v(TM+2*i)}, {v(TM+2*i+1)}')
            e(f'v_mov_b32 {v(TM+11)}, {v(vTok)}')
            e(f'v_permlane32_swap_b32 {v(TM+12)}, {v(TM+13)}')
            e(f'v_and_b32 {v(vL32)}, 0x1ff, {v(vLin)}')
            e(f'buffer_store_dwordx4 {v(TM+8,4)}, {v(vLin)}, {srd(sWS)}, s{sT1} offen sc1', tag='OX')
            e(f'v_mov_b32 {v(TM+14)}, {v(vLse)}')
            e(f'v_mov_b32 {v(TM+15)}, {v(vTok)}')
            e(f's_mov_b32 exec_hi, 0')
            e(f'buffer_store_dwordx4 {v(TM+12,4)}, {v(vLin)}, {srd(sWS)}, s{sT1} offen offset:1024 sc1', tag='OX')
            e(f's_mov_b64 exec, -1')
        if t == 10: setup_out()
        if t == opts.get('rxat', 13) and (not opts.get('noox') or opts.get('keepld')): rx_loads()
        if step in wo_read_at: wo_read(wo_read_at[step])
        sm = softmax(u + 1) if (p == 0 and u < 7) else []
        cuts = [0, 10, 20, 30, len(sm)] if sm else [0]*5
        for k in range(4):
            s_, d2 = k // 2, k % 2
            for x in sm[cuts[k]:cuts[k+1]]: e(x)
            c = '0' if (u == 0 and s_ == 0) else v(O+16*d2, 16)
            e(f'v_mfma_f32_32x32x16_bf16 {v(O+16*d2,16)}, {v(VF+4*k,4)}, {v(S0+16*u+4*s_,4)}, {c}')
        if t == 6:
            e(f'v_add_f32 {v(vL)}, {v(vL)}, {v(vL+1)}')
            xswap(vL, vT[0], 'v_add_f32')
            e(f'ds_write_b32 {v(vMo)}, {v(vL)} offset:1024')
        if t == 7:
            red_write()
            for i in range(8): e(f'v_mov_b32 {v(TM+i)}, {v(O+i)}')
            stamp()
    assert WS_OX % (32 << 14) == 0 and RS % 16384 == 0
    stamp()
    red_write()
    lp = e.newlabel('Lrx'); ld = e.newlabel('Lrxd')
    e(f's_mov_b32 s{sT3}, 0x20000')
    e.label(lp)
    e.wait_vm_all()
    e(f'v_xor_b32 {v(TM)}, {v(RG[0]+3)}, {v(vTok)}')
    e(f'v_xor_b32 {v(TM+1)}, {v(RG[1]+3)}, {v(vTok)}')
    e(f'v_or_b32 {v(TM)}, {v(TM)}, {v(TM+1)}')
    e(f'v_cmp_ne_u32 vcc, 0, {v(TM)}')
    e.nop(4)
    e(f's_cbranch_vccz {ld}')
    if opts.get('noox'): e(f's_branch {ld}')
    e(f's_sub_u32 s{sT3}, s{sT3}, 1')
    e(f's_cmp_eq_u32 s{sT3}, 0')
    e(f's_cbranch_scc1 {ld}')
    if opts.get('ox_pol', ' sc1') != ' sc1': e('buffer_wbl2 sc1')
    e(f's_sleep 8')
    rx_loads()
    e(f's_branch {lp}')
    for r in e.vm: e.vm[r] = []
    e.label(ld)
    e(f's_mov_b32 s{sT3}, 0xffff0000')
    t0, t1 = 38, 39
    e(f'v_sub_f32 {v(t0)}, {v(vLse)}, {v(RG[1]+2)}')
    e(f'v_sub_f32 {v(t1)}, {v(RG[1]+2)}, {v(vLse)}')
    e(f'v_cmp_lt_u32 vcc, 31, v0')
    e(f'v_exp_f32 {v(t0)}, {v(t0)}'); e(f'v_exp_f32 {v(t1)}, {v(t1)}')
    e(f'v_add_f32 {v(t0)}, 1.0, {v(t0)}'); e(f'v_add_f32 {v(t1)}, 1.0, {v(t1)}')
    e(f'v_rcp_f32 {v(t0)}, {v(t0)}'); e(f'v_rcp_f32 {v(t1)}, {v(t1)}')
    e(f'v_cndmask_b32 {v(RG[1])}, {v(RG[1])}, {v(RG[1]+1)}, vcc')
    gsrc = [RG[0], RG[0]+1, RG[0]+2, RG[1]]
    for i in range(4):
        e(f'v_lshlrev_b32 {v(TM+2*i)}, 16, {v(gsrc[i])}'); e(f'v_and_b32 {v(TM+2*i+1)}, s{sT3}, {v(gsrc[i])}')
    e(f'v_mul_f32 {v(t1)}, {v(t1)}, {v(vRl)}')
    for i in range(8): e(f'v_mul_f32 {v(TM+i)}, {v(TM+i)}, {v(t0)}')
    OI = slot_of[TEND-2] * SLOT
    e(f's_add_u32 s{sT1}, s{sW1k}, {OI}')
    e(f'v_add_u32 {v(vT[0])}, s{sT1}, {v(vLin)}')
    e(f's_and_b32 s{sT2}, s{sWave}, 1'); e(f's_lshl_b32 s{sT0}, s{sT2}, 3'); e(f's_lshl_b32 s{sT1}, s{sT2}, 8')
    e(f'v_add_u32 {v(vRw)}, s{sT1}, {v(vOr)}')
    e.wait_lg(0)
    e('s_barrier')
    for k in range(1, 4):
        e(f'ds_read_b128 {v(O+8*k,4)}, {v(vRr)} offset:{(k-1)*SLOT}')
        e(f'ds_read_b128 {v(O+8*k+4,4)}, {v(vRr)} offset:{(k-1)*SLOT + 1024}')
    for k in range(1, 4):
        for i in range(0, 8, 2):
            e(f'v_pk_add_f32 {v(O+i,2)}, {v(O+i,2)}, {v(O+8*k+i,2)}')
    for i in range(8): e(f'v_fma_f32 {v(O+i)}, {v(O+i)}, {v(t1)}, {v(TM+i)}')
    for i in range(4): e(f'v_cvt_pk_bf16_f32 {v(TM+i)}, {v(O+2*i)}, {v(O+2*i+1)}')
    e(f'ds_write_b128 {v(vT[0])}, {v(TM,4)}')
    e.wait_lg(0)
    e('s_barrier')
    lo = lambda k: S0 + 16 * (k // 2) + 4 * (k % 2)
    for ck in range(4):
        for qt in range(2):
            e(f'ds_read_b128 {v(lo(2*ck+qt),4)}, {v(vOr)} offset:{OI + ck*2048 + qt*256}')
    for ck in range(4):
        e(f'ds_read_b128 {v(lo(8+ck),4)}, {v(vRw)} offset:{OI + ck*2048}')
    e(f's_mul_i32 s{sT1}, s2, {PART_BYTES}')
    e(f's_lshl_b32 s{sT3}, s{sWave}, 9')
    e(f'v_lshlrev_b32 {v(vT[1])}, 3, v0')
    e(f's_add_u32 s{sT3}, s{sT3}, s{sT1}'); e(f's_add_u32 s{sT3}, s{sT3}, 32768')
    e(f's_lshl_b32 s{sT2}, s{sWave}, 12'); e(f's_add_u32 s{sT1}, s{sT1}, s{sT2}')
    AC = 84
    DD = [120, 124, 64, 68]
    def fin(j):
        D = DD[j]
        for qt in range(2):
            A0 = AC + 8*j + 4*qt
            e(f'v_cvt_pk_bf16_f32 {v(D+2*qt)}, {v(A0)}, {v(A0+1)}')
            e(f'v_cvt_pk_bf16_f32 {v(D+2*qt+1)}, {v(A0+2)}, {v(A0+3)}')
        e(f'buffer_store_dwordx4 {v(D,4)}, {v(vLin)}, {srd(sWS)}, s{sT1} offen offset:{j*1024}{st_pol}', tag='OUT')
    for j in range(4):
        for ck in range(4):
            for qt in range(2):
                A0 = AC + 8*j + 4*qt
                c = '0' if ck == 0 else v(A0, 4)
                e(f'v_mfma_f32_16x16x32_bf16 {v(A0,4)}, {v(WF[ck][j],4)}, {v(lo(2*ck+qt),4)}, {c}')
        c = '0' if j == 0 else v(AC+32, 4)
        e(f'v_mfma_f32_16x16x32_bf16 {v(AC+32,4)}, {v(WF[j][4],4)}, {v(lo(8+j),4)}, {c}')
        if j >= 1: fin(j - 1)
    fin(3)
    e(f'v_cvt_pk_bf16_f32 {v(72)}, {v(AC+32)}, {v(AC+33)}')
    e(f'v_cvt_pk_bf16_f32 {v(73)}, {v(AC+34)}, {v(AC+35)}')
    e(f'buffer_store_dwordx2 {v(72,2)}, {v(vT[1])}, {srd(sWS)}, s{sT3} offen{st_pol}', tag='OUT')
    stamp()
    e(f's_lshl_b32 s{sT1}, s{sB}, 5'); e(f's_lshl_b32 s{sT2}, s{sWave}, 2'); e(f's_add_u32 s{sT1}, s{sT1}, s{sT2}')
    e(f's_mul_i32 s{sT0}, s{sT1}, {PART_BYTES}')
    e(f's_and_b32 s{sT3}, s2, 31'); e(f's_mul_i32 s{sT1}, s{sT3}, 1152'); e(f's_add_u32 s{sT0}, s{sT0}, s{sT1}')
    e(f's_add_u32 s{sT1}, s{sT0}, {PART_BYTES}'); e(f's_add_u32 s{sT2}, s{sT0}, {2*PART_BYTES}'); e(f's_add_u32 s{sG0}, s{sT0}, {3*PART_BYTES}')
    e(f's_lshl_b32 s{sVb}, s{sB}, 12'); e(f's_lshl_b32 s{sT3}, s{sT3}, 2'); e(f's_add_u32 s{sVb}, s{sVb}, s{sT3}'); e(f's_add_u32 s{sVb}, s{sVb}, {hex(WS_FLAG)}')
    e(f's_lshl_b32 s{sKc}, s2, 7'); e(f's_lshl_b32 s{sT3}, s{sWave}, 4'); e(f's_add_u32 s{sKc}, s{sKc}, s{sT3}'); e(f's_add_u32 s{sKc}, s{sKc}, {hex(WS_FLAG)}')
    e(f's_mul_i32 s{sXc}, s{sWave}, 3072'); e(f's_add_u32 s{sXc}, s{sXc}, {FA}')
    e(f'v_lshlrev_b32 {v(vT[3])}, 5, v0')
    e(f'v_add_u32 {v(vT[3])}, s{sXc}, {v(vT[3])}')
    e.wait_vm_all()
    e('s_barrier')
    lf = e.newlabel('Lfl')
    e(f's_cmp_lg_u32 s{sWave}, 0'); e(f's_cbranch_scc1 {lf}')
    e(f's_mov_b32 exec_hi, 0')
    e(f'buffer_store_dword {v(vTok)}, {v(vFw)}, {srd(sWS)}, s{sVb} offen sc1', tag='FLG')
    e(f's_mov_b64 exec, -1')
    e.label(lf)
    stamp()
    sp_ = e.newlabel('Lsm'); sd_ = e.newlabel('Lsmd')
    e(f's_mov_b32 s{sT3}, 0x20000')
    if opts.get('poll2'):
        NP = opts['poll2']
        pr = [vT[0], vT[1], vT[2]][:NP]
        for i in range(NP - 1):
            e(f'buffer_load_dword {v(pr[i])}, {v(vFl)}, {srd(sWS)}, s{sKc} offen sc1', tag=f'SM{i}')
            e(f's_sleep {opts.get("pgap", 6)}')
        e.label(sp_)
        for i in range(NP):
            j = (i + NP - 1) % NP
            e.raw(f'  buffer_load_dword {v(pr[j])}, {v(vFl)}, {srd(sWS)}, s{sKc} offen sc1')
            e.raw(f'  s_waitcnt vmcnt({NP-1})')
            e.raw(f'  v_cmp_ne_u32 vcc, {v(pr[i])}, {v(vTok)}')
            e.raw(f'  s_nop 4')
            e.raw(f'  s_cbranch_vccz {sd_}')
        e(f's_sub_u32 s{sT3}, s{sT3}, 1')
        e(f's_cmp_lg_u32 s{sT3}, 0')
        e(f's_cbranch_scc1 {sp_}')
        for r in e.vm: e.vm[r] = []
    else:
        e.label(sp_)
        e(f'buffer_load_dword {v(vT[0])}, {v(vFl)}, {srd(sWS)}, s{sKc} offen sc1', tag='SM')
        e.wait_vm_all()
        e(f'v_cmp_ne_u32 vcc, {v(vT[0])}, {v(vTok)}')
        e.nop(4)
        e(f's_cbranch_vccz {sd_}')
        e(f's_sub_u32 s{sT3}, s{sT3}, 1')
        e(f's_cmp_eq_u32 s{sT3}, 0')
        e(f's_cbranch_scc1 {sd_}')
        e(f's_sleep {opts.get("ssleep", 1)}')
        e(f's_branch {sp_}')
    e.label(sd_)
    stamp()
    LD = 128
    for l, (va, so) in enumerate([(vLin, sT0), (vLin, sT1), (vLin, sT2), (vLin, sG0), (vBo, sT0)]):
        e(f'buffer_load_dwordx4 {v(LD+4*l,4)}, {v(va)}, {srd(sWS)}, s{so} offen sc1', tag=f'RD{l}')
    e(f's_mov_b32 s{sT3}, 0xffff0000')
    ACCR = 160; U = 176
    for l in range(5):
        e.wait_vm(f'RD{l}')
        base = ACCR if l < 4 else ACCR + 8
        first = l in (0, 4)
        for k in range(4):
            d0 = base + 2*k if first else U + 2*k
            e(f'v_lshlrev_b32 {v(d0)}, 16, {v(LD+4*l+k)}'); e(f'v_and_b32 {v(d0+1)}, s{sT3}, {v(LD+4*l+k)}')
        if not first:
            for k in range(4):
                e(f'v_pk_add_f32 {v(base+2*k,2)}, {v(base+2*k,2)}, {v(U+2*k,2)}')
        if l == 3:
            e(f'ds_write_b128 {v(vT[3])}, {v(ACCR,4)}')
            e(f'ds_write_b128 {v(vT[3])}, {v(ACCR+4,4)} offset:16')
    e(f's_mov_b32 exec_hi, 0')
    e(f'ds_write_b128 {v(vT[3])}, {v(ACCR+8,4)} offset:2048')
    e(f'ds_write_b128 {v(vT[3])}, {v(ACCR+12,4)} offset:2064')
    e(f's_mov_b64 exec, -1')
    e.wait_lg(0)
    e('s_barrier')
    e(f's_cmp_ge_u32 s{sWave}, 6'); e('s_cbranch_scc1 L_end1')
    for w in range(8):
        e(f'ds_read_b64 {v(LD+2*w,2)}, {v(vFa)} offset:{w*3072}')
    for w in range(1, 8): e(f'v_pk_add_f32 {v(LD,2)}, {v(LD,2)}, {v(LD+2*w,2)}')
    lq = e.newlabel('Lq')
    e(f's_cmp_lt_u32 s{sWave}, 4'); e(f's_cbranch_scc1 {lq}')
    for perm in ('[1,0,3,2]', '[2,3,0,1]'):
        for k in range(2):
            e(f'v_add_f32_dpp {v(LD+k)}, {v(LD+k)}, {v(LD+k)} quad_perm:{perm} row_mask:0xf bank_mask:0xf')
    e.label(lq)
    e(f'v_cvt_pk_bf16_f32 {v(LD)}, {v(LD)}, {v(LD+1)}')
    e(f'buffer_store_dword {v(LD)}, {v(vOa)}, {srd(sOUT)}, 0 offen', tag='FIN')
    if stamps:
        e.wait_vm_all()
        stamp()
        e(f's_cmp_lg_u32 s{sWave}, 0'); e('s_cbranch_scc1 L_end1')
        e(f's_lshl_b32 s{sT1}, s2, 7'); e(f's_add_u32 s{sT1}, s{sT1}, {hex(WS_STAMP)}')
        e('s_mov_b64 exec, 1')
        e(f'v_mov_b32 {v(vT[2])}, 0')
        for i in range(16):
            if i < nstamp[0]:
                e(f'v_mov_b32 {v(vT[0])}, s{sStamp+2*i}'); e(f'v_mov_b32 {v(vT[1])}, s{sStamp+2*i+1}')
            else:
                e(f'v_mov_b32 {v(vT[0])}, 0'); e(f'v_mov_b32 {v(vT[1])}, 0')
            e(f'buffer_store_dwordx2 {v(vT[0],2)}, {v(vT[2])}, {srd(sWS)}, s{sT1} offen offset:{8*i}')
            e.nop(2)
    e.label('L_end1')
    e('s_endpgm')
    k1_lines = e.lines
    n1 = e.ninst

    hdr = open('standalone__sliding_block_cached__sampling.s.ref').read().split('\n')
    hdr = [l for l in hdr if l.startswith(';') and '@launch' not in l and 'Override' not in l and 'grid=ceil' not in l]
    out = hdr + [
        f'; @launch grid=(256,1,1) block=(512,1,1) lds={LDS_BYTES}',
        '.amdgcn_target "amdgcn-amd-amdhsa--gfx950"', '.text'] + k1_lines
    def kd(name, nv, ns, acc):
        return ['.section .rodata,"a"', '.p2align 6', f'.amdhsa_kernel {name}',
                f'  .amdhsa_next_free_vgpr {nv}', f'  .amdhsa_next_free_sgpr {ns}', f'  .amdhsa_accum_offset {acc}',
                '  .amdhsa_group_segment_fixed_size 0', '  .amdhsa_kernarg_size 64', '  .amdhsa_user_sgpr_count 2',
                '  .amdhsa_user_sgpr_kernarg_segment_ptr 1', '  .amdhsa_system_sgpr_workgroup_id_x 1', '.end_amdhsa_kernel']
    out += kd(K1, 256, 102, 256)
    print('K1 instrs', n1, 'QI', QI, 'slots', [slot_of[n] for n in range(TEND)], file=sys.stderr)
    return '\n'.join(out) + '\n'

if __name__ == '__main__':
    E = 'exp/'
    b = dict(dmafirst=True, nr=8, gbit=5)
    st = dict(stamps=True, vst=(0, 12), kst=(0, 2, 4, 6), qst=(0,))
    open(E + 'v23.s', 'w').write(gen(dict(b)))
    open(E + 'v23a.s', 'w').write(gen(dict(b, ta=2, tb=2)))
    open(E + 'v23b.s', 'w').write(gen(dict(b, ta=2, tb=1)))
    open(E + 'v23c.s', 'w').write(gen(dict(b, xl=4, ta=2, tb=2)))
    open(E + 'v23d.s', 'w').write(gen(dict(b, xl=3)))
    open(E + 'v23s.s', 'w').write(gen(dict(b, ta=2, tb=2, gbit=4, **st)))
```

```python
from gen23 import gen
E = 'exp/'
b = dict(dmafirst=True, nr=8, gbit=5)
st = dict(stamps=True, vst=(0, 12), kst=(0, 2, 4, 6), qst=(0,))
open(E + 'v23e.s', 'w').write(gen(dict(b, xl=12, ta=2, tb=2)))
open(E + 'v23f.s', 'w').write(gen(dict(b, xl=7, ta=2, tb=2)))
open(E + 'v23g.s', 'w').write(gen(dict(b, xl=8, ta=2, tb=1)))
open(E + 'v23h.s', 'w').write(gen(dict(b, xl=5, la=3, ta=2, tb=2)))
open(E + 'v23i.s', 'w').write(gen(dict(b, xl=5, la=4, ta=2, tb=2)))
open(E + 'v23es.s', 'w').write(gen(dict(b, xl=12, ta=2, tb=2, gbit=4, **st)))
```

```python
import sys, math, struct
from emit import Emitter
from gen6 import f32bits
K1 = 'standalone__sliding_block_cached__sampling_kernel'
WS_FLAG = 0x1800000

SLOT = 16384
NSLOT = 7
SCR = NSLOT * SLOT
MX = SCR + 40960
LS = MX + 1024
TOK = LS + 1024
LDS_BYTES = TOK + 64
RS = 4 * SLOT
WS_EPOCH = 0x1000000
WS_OX = 0x1100000
WS_STAMP = 0x20000000
PART_BYTES = 36864
NW, NK, NV = 18, 16, 16
TK, TV, TEND = NW, NW + NK, NW + NK + NV

def gen(opts):
    stamps = opts.get('stamps', False)
    st_pol = opts.get('st_pol', ' sc1'); k2_pol = opts.get('k2_pol', '')
    wq_pol = opts.get('wq_pol', ''); wo_pol = opts.get('wo_pol', ''); x_pol = opts.get('x_pol', '')
    e = Emitter(roles=('A', 'B'))
    NR = opts.get('nr', 8)
    NB = opts.get('nb', NR)
    sK, sV, sWQ, sX, sWO, sWS, sDBG = 20, 24, 28, 32, 36, 40, 44
    sWave, sHkv, sB, sSp = 48, 49, 50, 51
    sW2k, sT0, sT1, sT2, sT3 = 52, 53, 54, 55, 56
    sWQb, sWOb, sKc = 57, 58, 59
    sC = 60
    sKs, sG0, sVb, sW1k = 62, 63, 64, 65
    sStamp = 66
    sI4, sHH = 98, 99
    sXc, sXb = 100, 101
    nstamp = [0]
    srd = lambda n: f's[{n}:{n+3}]'
    e.role_cond[frozenset('B')] = (f's_bitcmp1_b32 s2, {opts.get("gbit", 4)}', 's_cbranch_scc0')
    e.role_cond[frozenset('A')] = (f's_bitcmp1_b32 s2, {opts.get("gbit", 4)}', 's_cbranch_scc1')
    def stamp():
        if stamps:
            i = nstamp[0]; nstamp[0] += 1
            assert i < 16
            e.wait_lg(0)
            e(f's_memrealtime s[{sStamp+2*i}:{sStamp+2*i+1}]')
            e.wait_lg(0)
    v = lambda n, c=1: f'v{n}' if c == 1 else f'v[{n}:{n+c-1}]'
    vLin, vLc, vLr = 1, 2, 3
    vKd = [4, 5]; vVd = 6; vVr = [7, 8]; vKr = list(range(9, 17))
    vWr = 17; vWx = 18; vMxA = 19; vMo = 20; vOr = 21
    vL = 22
    vNm = 24; vM = 25; vRw = 26; vRr = 27
    vT = [28, 29, 30, 31]
    S0 = 128; QF = 96; KF = 64; W0R = 44
    vWd = [32, 33]; vXd = 34; vQr = [36, 37]; vXb = [38, 39, 40, 41]; vXa = [42, 43, 44, 45]
    QA = 48; QB = 64; QACC = 112
    vKw = 35
    TK0 = 32

    e.raw(f'.globl {K1}'); e.raw('.p2align 8'); e.raw(f'.type {K1},@function'); e.label(K1)
    e('s_cmp_ge_u32 s2, 256')
    e('s_cbranch_scc1 L_end1')
    e('s_load_dwordx16 s[4:19], s[0:1], 0')
    if stamps:
        e(f's_memrealtime s[{sStamp}:{sStamp+1}]'); nstamp[0] = 1
    e(f'v_lshrrev_b32 {v(vT[0])}, 6, v0')
    e(f'v_and_b32 v0, 63, v0')
    e(f'v_readfirstlane_b32 s{sWave}, {v(vT[0])}')
    e(f's_and_b32 s{sHkv}, s2, 7'); e(f's_lshl_b32 s{sHkv}, s{sHkv}, 1')
    e(f's_bfe_u32 s{sT0}, s2, 0x10003'); e(f's_or_b32 s{sHkv}, s{sHkv}, s{sT0}')
    e(f's_lshr_b32 s{sB}, s2, 5')
    e(f'v_lshrrev_b32 {v(vT[0])}, 5, v0')
    e(f'v_and_b32 {v(vT[1])}, 31, v0')
    e(f'v_lshlrev_b32 {v(vT[2])}, 2, {v(vT[0])}')
    e(f'v_xor_b32 {v(vT[1])}, {v(vT[1])}, {v(vT[2])}')
    e(f'v_lshlrev_b32 {v(vT[1])}, 4, {v(vT[1])}')
    e(f'v_lshl_add_u32 {v(vWd[0])}, {v(vT[0])}, 13, {v(vT[1])}')
    e(f'v_xor_b32 {v(vWd[1])}, 0x80, {v(vWd[0])}')
    e(f'v_add_u32 {v(vWd[1])}, {16384-1024}, {v(vWd[1])}')
    e(f's_lshl_b32 s{sW2k}, s{sWave}, 11')
    e(f's_lshl_b32 s{sWQb}, s{sWave}, 15'); e(f's_lshl_b32 s{sT1}, s{sHkv}, 9'); e(f's_add_u32 s{sWQb}, s{sWQb}, s{sT1}')
    e(f's_bfe_u32 s{sKs}, s2, 0x20003'); e(f's_lshl1_add_u32 s{sKs}, s{sKs}, s{sB}')
    e(f's_cmp_ge_u32 s{sKs}, 9'); e(f's_cselect_b32 s{sT1}, 9, 0'); e(f's_sub_u32 s{sKs}, s{sKs}, s{sT1}')
    if not opts.get('rot', True): e(f's_mov_b32 s{sKs}, 0')
    e(f's_mov_b32 s{sKc}, s{sKs}')
    e(f's_and_b32 s{sI4}, s{sWave}, 3'); e(f's_lshr_b32 s{sHH}, s{sWave}, 2')
    e(f'v_lshrrev_b32 {v(vT[0])}, 3, v0')
    e(f'v_lshrrev_b32 {v(vLr)}, 4, v0')
    e(f's_and_b32 s{sT1}, s{sWave}, 1'); e(f's_lshl_b32 s{sT1}, s{sT1}, 2')
    e(f'v_or_b32 {v(vT[1])}, s{sT1}, {v(vLr)}')
    e(f'v_and_b32 {v(vT[2])}, 7, v0')
    e(f'v_xor_b32 {v(vT[1])}, {v(vT[1])}, {v(vT[2])}')
    e(f's_movk_i32 s{sT1}, 1152')
    e(f'v_mul_lo_u32 {v(vT[0])}, {v(vT[0])}, s{sT1}')
    e(f'v_lshl_add_u32 {v(vXd)}, {v(vT[1])}, 4, {v(vT[0])}')
    e(f's_mul_i32 s{sXb}, s{sB}, 36864'); e(f's_mul_i32 s{sT0}, s{sI4}, 9216'); e(f's_add_u32 s{sXb}, s{sXb}, s{sT0}')
    e(f's_add_u32 s{sXc}, s{sKs}, s{sHH}'); e(f's_cmp_eq_u32 s{sXc}, 9'); e(f's_cselect_b32 s{sXc}, 0, s{sXc}')
    e(f's_lshl_b32 s{sT2}, s{sI4}, 10'); e(f's_add_u32 s{sT2}, s{sT2}, {SCR}')
    e(f's_lshl_b32 s{sW1k}, s{sWave}, 10')
    e.wait_lg(0)
    e(f's_mov_b32 s{sX}, s4'); e(f's_mov_b32 s{sX+1}, s5'); e(f's_mov_b32 s{sX+2}, {256*1152}'); e(f's_mov_b32 s{sX+3}, 0x20000')
    e(f's_mov_b32 s{sWQ}, s10'); e(f's_mov_b32 s{sWQ+1}, s11'); e(f's_mov_b32 s{sWQ+2}, {576*8192}'); e(f's_mov_b32 s{sWQ+3}, 0x20000')

    slot_of = {}
    free = list(range(NSLOT))
    nxt = [0]
    hooks = []
    def x_dma(k):
        e(f's_lshl_b32 s{sT1}, s{sXc}, 12'); e(f's_add_u32 m0, s{sT1}, s{sT2}')
        e(f's_lshl_b32 s{sT1}, s{sXc}, 7'); e(f's_add_u32 s{sT1}, s{sT1}, s{sXb}')
        e(f'buffer_load_dwordx4 {v(vXd)}, {srd(sX)}, s{sT1} offen{opts.get("w0_pol", x_pol) if k == 0 else x_pol} lds', tag=f'X{k}')
        if k < 4:
            e(f's_add_u32 s{sXc}, s{sXc}, 2'); e(f's_cmp_ge_u32 s{sXc}, 9'); e(f's_cselect_b32 s{sT1}, 9, 0'); e(f's_sub_u32 s{sXc}, s{sXc}, s{sT1}')
    def dma_tile(n):
        slot = slot_of[n]
        if n < TK and n % 4 == 0: x_dma(n // 4)
        e(f's_add_u32 m0, s{sW2k}, {slot*SLOT}')
        if n < TK:
            if n % 2 == 0:
                e(f's_lshl_b32 s{sG0}, s{sKs}, 19'); e(f's_add_u32 s{sG0}, s{sG0}, s{sWQb}')
            else:
                e(f's_add_u32 s{sG0}, s{sG0}, {32*8192}')
            for i in range(2):
                for h in hooks: h()
                e(f'buffer_load_dwordx4 {v(vWd[i])}, {srd(sWQ)}, s{sG0} offen offset:{i*1024}{opts.get("w0_pol", wq_pol) if n < 2 else wq_pol} lds', tag=f'T{n}')
            if n % 2 == 1 and n < TK - 1:
                e(f's_add_u32 s{sKs}, s{sKs}, 1'); e(f's_cmp_eq_u32 s{sKs}, 9'); e(f's_cselect_b32 s{sKs}, 0, s{sKs}')
        elif opts.get('nokv'):
            pass
        elif n < TV:
            e(f's_add_u32 s{sT1}, s{sW2k}, {(n-TK)*SLOT}')
            for i in range(2):
                for h in hooks: h()
                e(f'buffer_load_dwordx4 {v(vKd[i])}, {srd(sK)}, s{sT1} offen offset:{i*1024} nt lds', tag=f'T{n}')
        else:
            p, u = (n - TV) // 8, (n - TV) % 8
            if p: e(f's_xor_b32 s{sT1}, s{sVb}, 0x80'); e(f's_add_u32 s{sT1}, s{sT1}, {u*32768}')
            else: e(f's_add_u32 s{sT1}, s{sVb}, {u*32768}')
            e(f'buffer_load_dwordx4 {v(vVd)}, {srd(sV)}, s{sT1} offen nt lds', tag=f'T{n}')
            e(f's_add_u32 s{sT1}, s{sT1}, 1024')
            e(f'buffer_load_dwordx4 {v(vVd)}, {srd(sV)}, s{sT1} offen offset:1024 nt lds', tag=f'T{n}')
    def kreg_load(j):
        if opts.get('nokv'): return
        e(f's_add_u32 s{sT1}, s{sW2k}, {j*SLOT}')
        for i in range(2):
            e(f'buffer_load_dwordx4 {v(S0+8*j+4*i,4)}, {v(vKd[i])}, {srd(sK)}, s{sT1} offen offset:{i*1024} nt', tag=f'T{TK+j}')
    reserve = [0]
    rn = {'A': 0, 'B': 0}
    def kv_issue(cnt, limit=None, lag={}):
        todo = {}
        for r in 'BA':
            l = []
            while len(l) < cnt.get(r, 0) and rn[r] < 32 and (limit is None or rn[r] < limit - lag.get(r, 0)):
                j = rn[r]
                if j >= NR and (TK + j) not in slot_of:
                    cand = [x for x in free if j < 16 + opts.get('vhi', 0) or x < 4]
                    if not cand or len(free) <= reserve[0]: break
                    sl = cand[0] if j >= 16 + opts.get('vhi', 0) else max(cand)
                    slot_of[TK + j] = sl; free.remove(sl)
                l.append(j); rn[r] += 1
            todo[r] = l
        def body(l):
            for j in l:
                if j < NR: kreg_load(j)
                else: dma_tile(TK + j)
        if todo['A'] == todo['B']: body(todo['A'])
        else:
            for r in 'AB':
                if todo[r]:
                    with e.only(r): body(todo[r])
    def kreg_write(u):
        assert min(rn.values()) > 2*u + 1, ('reg tile not issued', u, rn)
        for par in range(2):
            n = TK + 2*u + par
            if u % 2 == 1: slot_of[n] = 7 + par
            else:
                slot_of[n] = min(free); free.remove(slot_of[n])
        e.wait_vm(f'T{TK+2*u}', f'T{TK+2*u+1}')
        for par in range(2):
            off = slot_of[TK+2*u+par] * SLOT
            if off >= 65536:
                e(f'v_add_u32 {v(vT[3])}, {hex(off & ~0xffff)}, {v(vKw)}'); r = vT[3]; off &= 0xffff
            else: r = vKw
            for i in range(2):
                e(f'ds_write_b128 {v(r)}, {v(S0+16*u+8*par+4*i,4)} offset:{off + i*1024}')
    def issue(maxn):
        k = 0
        while nxt[0] < TK and k < maxn and free:
            n = nxt[0]
            s = max(free)
            free.remove(s); slot_of[n] = s; nxt[0] += 1; k += 1
            dma_tile(n)
    def release(ns):
        for n in ns:
            if slot_of[n] < 7: free.append(slot_of[n])
        free.sort()

    def mid_setup():
        e(f's_bfe_u32 s{sSp}, s2, 0x10004')
        e(f's_lshl_b32 s{sT0}, s{sB}, 4'); e(f's_add_u32 s{sT0}, s{sT0}, s{sHkv}'); e(f's_lshl_b32 s{sT0}, s{sT0}, 21')
        e(f's_lshl_b32 s{sT1}, s{sSp}, 18'); e(f's_add_u32 s{sT0}, s{sT0}, s{sT1}'); e(f's_add_u32 s{sT0}, s{sT0}, {6144*256}')
        e(f's_add_u32 s{sK}, s6, s{sT0}'); e(f's_addc_u32 s{sK+1}, s7, 0'); e(f's_mov_b32 s{sK+2}, 0x40000'); e(f's_mov_b32 s{sK+3}, 0x20000')
        e(f's_add_u32 s{sV}, s8, s{sT0}'); e(f's_addc_u32 s{sV+1}, s9, 0'); e(f's_mov_b32 s{sV+2}, 0x40000'); e(f's_mov_b32 s{sV+3}, 0x20000')
        e(f's_and_b32 s{sT1}, s{sWave}, 1'); e(f's_lshl_b32 s{sT1}, s{sT1}, 3')
        e(f'v_xor_b32 {v(vT[0])}, {v(vLr)}, {v(vLc)}')
        e(f'v_xor_b32 {v(vT[0])}, s{sT1}, {v(vT[0])}')
        e(f'v_lshlrev_b32 {v(vT[0])}, 4, {v(vT[0])}')
        e(f'v_lshl_add_u32 {v(vKd[0])}, {v(vLr)}, 8, {v(vT[0])}')
        e(f'v_xor_b32 {v(vKd[1])}, 64, {v(vKd[0])}')
    e(f'v_and_b32 {v(vLc)}, 15, v0')
    BP = opts.get('bpre', 0)
    if BP:
        with e.only('B'):
            mid_setup()
            for j in range(BP): kreg_load(j)
    issue(2)
    mid_setup()
    with e.only('B'):
        if opts.get('bar1', True): e('s_barrier')
        for j in range(BP, NB): kreg_load(j)
        rn['B'] = NB
        if opts.get('bar2', True): e('s_barrier')
    issue(opts.get('w1', 1))

    e(f'v_lshlrev_b32 {v(vLin)}, 4, v0')
    e(f'v_add_u32 {v(vKw)}, s{sW2k}, {v(vLin)}')
    e(f'v_lshrrev_b32 {v(vT[0])}, 2, {v(vLc)}')
    e(f'v_xor_b32 {v(vT[1])}, s{sWave}, {v(vT[0])}')
    e(f'v_lshlrev_b32 {v(vT[1])}, 6, {v(vT[1])}')
    e(f'v_lshl_add_u32 {v(vT[1])}, {v(vT[0])}, 9, {v(vT[1])}')
    e(f'v_lshrrev_b32 {v(vT[2])}, 5, v0')
    e(f'v_lshl_add_u32 {v(vT[1])}, {v(vT[2])}, 12, {v(vT[1])}')
    e(f'v_and_b32 {v(vT[3])}, 1, {v(vLr)}')
    e(f'v_lshl_add_u32 {v(vT[1])}, {v(vT[3])}, 5, {v(vT[1])}')
    e(f'v_and_b32 {v(vT[3])}, 3, {v(vLc)}')
    e(f'v_lshl_add_u32 {v(vQr[0])}, {v(vT[3])}, 3, {v(vT[1])}')
    e(f'v_add_u32 {v(vQr[1])}, 0x10000, {v(vQr[0])}')
    e(f'v_and_b32 {v(vT[0])}, 31, v0')
    e(f'v_bfe_u32 {v(vT[1])}, v0, 1, 3')
    e(f'v_xor_b32 {v(vT[1])}, {v(vT[1])}, {v(vT[2])}')
    e(f'v_lshlrev_b32 {v(vT[1])}, 4, {v(vT[1])}')
    e(f'v_lshl_add_u32 {v(vXb[0])}, {v(vT[0])}, 7, {v(vT[1])}')
    for k in range(1, 4): e(f'v_xor_b32 {v(vXb[k])}, {32*k}, {v(vXb[0])}')

    def setup_k():
        e(f'v_lshrrev_b32 {v(vT[0])}, 5, v0')
        e(f'v_xor_b32 {v(vT[0])}, {v(vT[0])}, {v(vLc)}')
        e(f'v_lshlrev_b32 {v(vT[0])}, 4, {v(vT[0])}')
        e(f'v_and_b32 {v(vT[1])}, 31, v0')
        e(f'v_lshl_add_u32 {v(vT[0])}, {v(vT[1])}, 8, {v(vT[0])}')
        e(f's_and_b32 s{sT1}, s{sWave}, 1'); e(f's_lshl_b32 s{sT1}, s{sT1}, 13')
        e(f'v_add_u32 {v(vKr[0])}, s{sT1}, {v(vT[0])}')
        for j in range(1, 8): e(f'v_xor_b32 {v(vKr[j])}, {32*j}, {v(vKr[0])}')
    def setup_w():
        e(f's_mov_b32 s{sWO}, s12'); e(f's_mov_b32 s{sWO+1}, s13'); e(f's_mov_b32 s{sWO+2}, {4096*1152}'); e(f's_mov_b32 s{sWO+3}, 0x20000')
        e(f's_mov_b32 s{sWS}, s18'); e(f's_mov_b32 s{sWS+1}, s19'); e(f's_mov_b32 s{sWS+2}, 0x30000000'); e(f's_mov_b32 s{sWS+3}, 0x20000')
        e(f's_mov_b32 s{sDBG}, s16'); e(f's_mov_b32 s{sDBG+1}, s17'); e(f's_mov_b32 s{sDBG+2}, 256'); e(f's_mov_b32 s{sDBG+3}, 0x20000')
        e(f's_lshl_b32 s{sT1}, s{sHkv}, 2'); e(f's_add_u32 s{sT1}, s{sT1}, s{sSp}')
        e(f's_mul_i32 s{sWOb}, s{sT1}, {64*1152}'); e(f's_add_u32 s{sWOb}, s{sWOb}, s{sW1k}')
        e(f'v_mov_b32 {v(TK0)}, {hex(WS_EPOCH)}'); e(f'v_mov_b32 {v(TK0+2)}, 0')
    def setup_v():
        e(f's_mov_b32 s{sC}, {hex(f32bits(math.log2(math.e) / math.sqrt(128.0)))}'); e(f's_mov_b32 s{sC+1}, s{sC}')
        e(f's_xor_b32 s{sT1}, s{sSp}, 1'); e(f's_lshl_b32 s{sT1}, s{sT1}, 7')
        e(f's_lshl_b32 s{sVb}, s{sWave}, 12'); e(f's_add_u32 s{sVb}, s{sVb}, s{sT1}')
        e(f'v_lshrrev_b32 {v(vT[0])}, 3, v0')
        e(f'v_and_b32 {v(vT[1])}, 1, {v(vLr)}')
        e(f'v_lshlrev_b32 {v(vT[1])}, 2, {v(vT[1])}')
        e(f'v_and_b32 {v(vT[2])}, 7, v0')
        e(f'v_xor_b32 {v(vT[1])}, {v(vT[1])}, {v(vT[2])}')
        e(f'v_lshlrev_b32 {v(vT[1])}, 4, {v(vT[1])}')
        e(f'v_lshl_add_u32 {v(vVd)}, {v(vT[0])}, 8, {v(vT[1])}')
        e(f'v_lshrrev_b32 {v(vT[0])}, 5, v0')
        e(f'v_lshrrev_b32 {v(vT[1])}, 2, {v(vLc)}')
        e(f'v_lshl_add_u32 {v(vT[0])}, {v(vT[0])}, 2, {v(vT[1])}')
        e(f'v_and_b32 {v(vT[1])}, 2, {v(vT[1])}')
        e(f'v_and_b32 {v(vT[2])}, 1, {v(vLr)}')
        e(f'v_or_b32 {v(vT[1])}, {v(vT[1])}, {v(vT[2])}')
        e(f'v_xor_b32 {v(vT[1])}, s{sI4}, {v(vT[1])}')
        e(f'v_lshlrev_b32 {v(vT[1])}, 5, {v(vT[1])}')
        e(f'v_lshl_add_u32 {v(vT[1])}, {v(vT[0])}, 7, {v(vT[1])}')
        e(f'v_and_b32 {v(vT[2])}, 3, {v(vLc)}')
        e(f'v_lshl_add_u32 {v(vT[1])}, {v(vT[2])}, 3, {v(vT[1])}')
        e(f's_lshl_b32 s{sT1}, s{sI4}, 12')
        e(f'v_add_u32 {v(vVr[0])}, s{sT1}, {v(vT[1])}')
        e(f'v_xor_b32 {v(vVr[1])}, 64, {v(vVr[0])}')
        e(f'v_lshrrev_b32 {v(vT[0])}, 5, v0')
        e(f'v_lshlrev_b32 {v(vT[0])}, 3, {v(vT[0])}')
        e(f'v_lshrrev_b32 {v(vT[1])}, 2, v0')
        e(f'v_add_u32 {v(vT[0])}, {v(vT[0])}, {v(vT[1])}')
        e(f's_movk_i32 s{sT1}, 1152')
        e(f'v_mul_lo_u32 {v(vT[0])}, {v(vT[0])}, s{sT1}')
        e(f'v_lshl_add_u32 {v(vT[0])}, {v(vT[2])}, 3, {v(vT[0])}')
        e(f's_lshl_b32 s{sT1}, s{sWave}, 7'); e(f's_add_u32 s{sT1}, s{sT1}, {SCR}')
        e(f'v_add_u32 {v(vWr)}, s{sT1}, {v(vT[0])}')
        e(f's_lshr_b32 s{sT1}, s{sWave}, 1'); e(f's_lshl_b32 s{sT1}, s{sT1}, 5'); e(f's_add_u32 s{sT1}, s{sT1}, {SCR + 1024}')
        e(f'v_add_u32 {v(vWx)}, s{sT1}, {v(vT[0])}')
        e(f'v_and_b32 {v(vT[0])}, 31, v0')
        e(f's_lshl_b32 s{sT1}, s{sHH}, 9'); e(f's_add_u32 s{sT1}, s{sT1}, {MX}')
        e(f'v_lshlrev_b32 {v(vT[0])}, 4, {v(vT[0])}')
        e(f'v_add_u32 {v(vMxA)}, s{sT1}, {v(vT[0])}')
        e(f's_lshl_b32 s{sT1}, s{sI4}, 2')
        e(f'v_add_u32 {v(vMo)}, s{sT1}, {v(vMxA)}')
        e(f's_add_u32 s{sT1}, s{sW2k}, {RS}')
        e(f'v_add_u32 {v(vRr)}, s{sT1}, {v(vLin)}')
        e(f'v_lshlrev_b32 {v(vT[1])}, 9, {v(vLr)}')
        e(f'v_lshl_add_u32 {v(vOr)}, {v(vLc)}, 4, {v(vT[1])}')

    QI = None
    def q_mf1(q, k):
        o = 32 * (q % 2)
        c = '0' if (q == 0 and k == 0) else v(QACC, 16)
        e(f'v_mfma_f32_32x32x16_bf16 {v(QACC,16)}, {v(QA+o+4*k,4)}, {v(QB+o+4*k,4)}, {c}')
    def q_mf(q):
        o = 32 * (q % 2)
        for k in range(4):
            c = '0' if (q == 0 and k == 0) else v(QACC, 16)
            e(f'v_mfma_f32_32x32x16_bf16 {v(QACC,16)}, {v(QA+o+4*k,4)}, {v(QB+o+4*k,4)}, {c}')
    for q in range(9):
        e(f's_lshl_b32 s{sT1}, s{sKc}, 12'); e(f's_add_u32 s{sT1}, s{sT1}, {SCR}')
        for k in range(4): e(f'v_add_u32 {v(vXa[k])}, s{sT1}, {v(vXb[k])}')
        if q < 8:
            e(f's_add_u32 s{sKc}, s{sKc}, 1'); e(f's_cmp_eq_u32 s{sKc}, 9'); e(f's_cselect_b32 s{sKc}, 0, s{sKc}')
        e.wait_vm(f'T{2*q}', f'T{2*q+1}')
        if q == 0: issue(opts.get('w2', 4))
        e.wait_lg(0)
        e('s_barrier')
        if q in opts.get('qst', (0,)): stamp()
        o = 32 * (q % 2)
        if q >= 1:
            release([2*q-2, 2*q-1])
            if q == 8: QI = free.pop(0) * SLOT
            if opts.get('dmafirst') and nxt[0] < TK: issue(min(2, TK - nxt[0]))
        for k in range(4):
            par, s_ = k // 2, k % 2
            off = slot_of[2*q+par] * SLOT + s_ * 8192
            r = vQr[off // 65536]; off %= 65536
            e(f'ds_read_b64_tr_b16 {v(QA+o+4*k,2)}, {v(r)} offset:{off}')
            e(f'ds_read_b64_tr_b16 {v(QA+o+4*k+2,2)}, {v(r)} offset:{off + 2048}')
            e(f'ds_read_b128 {v(QB+o+4*k,4)}, {v(vXa[k])}')
        if q >= 1:
            q_mf(q - 1)
            if nxt[0] >= TK and q < 8:
                reserve[0] = {6: 0, 7: 1}[q]
                kv_issue({'A': 2, 'B': opts.get('bq', 2)}, 16)
        if q == 7: setup_k()
    q_mf(8)
    e(f'v_and_b32 {v(vT[0])}, 31, v0')
    e(f'v_lshrrev_b32 {v(vT[1])}, 5, v0')
    e(f'v_lshlrev_b32 {v(vT[0])}, 4, {v(vT[0])}')
    e(f'v_lshl_add_u32 {v(vT[0])}, {v(vT[1])}, 3, {v(vT[0])}')
    e(f's_add_u32 s{sT1}, s{sW2k}, {QI}')
    e(f'v_add_u32 {v(vT[0])}, s{sT1}, {v(vT[0])}')
    e(f's_lshl_b32 s{sT1}, s{sHH}, 13'); e(f's_add_u32 s{sT1}, s{sT1}, {QI}')
    e(f'v_add_u32 {v(vT[2])}, s{sT1}, {v(vLin)}')
    for a_ in range(4):
        e(f'v_cvt_pk_bf16_f32 {v(QA+2*a_)}, {v(QACC+4*a_)}, {v(QACC+4*a_+1)}')
        e(f'v_cvt_pk_bf16_f32 {v(QA+2*a_+1)}, {v(QACC+4*a_+2)}, {v(QACC+4*a_+3)}')
        e(f'ds_write_b64 {v(vT[0])}, {v(QA+2*a_,2)} offset:{a_*512}')
    kv_issue({'A': opts.get('ka', 16), 'B': opts.get('kb', 0)}, NR)
    if opts.get('qbar'):
        e.wait_lg(0)
        e('s_barrier')
        release([TK-2, TK-1])
        for j in range(8):
            e(f'ds_read_b128 {v(QF+4*j,4)}, {v(vT[2])} offset:{j*1024}')
        issue(opts['qbar'])
    stamp()

    def wo_dma(ck, ks):
        if opts.get('nowo'): return
        hh, jb = ck // 2, ck % 2
        for k in ks:
            e(f's_add_u32 m0, s{sW1k}, {SCR + k*8192}')
            e(f's_add_u32 s{sT1}, s{sWOb}, {(128*hh + 32*jb)*1152 + k*8192}')
            e(f'buffer_load_dwordx4 {v(vLin)}, {srd(sWO)}, s{sT1} offen{wo_pol} lds', tag=f'W{ck}')
    def up(k): return S0 + 16 * (k // 2) + 8 + 4 * (k % 2)
    WF = {0: [W0R + 4*j for j in range(5)]}
    for ck in range(1, 4): WF[ck] = [up(5*(ck-1) + j) for j in range(5)]
    def wo_read(ck):
        for j in range(4):
            for hf in range(2):
                e(f'ds_read_b64_tr_b16 {v(WF[ck][j]+2*hf,2)}, {v(vWr)} offset:{hf*9216 + 32*j}')
        for hf in range(2):
            e(f'ds_read_b64_tr_b16 {v(WF[ck][4]+2*hf,2)}, {v(vWx)} offset:{hf*9216}')
    wsched = opts.get('wsched', {0: ({4: (0, 1, 2), 5: (3, 4)}, 7),
                                 1: ({8: (0, 1), 9: (2, 3), 10: (4,)}, 13),
                                 2: ({14: (0, 1, 2), 15: (3, 4)}, 17),
                                 3: ({18: (0, 1), 19: (2, 3), 20: (4,)}, 23)})
    wo_dma_at = {}; wo_read_at = {}
    for ck, (d, rd) in wsched.items():
        for st, ks in d.items(): wo_dma_at[st] = (ck, ks)
        wo_read_at[rd] = ck

    def head(step, tiles):
        for n in tiles: assert min(rn.values()) > n - TK, ('tile not issued', n, rn)
        tags = [f'T{n}' for n in tiles]
        if step in wo_read_at: tags.append(f'W{wo_read_at[step]}')
        if tags: e.wait_vm(*tags)
        e.wait_lg(0)
        e('s_barrier')
    def tail(step):
        if step in wo_dma_at: wo_dma(*wo_dma_at[step])
        reserve[0] = 2 if (2*(step+1) < NR and (step+1) % 2 == 0) else 0
        need = (2*step + 4) if step < 8 else (16 + step - 8 + 1)
        lim = max(need + (opts.get('la', 2) if step < 8 else opts.get('lav', 2)), NR + opts.get('xl', 5) if step < 8 else 0)
        if step < 2: lim = min(lim, 16)
        kv_issue({'A': opts.get('ta', 3), 'B': opts.get('tb', 3)} if step < 8 else {'A': 3, 'B': 3}, lim, {opts.get('lagrole', 'B'): 1} if step in opts.get('lagsteps', ()) else {})
    def xswap(reg, tmp, op):
        e(f'v_mov_b32 {v(tmp)}, {v(reg)}')
        e(f'v_permlane32_swap_b32 {v(reg)}, {v(tmp)}')
        e(f'{op} {v(reg)}, {v(reg)}, {v(tmp)}')

    kcur = [(0, 0)]
    for u in range(8):
        ta, tb = TK + 2*u, TK + 2*u + 1
        if 2*u < NR: kreg_write(u)
        sa, sb = slot_of[ta] * SLOT, slot_of[tb] * SLOT
        pa, pb = kcur[0]
        da, db_ = (sa - pa) & 0xffffffff, (sb - pb) & 0xffffffff
        e(f's_cmp_lt_u32 s{sI4}, 2')
        e(f's_mov_b32 s{sT0}, {hex(db_)}')
        e(f's_cmov_b32 s{sT0}, {hex(da)}')
        for j in range(8): e(f'v_add_u32 {v(vKr[j])}, s{sT0}, {v(vKr[j])}')
        kcur[0] = (sa, sb)
        head(u, [ta, tb])
        if u in opts.get('kst', ()): stamp()
        if u == 0:
            if opts.get('qbar'):
                free.append(QI // SLOT); free.sort()
            else:
                release([TK-2, TK-1])
                for j in range(8):
                    e(f'ds_read_b128 {v(QF+4*j,4)}, {v(vT[2])} offset:{j*1024}')
        else:
            release([ta-2, tb-2])
            if u == 1 and not opts.get('qbar'): free.append(QI // SLOT); free.sort()
        for j in range(8):
            e(f'ds_read_b128 {v(KF+4*j,4)}, {v(vKr[j])}')
        if u == 0: setup_w()
        if u >= opts.get('ltk', 0): tail(u)
        if u in wo_read_at: wo_read(wo_read_at[u])
        if u >= 1:
            Sp = S0 + 16 * (u - 1)
            if u == 1: e(f'v_max3_f32 {v(vM)}, {v(Sp)}, {v(Sp+1)}, {v(Sp+2)}'); st = 3
            else: st = 0
            for i in range(st, 15, 2): e(f'v_max3_f32 {v(vM)}, {v(vM)}, {v(Sp+i)}, {v(Sp+i+1)}')
            if u == 1: e(f'v_max_f32 {v(vM)}, {v(vM)}, {v(Sp+15)}')
        Sb = S0 + 16 * u
        for j in range(8):
            c = '0' if j == 0 else v(Sb, 16)
            e(f'v_mfma_f32_32x32x16_bf16 {v(Sb,16)}, {v(KF+4*j,4)}, {v(QF+4*j,4)}, {c}')
        if u < opts.get('ltk', 0): tail(u)
        if u == 0:
            lw = e.newlabel('Llead')
            saved = {r: list(e.vm[r]) for r in e.vm}
            e(f's_xor_b32 s{sT1}, s{sWave}, 7'); e(f's_or_b32 s{sT1}, s{sT1}, s2')
            e(f's_cmp_lg_u32 s{sT1}, 0')
            e(f's_cbranch_scc1 {lw}')
            p0 = e.pos
            e(f's_mov_b64 exec, 1')
            e(f'buffer_load_dword {v(TK0+1)}, {v(TK0)}, {srd(sWS)}, 0 offen sc1', tag='EP')
            e.wait_vm_all()
            e(f'v_add_u32 {v(TK0+1)}, 1, {v(TK0+1)}')
            e(f'v_or_b32 {v(TK0+1)}, 0x80000000, {v(TK0+1)}')
            e(f'buffer_store_dword {v(TK0+1)}, {v(TK0+2)}, {srd(sDBG)}, 0 offen sc1', tag='EPS')
            e(f'buffer_store_dword {v(TK0+1)}, {v(TK0)}, {srd(sWS)}, 0 offen sc1', tag='EPS')
            e(f's_mov_b64 exec, -1')
            e.label(lw)
            for P in e.hist:
                if P.pos < p0: P.pos += e.pos - p0
            e.vm = saved
        if u == 1: setup_v()
        if u == 6:
            e(f'buffer_load_dword {v(TK0+1)}, {v(TK0+2)}, {srd(sDBG)}, 0 offen', tag='TKL')
    Sp = S0 + 16 * 7
    for i in range(0, 16, 2): e(f'v_max3_f32 {v(vM)}, {v(vM)}, {v(Sp+i)}, {v(Sp+i+1)}')
    xswap(vM, vT[0], 'v_max_f32')
    e(f'ds_write_b32 {v(vMo)}, {v(vM)}')
    stamp()

    def softmax(u):
        Sb = S0 + 16 * u
        g = [f'v_pk_fma_f32 {v(Sb+i,2)}, {v(Sb+i,2)}, s[{sC}:{sC+1}], {v(vNm,2)} op_sel_hi:[1,0,0]' for i in range(0, 16, 2)]
        g += [f'v_exp_f32 {v(Sb+i)}, {v(Sb+i)}' for i in range(16)]
        if u == 0:
            g += [f'v_pk_add_f32 {v(vL,2)}, {v(Sb,2)}, {v(Sb+2,2)}'] + [f'v_pk_add_f32 {v(vL,2)}, {v(vL,2)}, {v(Sb+i,2)}' for i in range(4, 16, 2)]
        else:
            g += [f'v_pk_add_f32 {v(vL,2)}, {v(vL,2)}, {v(Sb+i,2)}' for i in range(0, 16, 2)]
        g += [f'v_cvt_pk_bf16_f32 {v(Sb+i)}, {v(Sb+2*i)}, {v(Sb+2*i+1)}' for i in range(8)]
        return g

    head(8, [])
    release([TV-2, TV-1])
    e(f'ds_read_b128 {v(vT[0],4)}, {v(vMxA)}')
    tail(8)
    e(f'v_max3_f32 {v(vM)}, {v(vT[0])}, {v(vT[1])}, {v(vT[2])}')
    e(f'v_max_f32 {v(vM)}, {v(vM)}, {v(vT[3])}')
    e(f'v_mul_f32 {v(vNm)}, s{sC}, {v(vM)}')
    e(f'v_sub_f32 {v(vNm)}, 0, {v(vNm)}')
    vVh = [15, 16]
    for d2 in range(2): e(f'v_add_u32 {v(vVh[d2])}, 0x10000, {v(vVr[d2])}')
    for x in softmax(0): e(x)

    O = 96
    VF = 64
    TM = 80
    vTok = TK0 + 1
    vLse, vRl = 36, 37
    RG = [40, up(15)]
    sRX = sKs
    sOUT = sWQ
    vOa, vFa, vBo, vFw, vFl = 10, 11, 12, 13, 14
    FA = RS
    def setup_out():
        e(f's_mov_b32 s{sOUT}, s14'); e(f's_mov_b32 s{sOUT+1}, s15'); e(f's_mov_b32 s{sOUT+2}, {256*1152}'); e(f's_mov_b32 s{sOUT+3}, 0x20000')
        a, b_, c_, d_ = 15, 16, vT[0], vT[1]
        e(f's_lshl_b32 s{sT1}, s{sWave}, 6')
        e(f'v_add_u32 {v(a)}, s{sT1}, v0')
        e(f'v_and_b32 {v(b_)}, 0xff, {v(a)}')
        e(f'v_lshrrev_b32 {v(c_)}, 2, {v(b_)}')
        e(f'v_and_b32 {v(d_)}, 3, {v(b_)}')
        e(f'v_lshlrev_b32 {v(d_)}, 8, {v(d_)}')
        e(f'v_lshl_add_u32 {v(d_)}, {v(c_)}, 3, {v(d_)}')
        e(f'v_add_u32 {v(d_)}, 0x800, {v(d_)}')
        e(f'v_lshlrev_b32 {v(vFa)}, 3, {v(b_)}')
        e(f'v_cmp_lt_u32 vcc, 0xff, {v(a)}')
        e(f'v_cndmask_b32 {v(vFa)}, {v(vFa)}, {v(d_)}, vcc')
        e(f'v_add_u32 {v(vFa)}, {hex(FA)}, {v(vFa)}')
        e(f'v_add_u32 {v(c_)}, 0x100, {v(c_)}')
        e(f'v_cndmask_b32 {v(b_)}, {v(b_)}, {v(c_)}, vcc')
        e(f's_and_b32 s{sT1}, s2, 31'); e(f's_mul_i32 s{sT1}, s{sT1}, 288')
        e(f'v_add_u32 {v(b_)}, s{sT1}, {v(b_)}')
        e(f'v_bfe_u32 {v(c_)}, {v(b_)}, 1, 6')
        e(f'v_lshlrev_b32 {v(c_)}, 2, {v(c_)}')
        e(f'v_bfe_u32 {v(d_)}, {v(b_)}, 7, 1')
        e(f'v_lshl_or_b32 {v(c_)}, {v(d_)}, 1, {v(c_)}')
        e(f'v_and_b32 {v(d_)}, 0xff01, {v(b_)}')
        e(f'v_or_b32 {v(c_)}, {v(c_)}, {v(d_)}')
        e(f'v_cmp_lt_u32 vcc, 0x1fff, {v(b_)}')
        e(f'v_cndmask_b32 {v(b_)}, {v(b_)}, {v(c_)}, vcc')
        e(f'v_bfe_u32 {v(c_)}, {v(b_)}, 2, 4')
        e(f'v_bfe_u32 {v(d_)}, {v(b_)}, 1, 1')
        e(f'v_lshl_add_u32 {v(c_)}, {v(d_)}, 4, {v(c_)}')
        e(f'v_mul_u32_u24 {v(c_)}, 1152, {v(c_)}')
        e(f'v_lshrrev_b32 {v(d_)}, 6, {v(b_)}')
        e(f'v_lshl_add_u32 {v(c_)}, {v(d_)}, 3, {v(c_)}')
        e(f'v_and_b32 {v(d_)}, 1, {v(b_)}')
        e(f'v_lshl_add_u32 {v(c_)}, {v(d_)}, 2, {v(c_)}')
        e(f's_mul_i32 s{sT1}, s{sB}, 36864')
        e(f'v_add_u32 {v(c_)}, s{sT1}, {v(c_)}')
        e(f'v_and_b32 {v(d_)}, 0x103, {v(a)}')
        e(f'v_cmp_lt_u32 vcc, 0x100, {v(d_)}')
        e(f'v_mov_b32 {v(d_)}, 0x7fffffff')
        e(f'v_cndmask_b32 {v(vOa)}, {v(c_)}, {v(d_)}, vcc')
        e(f'v_bfe_u32 {v(c_)}, v0, 3, 2')
        e(f'v_mul_u32_u24 {v(c_)}, {PART_BYTES}, {v(c_)}')
        e(f'v_and_b32 {v(d_)}, 7, v0')
        e(f'v_lshl_add_u32 {v(c_)}, {v(d_)}, 4, {v(c_)}')
        e(f'v_add_u32 {v(vBo)}, 0x400, {v(c_)}')
        e(f'v_and_b32 {v(c_)}, 31, v0')
        e(f'v_lshlrev_b32 {v(vFw)}, 7, {v(c_)}')
        e(f'v_and_b32 {v(c_)}, 3, v0')
        e(f'v_lshlrev_b32 {v(vFl)}, 2, {v(c_)}')
    vL32 = 9
    def rx_loads():
        e(f'buffer_load_dwordx4 {v(RG[0],4)}, {v(vLin)}, {srd(sWS)}, s{sRX} offen sc1', tag='RX')
        e(f'buffer_load_dwordx4 {v(RG[1],4)}, {v(vL32)}, {srd(sWS)}, s{sRX} offen offset:1024 sc1', tag='RX')
    def red_write():
        for k in range(1, 4):
            e(f'v_xor_b32 {v(vT[k])}, {k*2048}, {v(vRr)}')
        for k in range(1, 4):
            e(f'ds_write_b128 {v(vT[k])}, {v(O+8*k,4)} offset:{(k-1)*SLOT}')
            e(f'ds_write_b128 {v(vT[k])}, {v(O+8*k+4,4)} offset:{(k-1)*SLOT + 1024}')
    for t in range(16):
        step = 9 + t; n = TV + t; p, u = t // 8, t % 8
        head(step, [n])
        if t in opts.get('vst', ()): stamp()
        if t >= 1: release([n - 1])
        off = slot_of[n] * SLOT
        assert off < 65536 or t <= 6
        vr = vVr if off < 65536 else vVh
        off %= 65536
        for k in range(4):
            s_, d2 = k // 2, k % 2
            e(f'ds_read_b64_tr_b16 {v(VF+4*k,2)}, {v(vr[d2])} offset:{off + s_*2048}')
            e(f'ds_read_b64_tr_b16 {v(VF+4*k+2,2)}, {v(vr[d2])} offset:{off + s_*2048 + 1024}')
        tail(step)
        if t == 3:
            lp = e.newlabel('Ltk'); ld = e.newlabel('Ltkd')
            e(f's_mov_b32 s{sT3}, 0x20000')
            e.wait_vm('TKL')
            saved = {r: list(e.vm[r]) for r in e.vm}
            e.label(lp)
            e(f'v_readfirstlane_b32 s{sT1}, {v(vTok)}')
            e(f's_cmp_lg_u32 s{sT1}, 0')
            e(f's_cbranch_scc1 {ld}')
            e(f's_sub_u32 s{sT3}, s{sT3}, 1')
            e(f's_cmp_eq_u32 s{sT3}, 0')
            e(f's_cbranch_scc1 {ld}')
            e(f's_sleep 8')
            e(f'buffer_load_dword {v(vTok)}, {v(TK0+2)}, {srd(sDBG)}, 0 offen sc1', tag='TKL')
            e.wait_vm_all()
            e(f's_branch {lp}')
            e.vm = saved
            e.label(ld)
        if t == 7:
            e(f'ds_read_b128 {v(TM,4)}, {v(vMxA)} offset:1024')
            e(f's_xor_b32 s{sRX}, s2, 16'); e(f's_lshl_b32 s{sRX}, s{sRX}, 14'); e(f's_add_u32 s{sRX}, s{sRX}, {hex(WS_OX)}')
            e(f's_add_u32 s{sRX}, s{sRX}, s{sW2k}')
            e(f'v_add_f32 {v(TM)}, {v(TM)}, {v(TM+1)}')
            e(f'v_add_f32 {v(TM+2)}, {v(TM+2)}, {v(TM+3)}')
            e(f'v_add_f32 {v(TM)}, {v(TM)}, {v(TM+2)}')
            e(f'v_log_f32 {v(TM+1)}, {v(TM)}')
            e(f'v_rcp_f32 {v(vRl)}, {v(TM)}')
            e(f'v_sub_f32 {v(vLse)}, {v(TM+1)}, {v(vNm)}')
        if t == 8:
            for k in range(1, 4):
                e(f'ds_read_b128 {v(TM+8,4)}, {v(vRr)} offset:{(k-1)*SLOT}')
                e(f'ds_read_b128 {v(TM+12,4)}, {v(vRr)} offset:{(k-1)*SLOT + 1024}')
                for i in range(0, 8, 2):
                    e(f'v_pk_add_f32 {v(TM+i,2)}, {v(TM+i,2)}, {v(TM+8+i,2)}')
            for i in range(8): e(f'v_mul_f32 {v(TM+i)}, {v(TM+i)}, {v(vRl)}')
            e(f's_xor_b32 s{sT1}, s{sRX}, {hex(16 << 14)}')
            e(f'v_cvt_pk_bf16_f32 {v(TM+12)}, {v(TM+6)}, {v(TM+7)}')
            e(f'v_cvt_pk_bf16_f32 {v(TM+13)}, {v(TM+6)}, {v(TM+7)}')
            for i in range(3): e(f'v_cvt_pk_bf16_f32 {v(TM+8+i)}, {v(TM+2*i)}, {v(TM+2*i+1)}')
            e(f'v_mov_b32 {v(TM+11)}, {v(vTok)}')
            e(f'v_permlane32_swap_b32 {v(TM+12)}, {v(TM+13)}')
            e(f'v_and_b32 {v(vL32)}, 0x1ff, {v(vLin)}')
            e(f'buffer_store_dwordx4 {v(TM+8,4)}, {v(vLin)}, {srd(sWS)}, s{sT1} offen sc1', tag='OX')
            e(f'v_mov_b32 {v(TM+14)}, {v(vLse)}')
            e(f'v_mov_b32 {v(TM+15)}, {v(vTok)}')
        if t == opts.get('ox2', 8):
            e(f's_xor_b32 s{sT1}, s{sRX}, {hex(16 << 14)}')
            e(f's_mov_b32 exec_hi, 0')
            e(f'buffer_store_dwordx4 {v(TM+12,4)}, {v(vLin)}, {srd(sWS)}, s{sT1} offen offset:1024 sc1', tag='OX')
            e(f's_mov_b64 exec, -1')
        if t == 10: setup_out()
        if t == opts.get('cpf', -1):
            e(f's_getpc_b64 s[96:97]')
            e.label('L_pc')
            e.raw(f'  s_add_u32 s96, s96, L_tail-L_pc')
            e.raw(f'  s_addc_u32 s97, s97, 0')
            e(f's_and_b32 s{sT1}, s{sWave}, 3'); e(f's_lshl_b32 s{sT1}, s{sT1}, 10')
            e(f'v_add_u32 {v(vT[0])}, s{sT1}, {v(vLin)}')
            e(f'v_min_u32 {v(vT[0])}, L_end1-L_tail-16, {v(vT[0])}')
            e(f'global_load_dwordx4 {v(TM,4)}, {v(vT[0])}, s[96:97]', tag='CPF')
        if t == opts.get('rxat', 13) and (not opts.get('noox') or opts.get('keepld')): rx_loads()
        if step in wo_read_at: wo_read(wo_read_at[step])
        sm = softmax(u + 1) if (p == 0 and u < 7) else []
        cuts = [0, 10, 20, 30, len(sm)] if sm else [0]*5
        for k in range(4):
            s_, d2 = k // 2, k % 2
            for x in sm[cuts[k]:cuts[k+1]]: e(x)
            c = '0' if (u == 0 and s_ == 0) else v(O+16*d2, 16)
            e(f'v_mfma_f32_32x32x16_bf16 {v(O+16*d2,16)}, {v(VF+4*k,4)}, {v(S0+16*u+4*s_,4)}, {c}')
        if t == 6:
            e(f'v_add_f32 {v(vL)}, {v(vL)}, {v(vL+1)}')
            xswap(vL, vT[0], 'v_add_f32')
            e(f'ds_write_b32 {v(vMo)}, {v(vL)} offset:1024')
        if t == 7:
            red_write()
            for i in range(8): e(f'v_mov_b32 {v(TM+i)}, {v(O+i)}')
            stamp()
    assert WS_OX % (32 << 14) == 0 and RS % 16384 == 0
    stamp()
    e.label('L_tail')
    red_write()
    lp = e.newlabel('Lrx'); ld = e.newlabel('Lrxd')
    e(f's_mov_b32 s{sT3}, 0x20000')
    e.label(lp)
    e.wait_vm_all()
    e(f'v_xor_b32 {v(TM)}, {v(RG[0]+3)}, {v(vTok)}')
    e(f'v_xor_b32 {v(TM+1)}, {v(RG[1]+3)}, {v(vTok)}')
    e(f'v_or_b32 {v(TM)}, {v(TM)}, {v(TM+1)}')
    e(f'v_cmp_ne_u32 vcc, 0, {v(TM)}')
    e.nop(4)
    e(f's_cbranch_vccz {ld}')
    if opts.get('noox'): e(f's_branch {ld}')
    e(f's_sub_u32 s{sT3}, s{sT3}, 1')
    e(f's_cmp_eq_u32 s{sT3}, 0')
    e(f's_cbranch_scc1 {ld}')
    if opts.get('ox_pol', ' sc1') != ' sc1': e('buffer_wbl2 sc1')
    e(f's_sleep 8')
    rx_loads()
    e(f's_branch {lp}')
    for r in e.vm: e.vm[r] = []
    e.label(ld)
    e(f's_mov_b32 s{sT3}, 0xffff0000')
    t0, t1 = 38, 39
    e(f'v_sub_f32 {v(t0)}, {v(vLse)}, {v(RG[1]+2)}')
    e(f'v_sub_f32 {v(t1)}, {v(RG[1]+2)}, {v(vLse)}')
    e(f'v_cmp_lt_u32 vcc, 31, v0')
    e(f'v_exp_f32 {v(t0)}, {v(t0)}'); e(f'v_exp_f32 {v(t1)}, {v(t1)}')
    e(f'v_add_f32 {v(t0)}, 1.0, {v(t0)}'); e(f'v_add_f32 {v(t1)}, 1.0, {v(t1)}')
    e(f'v_rcp_f32 {v(t0)}, {v(t0)}'); e(f'v_rcp_f32 {v(t1)}, {v(t1)}')
    e(f'v_cndmask_b32 {v(RG[1])}, {v(RG[1])}, {v(RG[1]+1)}, vcc')
    gsrc = [RG[0], RG[0]+1, RG[0]+2, RG[1]]
    for i in range(4):
        e(f'v_lshlrev_b32 {v(TM+2*i)}, 16, {v(gsrc[i])}'); e(f'v_and_b32 {v(TM+2*i+1)}, s{sT3}, {v(gsrc[i])}')
    e(f'v_mul_f32 {v(t1)}, {v(t1)}, {v(vRl)}')
    for i in range(8): e(f'v_mul_f32 {v(TM+i)}, {v(TM+i)}, {v(t0)}')
    OI = slot_of[TEND-2] * SLOT
    e(f's_add_u32 s{sT1}, s{sW1k}, {OI}')
    e(f'v_add_u32 {v(vT[0])}, s{sT1}, {v(vLin)}')
    e(f's_and_b32 s{sT2}, s{sWave}, 1'); e(f's_lshl_b32 s{sT0}, s{sT2}, 3'); e(f's_lshl_b32 s{sT1}, s{sT2}, 8')
    e(f'v_add_u32 {v(vRw)}, s{sT1}, {v(vOr)}')
    e.wait_lg(0)
    e('s_barrier')
    for k in range(1, 4):
        e(f'ds_read_b128 {v(O+8*k,4)}, {v(vRr)} offset:{(k-1)*SLOT}')
        e(f'ds_read_b128 {v(O+8*k+4,4)}, {v(vRr)} offset:{(k-1)*SLOT + 1024}')
    for k in range(1, 4):
        for i in range(0, 8, 2):
            e(f'v_pk_add_f32 {v(O+i,2)}, {v(O+i,2)}, {v(O+8*k+i,2)}')
    for i in range(8): e(f'v_fma_f32 {v(O+i)}, {v(O+i)}, {v(t1)}, {v(TM+i)}')
    for i in range(4): e(f'v_cvt_pk_bf16_f32 {v(TM+i)}, {v(O+2*i)}, {v(O+2*i+1)}')
    e(f'ds_write_b128 {v(vT[0])}, {v(TM,4)}')
    e.wait_lg(0)
    e('s_barrier')
    lo = lambda k: S0 + 16 * (k // 2) + 4 * (k % 2)
    for ck in range(4):
        for qt in range(2):
            e(f'ds_read_b128 {v(lo(2*ck+qt),4)}, {v(vOr)} offset:{OI + ck*2048 + qt*256}')
    for ck in range(4):
        e(f'ds_read_b128 {v(lo(8+ck),4)}, {v(vRw)} offset:{OI + ck*2048}')
    e(f's_mul_i32 s{sT1}, s2, {PART_BYTES}')
    e(f's_lshl_b32 s{sT3}, s{sWave}, 9')
    e(f'v_lshlrev_b32 {v(vT[1])}, 3, v0')
    e(f's_add_u32 s{sT3}, s{sT3}, s{sT1}'); e(f's_add_u32 s{sT3}, s{sT3}, 32768')
    e(f's_lshl_b32 s{sT2}, s{sWave}, 12'); e(f's_add_u32 s{sT1}, s{sT1}, s{sT2}')
    AC = 84
    DD = [120, 124, 64, 68]
    def fin(j):
        D = DD[j]
        for qt in range(2):
            A0 = AC + 8*j + 4*qt
            e(f'v_cvt_pk_bf16_f32 {v(D+2*qt)}, {v(A0)}, {v(A0+1)}')
            e(f'v_cvt_pk_bf16_f32 {v(D+2*qt+1)}, {v(A0+2)}, {v(A0+3)}')
        e(f'buffer_store_dwordx4 {v(D,4)}, {v(vLin)}, {srd(sWS)}, s{sT1} offen offset:{j*1024}{st_pol}', tag='OUT')
    for j in range(4):
        for ck in range(4):
            for qt in range(2):
                A0 = AC + 8*j + 4*qt
                c = '0' if ck == 0 else v(A0, 4)
                e(f'v_mfma_f32_16x16x32_bf16 {v(A0,4)}, {v(WF[ck][j],4)}, {v(lo(2*ck+qt),4)}, {c}')
        c = '0' if j == 0 else v(AC+32, 4)
        e(f'v_mfma_f32_16x16x32_bf16 {v(AC+32,4)}, {v(WF[j][4],4)}, {v(lo(8+j),4)}, {c}')
        if j >= 1: fin(j - 1)
    fin(3)
    e(f'v_cvt_pk_bf16_f32 {v(72)}, {v(AC+32)}, {v(AC+33)}')
    e(f'v_cvt_pk_bf16_f32 {v(73)}, {v(AC+34)}, {v(AC+35)}')
    e(f'buffer_store_dwordx2 {v(72,2)}, {v(vT[1])}, {srd(sWS)}, s{sT3} offen{st_pol}', tag='OUT')
    stamp()
    e(f's_lshl_b32 s{sT1}, s{sB}, 5'); e(f's_lshl_b32 s{sT2}, s{sWave}, 2'); e(f's_add_u32 s{sT1}, s{sT1}, s{sT2}')
    e(f's_mul_i32 s{sT0}, s{sT1}, {PART_BYTES}')
    e(f's_and_b32 s{sT3}, s2, 31'); e(f's_mul_i32 s{sT1}, s{sT3}, 1152'); e(f's_add_u32 s{sT0}, s{sT0}, s{sT1}')
    e(f's_add_u32 s{sT1}, s{sT0}, {PART_BYTES}'); e(f's_add_u32 s{sT2}, s{sT0}, {2*PART_BYTES}'); e(f's_add_u32 s{sG0}, s{sT0}, {3*PART_BYTES}')
    e(f's_lshl_b32 s{sVb}, s{sB}, 12'); e(f's_lshl_b32 s{sT3}, s{sT3}, 2'); e(f's_add_u32 s{sVb}, s{sVb}, s{sT3}'); e(f's_add_u32 s{sVb}, s{sVb}, {hex(WS_FLAG)}')
    e(f's_lshl_b32 s{sKc}, s2, 7'); e(f's_lshl_b32 s{sT3}, s{sWave}, 4'); e(f's_add_u32 s{sKc}, s{sKc}, s{sT3}'); e(f's_add_u32 s{sKc}, s{sKc}, {hex(WS_FLAG)}')
    e(f's_mul_i32 s{sXc}, s{sWave}, 3072'); e(f's_add_u32 s{sXc}, s{sXc}, {FA}')
    e(f'v_lshlrev_b32 {v(vT[3])}, 5, v0')
    e(f'v_add_u32 {v(vT[3])}, s{sXc}, {v(vT[3])}')
    e.wait_vm_all()
    e('s_barrier')
    lf = e.newlabel('Lfl')
    e(f's_cmp_lg_u32 s{sWave}, 0'); e(f's_cbranch_scc1 {lf}')
    e(f's_mov_b32 exec_hi, 0')
    e(f'buffer_store_dword {v(vTok)}, {v(vFw)}, {srd(sWS)}, s{sVb} offen sc1', tag='FLG')
    e(f's_mov_b64 exec, -1')
    e.label(lf)
    stamp()
    sp_ = e.newlabel('Lsm'); sd_ = e.newlabel('Lsmd')
    e(f's_mov_b32 s{sT3}, 0x20000')
    if opts.get('poll2'):
        NP = opts['poll2']
        pr = [vT[0], vT[1], vT[2]][:NP]
        for i in range(NP - 1):
            e(f'buffer_load_dword {v(pr[i])}, {v(vFl)}, {srd(sWS)}, s{sKc} offen sc1', tag=f'SM{i}')
            e(f's_sleep {opts.get("pgap", 6)}')
        e.label(sp_)
        for i in range(NP):
            j = (i + NP - 1) % NP
            e.raw(f'  buffer_load_dword {v(pr[j])}, {v(vFl)}, {srd(sWS)}, s{sKc} offen sc1')
            e.raw(f'  s_waitcnt vmcnt({NP-1})')
            e.raw(f'  v_cmp_ne_u32 vcc, {v(pr[i])}, {v(vTok)}')
            e.raw(f'  s_nop 4')
            e.raw(f'  s_cbranch_vccz {sd_}')
        e(f's_sub_u32 s{sT3}, s{sT3}, 1')
        e(f's_cmp_lg_u32 s{sT3}, 0')
        e(f's_cbranch_scc1 {sp_}')
        for r in e.vm: e.vm[r] = []
    else:
        e.label(sp_)
        e(f'buffer_load_dword {v(vT[0])}, {v(vFl)}, {srd(sWS)}, s{sKc} offen sc1', tag='SM')
        e.wait_vm_all()
        e(f'v_cmp_ne_u32 vcc, {v(vT[0])}, {v(vTok)}')
        e.nop(4)
        e(f's_cbranch_vccz {sd_}')
        e(f's_sub_u32 s{sT3}, s{sT3}, 1')
        e(f's_cmp_eq_u32 s{sT3}, 0')
        e(f's_cbranch_scc1 {sd_}')
        e(f's_sleep {opts.get("ssleep", 1)}')
        e(f's_branch {sp_}')
    e.label(sd_)
    stamp()
    LD = 128
    for l, (va, so) in enumerate([(vLin, sT0), (vLin, sT1), (vLin, sT2), (vLin, sG0), (vBo, sT0)]):
        e(f'buffer_load_dwordx4 {v(LD+4*l,4)}, {v(va)}, {srd(sWS)}, s{so} offen sc1', tag=f'RD{l}')
    e(f's_mov_b32 s{sT3}, 0xffff0000')
    ACCR = 160; U = 176
    for l in range(5):
        e.wait_vm(f'RD{l}')
        base = ACCR if l < 4 else ACCR + 8
        first = l in (0, 4)
        for k in range(4):
            d0 = base + 2*k if first else U + 2*k
            e(f'v_lshlrev_b32 {v(d0)}, 16, {v(LD+4*l+k)}'); e(f'v_and_b32 {v(d0+1)}, s{sT3}, {v(LD+4*l+k)}')
        if not first:
            for k in range(4):
                e(f'v_pk_add_f32 {v(base+2*k,2)}, {v(base+2*k,2)}, {v(U+2*k,2)}')
        if l == 3:
            e(f'ds_write_b128 {v(vT[3])}, {v(ACCR,4)}')
            e(f'ds_write_b128 {v(vT[3])}, {v(ACCR+4,4)} offset:16')
    e(f's_mov_b32 exec_hi, 0')
    e(f'ds_write_b128 {v(vT[3])}, {v(ACCR+8,4)} offset:2048')
    e(f'ds_write_b128 {v(vT[3])}, {v(ACCR+12,4)} offset:2064')
    e(f's_mov_b64 exec, -1')
    e.wait_lg(0)
    e('s_barrier')
    e(f's_cmp_ge_u32 s{sWave}, 6'); e('s_cbranch_scc1 L_end1')
    for w in range(8):
        e(f'ds_read_b64 {v(LD+2*w,2)}, {v(vFa)} offset:{w*3072}')
    for w in range(1, 8): e(f'v_pk_add_f32 {v(LD,2)}, {v(LD,2)}, {v(LD+2*w,2)}')
    lq = e.newlabel('Lq')
    e(f's_cmp_lt_u32 s{sWave}, 4'); e(f's_cbranch_scc1 {lq}')
    for perm in ('[1,0,3,2]', '[2,3,0,1]'):
        for k in range(2):
            e(f'v_add_f32_dpp {v(LD+k)}, {v(LD+k)}, {v(LD+k)} quad_perm:{perm} row_mask:0xf bank_mask:0xf')
    e.label(lq)
    e(f'v_cvt_pk_bf16_f32 {v(LD)}, {v(LD)}, {v(LD+1)}')
    e(f'buffer_store_dword {v(LD)}, {v(vOa)}, {srd(sOUT)}, 0 offen', tag='FIN')
    if stamps:
        e.wait_vm_all()
        stamp()
        e(f's_cmp_lg_u32 s{sWave}, 0'); e('s_cbranch_scc1 L_end1')
        e(f's_lshl_b32 s{sT1}, s2, 7'); e(f's_add_u32 s{sT1}, s{sT1}, {hex(WS_STAMP)}')
        e('s_mov_b64 exec, 1')
        e(f'v_mov_b32 {v(vT[2])}, 0')
        for i in range(16):
            if i < nstamp[0]:
                e(f'v_mov_b32 {v(vT[0])}, s{sStamp+2*i}'); e(f'v_mov_b32 {v(vT[1])}, s{sStamp+2*i+1}')
            else:
                e(f'v_mov_b32 {v(vT[0])}, 0'); e(f'v_mov_b32 {v(vT[1])}, 0')
            e(f'buffer_store_dwordx2 {v(vT[0],2)}, {v(vT[2])}, {srd(sWS)}, s{sT1} offen offset:{8*i}')
            e.nop(2)
    e.label('L_end1')
    e('s_endpgm')
    k1_lines = e.lines
    n1 = e.ninst

    hdr = open('standalone__sliding_block_cached__sampling.s.ref').read().split('\n')
    hdr = [l for l in hdr if l.startswith(';') and '@launch' not in l and 'Override' not in l and 'grid=ceil' not in l]
    out = hdr + [
        f'; @launch grid=(256,1,1) block=(512,1,1) lds={LDS_BYTES}',
        '.amdgcn_target "amdgcn-amd-amdhsa--gfx950"', '.text'] + k1_lines
    def kd(name, nv, ns, acc):
        return ['.section .rodata,"a"', '.p2align 6', f'.amdhsa_kernel {name}',
                f'  .amdhsa_next_free_vgpr {nv}', f'  .amdhsa_next_free_sgpr {ns}', f'  .amdhsa_accum_offset {acc}',
                '  .amdhsa_group_segment_fixed_size 0', '  .amdhsa_kernarg_size 64', '  .amdhsa_user_sgpr_count 2',
                '  .amdhsa_user_sgpr_kernarg_segment_ptr 1', '  .amdhsa_system_sgpr_workgroup_id_x 1', '.end_amdhsa_kernel']
    out += kd(K1, 256, 102, 256)
    print('K1 instrs', n1, 'QI', QI, 'slots', [slot_of[n] for n in range(TEND)], file=sys.stderr)
    return '\n'.join(out) + '\n'

if __name__ == '__main__':
    E = 'exp/'
    b = dict(dmafirst=True, nr=8, gbit=5)
    st = dict(stamps=True, vst=(0, 12), kst=(0, 2, 4, 6), qst=(0,))
    open(E + 'v23.s', 'w').write(gen(dict(b)))
    open(E + 'v23a.s', 'w').write(gen(dict(b, ta=2, tb=2)))
    open(E + 'v23b.s', 'w').write(gen(dict(b, ta=2, tb=1)))
    open(E + 'v23c.s', 'w').write(gen(dict(b, xl=4, ta=2, tb=2)))
    open(E + 'v23d.s', 'w').write(gen(dict(b, xl=3)))
    open(E + 'v23s.s', 'w').write(gen(dict(b, ta=2, tb=2, gbit=4, **st)))
```

```python
from gen23 import gen
E = 'exp/'
b = dict(dmafirst=True, nr=8, gbit=5, xl=8, ta=2, tb=1)
w4 = {0: ({4: (0, 1, 2), 5: (3, 4)}, 7), 1: ({8: (0, 1), 9: (2, 3), 10: (4,)}, 12), 2: ({13: (0, 1, 2), 14: (3, 4)}, 16), 3: ({17: (0, 1), 18: (2, 3), 19: (4,)}, 22)}
w5 = {0: ({4: (0, 1), 5: (2, 3), 6: (4,)}, 8), 1: ({9: (0, 1), 10: (2, 3), 11: (4,)}, 13), 2: ({14: (0, 1), 15: (2, 3), 16: (4,)}, 18), 3: ({19: (0, 1, 2), 20: (3, 4)}, 23)}
open(E + 'v26a.s', 'w').write(gen(dict(b, ox2=9)))
open(E + 'v26b.s', 'w').write(gen(dict(b, ox2=10)))
open(E + 'v26c.s', 'w').write(gen(dict(b, wsched=w4)))
open(E + 'v26d.s', 'w').write(gen(dict(b, wsched=w5)))
open(E + 'v26e.s', 'w').write(gen(dict(b, w1=2, w2=3)))
```
